```python
import torch

def _softmax(x, axis=-1):
    return torch.softmax(x, dim=axis)

def _gelu(x):
    return torch.nn.functional.gelu(x, approximate='tanh')

def _silu(x):
    return torch.nn.functional.silu(x)

def _sigmoid(x):
    return torch.sigmoid(x)

def _layernorm(x, axis=-1, eps=1e-05):
    m = x.mean(dim=axis, keepdim=True)
    v = x.var(dim=axis, keepdim=True, unbiased=False)
    return (x - m) / torch.sqrt(v + eps)

def _scatter_add(tgt, idx, src, axis=0):
    return tgt.clone().index_add_(axis, idx, src)

def _segment_sum(src, seg, n):
    out = torch.zeros((n,) + src.shape[1:], dtype=src.dtype)
    return out.index_add_(0, seg, src)

def _pad(x, pw):
    flat = tuple((v for pair in reversed(pw) for v in pair))
    return torch.nn.functional.pad(x, flat)
kernel_name = 'gated_mix__memory_aug_recurrent_mem_tr__spectral_gfnet__prompt'

def setup_inputs():

    _w = lambda a: (lambda t: t.to(torch.bfloat16) if t.is_floating_point() else t)(torch.as_tensor(a))

    def _A_setup():
        B, S, Dm = (1, 2048, 1024)
        H, Dh = (32, 128)
        M, seg = (8, 32)
        seg = min(seg, S)
        S = S // seg * seg
        return {'x': _w((lambda *s: torch.randn(*s, dtype=torch.bfloat16) * 0.05)(B, S, Dm)), 'mem0': _w((lambda *s: torch.randn(*s, dtype=torch.bfloat16) * 0.4)(B, M, Dm)), 'Wq': _w((lambda *s: torch.randn(*s, dtype=torch.bfloat16) * 6.4)(Dm, H, Dh) * Dm ** (-0.5)), 'Wk': _w((lambda *s: torch.randn(*s, dtype=torch.bfloat16) * 6.4)(Dm, H, Dh) * Dm ** (-0.5)), 'Wv': _w((lambda *s: torch.randn(*s, dtype=torch.bfloat16) * 0.4)(Dm, H, Dh) * Dm ** (-0.5)), 'Wo': _w((lambda *s: torch.randn(*s, dtype=torch.bfloat16) * 0.4)(H, Dh, Dm) * (H * Dh) ** (-0.5)), 'seg_len': seg}
    _A_in = _A_setup()

    def _B_setup():
        B, S, D = (1, 2048, 1024)
        Df = D // 2 + 1
        return {'x': _w((lambda *s: torch.randn(*s, dtype=torch.bfloat16) * 0.05)(B, S, D)), 'w_r': _w((lambda *s: torch.randn(*s, dtype=torch.bfloat16) * 3.2)(S, Df) * 0.02), 'w_i': _w((lambda *s: torch.randn(*s, dtype=torch.bfloat16) * 3.2)(S, Df) * 0.02)}
    _B_in = _B_setup()
    return {'A_x': _A_in['x'], 'A_mem0': _A_in['mem0'], 'A_Wq': _A_in['Wq'], 'A_Wk': _A_in['Wk'], 'A_Wv': _A_in['Wv'], 'A_Wo': _A_in['Wo'], 'A_seg_len': _A_in['seg_len'], 'B_x': _B_in['x'], 'B_w_r': _B_in['w_r'], 'B_w_i': _B_in['w_i'], 'gate_w': _w((lambda *s: torch.randn(*s, dtype=torch.bfloat16) * 0.05)(1024) * 16.0)}

def reference(A_x, A_mem0, A_Wq, A_Wk, A_Wv, A_Wo, A_seg_len, B_x, B_w_r, B_w_i, gate_w):

    def _A_ref(x, mem0, Wq, Wk, Wv, Wo, seg_len):
        B, S, Dm = x.shape
        H, Dh = (Wq.shape[1], Wq.shape[2])
        M = mem0.shape[1]
        scale = Dh ** (-0.5)
        n_seg = S // seg_len
        L = M + seg_len
        idx = torch.arange(L)
        mask = (idx[:, None] < M) | (idx[:, None] >= idx[None, :])
        mem = mem0
        outs = []
        for s in range(n_seg):
            xs = x[:, s * seg_len:(s + 1) * seg_len, :].clone()
            h = torch.concatenate([mem, xs], axis=1)
            q = torch.einsum('btd,dhe->bhte', h, Wq)
            k = torch.einsum('btd,dhe->bhte', h, Wk)
            v = torch.einsum('btd,dhe->bhte', h, Wv)
            scores = torch.einsum('bhqe,bhke->bhqk', q, k) * scale
            scores = torch.where(mask[None, None], scores, -1000000000.0)
            p = _softmax(scores, axis=-1)
            o = torch.einsum('bhqk,bhke->bhqe', p, v)
            o = torch.einsum('bhte,hed->btd', o, Wo)
            mem = o[:, :M, :].clone()
            outs.append(o[:, M:, :])
        return torch.concatenate(outs, axis=1)

    def _B_ref(x, w_r, w_i):
        B, S, D = x.shape
        X = (lambda x, axes=(-2, -1): torch.fft.rfft2(x.float(), dim=axes))(x, axes=(-2, -1))
        W = w_r + 1j * w_i
        X = X * W
        y = (lambda x, s, axes=(-2, -1): torch.fft.irfft2(x, s=s, dim=axes).to(torch.bfloat16))(X, (S, D), axes=(-2, -1))
        return y
    x = A_x
    g = _sigmoid((x * gate_w).sum(-1, keepdims=True))
    a = _A_ref(x, A_mem0, A_Wq, A_Wk, A_Wv, A_Wo, A_seg_len)
    b = _B_ref(x, B_w_r, B_w_i)
    return g * a + (1 - g) * b
```

```python
from gen import *

LOG2E = math.log2(math.e)

def role_f(a, mode):
    va = VAlloc()
    t0 = va.get(); t1 = va.get(); t2 = va.get(); t3 = va.get()
    wave0_atomic_add(a, DBG_H1 + 32 * mode, "1", t0, t1)
    if Cfg.no_f:
        a("s_sleep 100")
        handshake_wait(a, mode, t0, t1, 40)
        a("s_endpgm")
        return
    sFI, sGB, sDB, sK, sLB = 72, 73, 74, 75, 76
    sROW = 78
    sO0, sO1, sO2, sO3 = 86, 87, 88, 89
    sMA, sMB, sSV = 90, 92, 94
    OUTS, WRS, WIS, AUX = sr(S_OUT, 4), sr(S_WR, 4), sr(S_WI, 4), sr(S_AUX, 4)
    srd(a, S_OUT, P_OUT, 4 * MB)
    srd(a, S_WR, P_WR, 2048 * 1026)
    srd(a, S_WI, P_WI, 2048 * 1026)
    srd(a, S_AUX, P_GATE, 2048)
    a(f"s_sub_u32 s{sFI}, s{sSLOT}, 24")
    prof = Prof(a, va)
    vC = va.get(); vHH = va.get(); vPERM = va.get()
    vDM = va.get(2); vRB = va.get(4); vINC = va.get(); vOA = va.get()
    TH = va.get(8); CS = va.get(8); GN = va.get(8, 4); FR = va.get(32, 4)
    BIG = va.get(128, 4)
    EX = va.get(32, 4)
    a(f"v_and_b32 v{vC}, 31, v0")
    a(f"v_lshrrev_b32 v{vHH}, 5, v0")
    a(f"v_bfe_u32 v{t0}, v0, 2, 1")
    a(f"v_bfe_u32 v{t1}, v0, 3, 2")
    a(f"v_lshlrev_b32 v{t0}, 4, v{t0}")
    a(f"v_lshl_add_u32 v{t0}, v{t1}, 2, v{t0}")
    a(f"v_and_b32 v{t1}, 3, v0")
    a(f"v_add_u32 v{vPERM}, v{t0}, v{t1}")
    a(f"s_mov_b32 s{sS}, 0")
    prof.stamp(0)

    a(f"s_lshl_b32 s{sT0}, s{sX}, 3")
    a(f"s_add_u32 s{sT0}, s{sT0}, s{sFI}")
    a(f"s_lshl_b32 s{sT0}, s{sT0}, 2")
    a(f"s_add_u32 s{sT0}, s{sT0}, s{sWV}")
    a(f"s_lshl_b32 s{sT1}, s{sT0}, 14")
    a(f"v_lshlrev_b32 v{t0}, 4, v0")
    for k in range(2):
        a(f"buffer_load_dwordx4 {vr(EX+4*k,4)}, v{t0}, {AUX}, 0 offen offset:{1024*k}")
    for r in range(8):
        for k in range(2):
            a(f"buffer_load_dwordx4 {vr(BIG+8*r+4*k,4)}, v{t0}, {XS}, s{sT1} offen offset:{1024*k}")
        a(f"s_add_u32 s{sT1}, s{sT1}, 2048")
    a("s_waitcnt vmcnt(0)")
    for r in range(8):
        a(f"v_mov_b32 v{EX+8+r}, 0")
    for k in range(8):
        for r in range(8):
            a(f"v_dot2_f32_bf16 v{EX+8+r}, v{BIG+8*r+k}, v{EX+k}, v{EX+8+r}")
    a.nop(3)
    for sh in (8, 4, 2, 1):
        for r in range(8):
            a(f"v_add_f32_dpp v{EX+8+r}, v{EX+8+r}, v{EX+8+r} row_ror:{sh} row_mask:0xf bank_mask:0xf")
    for r in range(8):
        xlane_gg(a, "v_add_f32", EX + 8 + r, t1)
    a(f"v_mov_b32 v{t2}, v{EX+8}")
    for r in range(1, 8):
        a(f"v_cmp_eq_u32 vcc, {r}, v0")
        a("s_nop 1")
        a(f"v_cndmask_b32 v{t2}, v{t2}, v{EX+8+r}, vcc")
    a(f"v_mul_f32 v{t2}, {f32bits(-LOG2E):#x}, v{t2}")
    a(f"v_exp_f32 v{t2}, v{t2}")
    a("s_nop 0")
    a(f"v_add_f32 v{t2}, 1.0, v{t2}")
    a(f"v_rcp_f32 v{t2}, v{t2}")
    a(f"v_lshrrev_b32 v{t1}, 3, v0")
    a(f"v_min_u32 v{t1}, 1, v{t1}")
    a(f"v_lshlrev_b32 v{t1}, 28, v{t1}")
    a(f"v_lshl_add_u32 v{t1}, v0, 2, v{t1}")
    a(f"s_lshl_b32 s{sT0}, s{sT0}, 5")
    a(f"s_add_u32 s{sT0}, s{sT0}, {GATE_OFF:#x}")
    a(f"buffer_store_dword v{t2}, v{t1}, {WS}, s{sT0} offen sc1")

    DEPTH = 6
    NFR = 10

    def gemm(stage):
        fwd = stage in (1, 2)
        gen_is_a = stage in (2, 4)
        N = 1024 if stage in (1, 4) else 2048
        K = N
        stride = {1: 2048, 2: 4096, 3: 4096, 4: 2048}[stage]
        src = XS if stage == 1 else WS
        src_off = {1: 0, 2: RT_OFF, 3: HT_OFF, 4: Z_OFF}[stage]
        fl = "" if stage == 1 else "sc1"
        if stage in (1, 4):
            a(f"s_mov_b32 s{sGB}, s{sFI}")
            a(f"s_mov_b32 s{sDB}, s{sX}")
        else:
            a(f"s_and_b32 s{sGB}, s{sX}, 1")
            a(f"s_lshl_b32 s{sGB}, s{sGB}, 3")
            a(f"s_add_u32 s{sGB}, s{sGB}, s{sFI}")
            a(f"s_lshr_b32 s{sDB}, s{sX}, 1")
        a(f"v_lshrrev_b32 v{t0}, 3, v0")
        if stage in (1, 3):
            a(f"v_lshrrev_b32 v{t1}, 2, v{t0}")
            a(f"v_and_b32 v{t2}, 3, v{t0}")
            a(f"v_lshl_add_u32 v{t1}, v{t1}, 4, v{t2}")
            rows = [32 * (m >> 2) + 4 * (m & 3) for m in range(8)]
        elif stage == 2:
            a(f"v_lshlrev_b32 v{t1}, 1, v{t0}")
            rows = [16 * (m & 3) + (m >> 2) for m in range(8)]
        else:
            a(f"v_mov_b32 v{t1}, v{t0}")
            rows = [8 * m for m in range(8)]
        a(f"v_mul_u32_u24 v{t1}, {stride}, v{t1}")
        a(f"v_lshrrev_b32 v{t0}, 1, v{t0}")
        a(f"v_and_b32 v{t2}, 7, v0")
        a(f"v_xor_b32 v{t0}, v{t0}, v{t2}")
        a(f"v_lshl_add_u32 v{vDM}, v{t0}, 4, v{t1}")
        a(f"v_xor_b32 v{vDM+1}, 64, v{vDM}")
        a(f"s_lshl_b32 s{sT0}, s{sDB}, 2")
        a(f"s_add_u32 s{sT0}, s{sT0}, s{sWV}")
        a(f"s_mul_i32 s{sT0}, s{sT0}, {64*stride}")
        for m in range(8):
            a(f"s_add_u32 s{sROW+m}, s{sT0}, {src_off + rows[m]*stride:#x}")
        a(f"s_lshl_b32 s{sLB}, s{sWV}, 13")
        def dma(m, last):
            a(f"s_add_u32 m0, s{sLB}, {1024*m}")
            a("s_nop 0")
            a(f"buffer_load_dwordx4 v{vDM+(m&1)}, {src}, s{sROW+m} offen {fl} lds")
            if last:
                a(f"v_add_u32 v{vDM}, 128, v{vDM}")
                a(f"v_add_u32 v{vDM+1}, 128, v{vDM+1}")
                a(f"s_add_u32 s{sLB}, s{sLB}, 32768")
                a(f"s_and_b32 s{sLB}, s{sLB}, 0x1ffff")
        for st in range(2):
            for m in range(8):
                dma(m, m == 7)
        a(f"v_bfe_u32 v{t0}, v0, 1, 3")
        a(f"v_xor_b32 v{t0}, v{t0}, v{vHH}")
        a(f"v_lshlrev_b32 v{t0}, 4, v{t0}")
        a(f"v_lshl_add_u32 v{vRB}, v{vC}, 7, v{t0}")
        for ks in range(1, 4):
            a(f"v_xor_b32 v{vRB+ks}, {ks<<5}, v{vRB}")
        a(f"s_lshl_b32 s{sT0}, s{sGB}, 2")
        a(f"s_add_u32 s{sT0}, s{sT0}, s{sWV}")
        a(f"s_lshl_b32 s{sT0}, s{sT0}, 5")
        a(f"v_add_u32 v{t0}, s{sT0}, v{vPERM if gen_is_a else vC}")
        a(f"s_mov_b32 s{sT1}, {f32bits(1.0 / N):#x}")
        if fwd:
            a(f"v_lshrrev_b32 v{t1}, 1, v{t0}")
            a(f"v_and_b32 v{t2}, 1, v{t0}")
            a(f"v_cvt_f32_u32 v{t2}, v{t2}")
            a(f"v_mul_f32 v{t2}, {f32bits(-0.25):#x}, v{t2}")
            a(f"v_cmp_eq_u32 vcc, 1, v{t0}")
            a(f"v_mov_b32 v{t3}, {N//2}")
            a("s_nop 0")
            a(f"v_cndmask_b32 v{t1}, v{t1}, v{t3}, vcc")
            a(f"v_cndmask_b32 v{t2}, v{t2}, 0, vcc")
            for j in range(8):
                a(f"v_lshl_add_u32 v{t3}, v{vHH}, 3, {j}")
                a(f"v_mul_u32_u24 v{t3}, v{t3}, v{t1}")
                a(f"v_and_b32 v{t3}, {N-1}, v{t3}")
                a(f"v_cvt_f32_u32 v{t3}, v{t3}")
                a(f"v_fma_f32 v{TH+j}, v{t3}, s{sT1}, v{t2}")
            a(f"v_lshlrev_b32 v{t3}, 4, v{t1}")
        else:
            for j in range(8):
                a(f"v_lshl_add_u32 v{t3}, v{vHH}, 2, {j>>1}")
                a(f"v_mul_u32_u24 v{t3}, v{t3}, v{t0}")
                a(f"v_and_b32 v{t3}, {N-1}, v{t3}")
                a(f"v_cvt_f32_u32 v{t3}, v{t3}")
                a(f"v_mul_f32 v{TH+j}, s{sT1}, v{t3}")
                if j & 1:
                    a(f"v_add_f32 v{TH+j}, {f32bits(-0.25):#x}, v{TH+j}")
            a(f"v_lshlrev_b32 v{t3}, 3, v{t0}")
        a(f"v_and_b32 v{t3}, {N-1}, v{t3}")
        a(f"v_cvt_f32_u32 v{t3}, v{t3}")
        a(f"v_mul_f32 v{vINC}, s{sT1}, v{t3}")
        for j in range(8):
            a(f"v_cos_f32 v{CS+j}, v{TH+j}")
        if not fwd:
            a(f"v_and_b32 v{t1}, 1, v{t0}")
            a(f"v_cvt_f32_u32 v{t1}, v{t1}")
            a(f"v_fma_f32 v{t1}, v{t1}, -2.0, 1.0")
            a(f"v_cmp_eq_u32 vcc, 0, v{vHH}")
            a("s_nop 1")
            a(f"v_cndmask_b32 v{CS+1}, v{CS+1}, v{t1}, vcc")
        for j in range(8):
            a(f"v_add_f32 v{TH+j}, v{TH+j}, v{vINC}")
        for j in range(4):
            a(f"v_cvt_pk_bf16_f32 v{GN+j}, v{CS+2*j}, v{CS+2*j+1}")
        for r in range(128):
            a(f"v_accvgpr_write_b32 a{r}, 0")
        a("s_waitcnt vmcnt(8)")
        a("s_barrier")
        def rd(f):
            f64 = f % 64
            st, ks, tl = f64 >> 5, (f64 >> 3) & 3, f64 & 7
            a(f"ds_read_b128 {vr(FR+4*(f%NFR_),4)}, v{vRB+ks} offset:{st*32768 + tl*4096}")
            if st == 1 and tl == 7:
                a(f"v_xor_b32 v{vRB+ks}, 0x10000, v{vRB+ks}")
        NFR_ = 8
        for f in range(DEPTH):
            rd(f)
        a(f"s_mov_b32 s{sK}, {K // 128}")
        L = a.newlabel("f_loop")
        a.label(L)
        for f in range(64):
            ksg, tl = f >> 3, f & 7
            g = GN + 4 * (ksg & 1); gn = GN + 4 * ((ksg + 1) & 1)
            if (f & 31) == 32 - DEPTH:
                a("s_waitcnt vmcnt(8)")
                a("s_barrier")
            a(f"s_waitcnt lgkmcnt({DEPTH-1})")
            d = vr(FR + 4 * (f % NFR_), 4)
            A, B = (vr(g, 4), d) if gen_is_a else (d, vr(g, 4))
            a(f"v_mfma_f32_32x32x16_bf16 {ar(16*tl,16)}, {A}, {B}, {ar(16*tl,16)}")
            rd(f + DEPTH)
            if tl < 4:
                for j in (2 * tl, 2 * tl + 1):
                    a(f"v_cos_f32 v{CS+j}, v{TH+j}")
            else:
                for j in (2 * (tl - 4), 2 * (tl - 4) + 1):
                    a(f"v_add_f32 v{TH+j}, v{TH+j}, v{vINC}")
                if tl < 6:
                    for j in (2 * (tl - 4), 2 * (tl - 4) + 1):
                        a(f"v_cvt_pk_bf16_f32 v{gn+j}, v{CS+2*j}, v{CS+2*j+1}")
            fs = f & 31
            if fs % 3 == 2 and fs // 3 < 8:
                dma(fs // 3, fs // 3 == 7)
        a(f"s_sub_u32 s{sK}, s{sK}, 1")
        a(f"s_cmp_lg_u32 s{sK}, 0")
        a(f"s_cbranch_scc1 {L}")
        a("s_waitcnt vmcnt(0) lgkmcnt(0)")
        a.nop(12)

    def store_plain(dst_off, stride):
        a(f"s_lshl_b32 s{sT0}, s{sGB}, 2")
        a(f"s_add_u32 s{sT0}, s{sT0}, s{sWV}")
        a(f"s_mul_i32 s{sT0}, s{sT0}, {32*stride}")
        a(f"s_lshl_b32 s{sT1}, s{sDB}, 9")
        a(f"s_add_u32 s{sT0}, s{sT0}, s{sT1}")
        a(f"s_add_u32 s{sT0}, s{sT0}, {dst_off:#x}")
        a(f"v_mul_u32_u24 v{vOA}, {stride}, v{vC}")
        a(f"v_lshl_add_u32 v{vOA}, v{vHH}, 5, v{vOA}")
        for tl in range(8):
            b = BIG + 16 * tl
            for r in range(16):
                a(f"v_accvgpr_read_b32 v{b+r}, a{16*tl+r}")
            for r in range(8):
                a(f"v_cvt_pk_bf16_f32 v{b+r}, v{b+2*r}, v{b+2*r+1}")
            for u in range(2):
                a(f"buffer_store_dwordx4 {vr(b+4*u,4)}, v{vOA}, {WS}, s{sT0} offen offset:{64*tl + 16*u} sc1")

    def fbarrier(k):
        a("s_waitcnt vmcnt(0)")
        a("s_barrier")
        wave0_atomic_add(a, DBG_FB + 32 * mode + 4 * k, "1", t0, t1)
        SK = a.newlabel("fb_skip")
        a(f"s_cmp_eq_u32 s{sWV}, 0")
        a(f"s_cbranch_scc0 {SK}")
        wait_counter(a, DBG_FB + 32 * mode + 4 * k, 64, t0, t1, 10)
        a.label(SK)
        a("s_barrier")

    gemm(1)
    prof.stamp(1)
    store_plain(RT_OFF, 4096)
    handshake_wait(a, mode, t0, t1, 8)
    vW1 = va.get(); vW2 = va.get(); vW20 = va.get()
    a(f"s_and_b32 s{sGB}, s{sX}, 1")
    a(f"s_lshl_b32 s{sGB}, s{sGB}, 3")
    a(f"s_add_u32 s{sGB}, s{sGB}, s{sFI}")
    a(f"s_lshr_b32 s{sDB}, s{sX}, 1")
    a(f"s_lshl_b32 s{sT0}, s{sGB}, 2")
    a(f"s_add_u32 s{sT0}, s{sT0}, s{sWV}")
    a(f"s_lshl_b32 s{sT0}, s{sT0}, 4")
    a(f"v_lshl_add_u32 v{t0}, v{vHH}, 3, s{sT0}")
    a(f"s_lshl_b32 s{sT1}, s{sDB}, 8")
    a(f"v_lshl_add_u32 v{t1}, v{vC}, 1, s{sT1}")
    a(f"v_mul_u32_u24 v{vW1}, 1026, v{t0}")
    a(f"v_sub_u32 v{t2}, {2048-7}, v{t0}")
    a(f"v_mul_u32_u24 v{vW2}, 1026, v{t2}")
    a(f"v_sub_u32 v{t2}, 2048, v{t0}")
    a(f"v_cmp_eq_u32 s[{sMA}:{sMA+1}], 0, v{t0}")
    a(f"v_mov_b32 v{t3}, 1024")
    a("s_nop 0")
    a(f"v_cndmask_b32 v{t2}, v{t2}, v{t3}, s[{sMA}:{sMA+1}]")
    a(f"v_mul_u32_u24 v{vW20}, 1026, v{t2}")
    a(f"v_cmp_eq_u32 s[{sMB}:{sMB+1}], 0, v{t1}")
    a("s_waitcnt vmcnt(0)")
    for r in range(0, 128, 2):
        a(f"v_mov_b64 {vr(BIG+r,2)}, 0")
    for r in range(0, 32, 2):
        a(f"v_mov_b64 {vr(EX+r,2)}, 0")
    def w_loads(dst, q, off):
        a(f"s_mov_b32 s{sT2}, {q*1026}")
        a(f"s_mov_b32 s{sT3}, {0 if q == 0 else (7-q)*1026}")
        v2 = vW20 if q == 0 else vW2
        a(f"buffer_load_short_d16_hi v{dst}, v{vW1}, {WRS}, s{sT2} offen offset:{off}")
        a(f"buffer_load_short_d16_hi v{dst+1}, v{vW1}, {WIS}, s{sT2} offen offset:{off}")
        a(f"buffer_load_short_d16_hi v{dst+2}, v{v2}, {WRS}, s{sT3} offen offset:{off}")
        a(f"buffer_load_short_d16_hi v{dst+3}, v{v2}, {WIS}, s{sT3} offen offset:{off}")
    for q in range(8):
        w_loads(EX + 4 * q, q, 1024)
    a("s_waitcnt vmcnt(24)")
    for r in (vW1, vW2, vW20):
        a(f"v_add_u32 v{r}, v{r}, v{t1}")
    for i in range(4):
        for q in range(8):
            w_loads(BIG + 32 * i + 4 * q, q, 64 * i)
        a("s_waitcnt vmcnt(24)")
    fbarrier(0)
    prof.stamp(2)
    gemm(2)
    prof.stamp(3)
    SC = 2.0 / (2048 * 1024)
    a(f"s_mov_b32 s{sO0}, {f32bits(SC):#x}")
    a(f"s_mov_b32 s{sO1}, {f32bits(SC / 2):#x}")
    a(f"s_mul_i32 s{sT0}, s{sDB}, {256*4096}")
    a(f"s_lshl_b32 s{sT1}, s{sGB}, 2")
    a(f"s_add_u32 s{sT1}, s{sT1}, s{sWV}")
    a(f"s_lshl_b32 s{sT1}, s{sT1}, 6")
    a(f"s_add_u32 s{sT0}, s{sT0}, s{sT1}")
    a(f"s_add_u32 s{sO2}, s{sT0}, {HT_OFF:#x}")
    a(f"v_lshlrev_b32 v{vOA}, 13, v{vC}")
    a(f"v_lshl_add_u32 v{vOA}, v{vHH}, 5, v{vOA}")
    A_, B_, C_, E_, P_, M_, Pi, Mi = range(FR, FR + 8)
    U0, U1, V0, V1 = range(FR + 8, FR + 12)
    OU = FR + 16; OV = FR + 24
    for i in range(4):
        for q in range(8):
            w = BIG + 32 * i + 4 * q
            a(f"v_accvgpr_read_b32 v{A_}, a{32*i+2*q}")
            a(f"v_accvgpr_read_b32 v{B_}, a{32*i+2*q+1}")
            a(f"v_accvgpr_read_b32 v{C_}, a{32*i+16+2*q}")
            a(f"v_accvgpr_read_b32 v{E_}, a{32*i+16+2*q+1}")
            a(f"v_add_f32 v{P_}, v{w}, v{w+2}")
            a(f"v_sub_f32 v{M_}, v{w}, v{w+2}")
            a(f"v_add_f32 v{Pi}, v{w+1}, v{w+3}")
            a(f"v_sub_f32 v{Mi}, v{w+1}, v{w+3}")
            for r in (A_, B_, C_, E_):
                a(f"v_mul_f32 v{r}, s{sO0}, v{r}")
            a(f"v_mul_f32 v{U0}, v{A_}, v{P_}")
            a(f"v_mul_f32 v{U1}, v{B_}, v{P_}")
            a(f"v_mul_f32 v{V0}, v{C_}, v{P_}")
            a(f"v_mul_f32 v{V1}, v{E_}, v{P_}")
            a(f"v_fma_f32 v{U0}, v{B_}, v{Mi}, v{U0}")
            a(f"v_fma_f32 v{U1}, -v{A_}, v{Mi}, v{U1}")
            a(f"v_fma_f32 v{V0}, v{E_}, v{Mi}, v{V0}")
            a(f"v_fma_f32 v{V1}, -v{C_}, v{Mi}, v{V1}")
            if i == 0:
                a(f"v_mul_f32 v{FR+12}, 0.5, v{U0}")
                a(f"v_mul_f32 v{FR+13}, 0.5, v{U1}")
            a(f"v_fma_f32 v{U0}, -v{E_}, v{M_}, v{U0}")
            a(f"v_fma_f32 v{U1}, v{C_}, v{M_}, v{U1}")
            a(f"v_fma_f32 v{V0}, v{B_}, v{M_}, v{V0}")
            a(f"v_fma_f32 v{V1}, -v{A_}, v{M_}, v{V1}")
            a(f"v_fma_f32 v{U0}, v{C_}, v{Pi}, v{U0}")
            a(f"v_fma_f32 v{U1}, v{E_}, v{Pi}, v{U1}")
            a(f"v_fma_f32 v{V0}, -v{A_}, v{Pi}, v{V0}")
            a(f"v_fma_f32 v{V1}, -v{B_}, v{Pi}, v{V1}")
            if q == 0:
                a(f"s_mov_b64 exec, s[{sMA}:{sMA+1}]")
                a(f"v_mul_f32 v{U0}, v{A_}, v{w}")
                a(f"v_fma_f32 v{U0}, v{C_}, v{w+1}, v{U0}")
                a(f"v_mul_f32 v{U1}, v{B_}, v{w+2}")
                a(f"v_fma_f32 v{U1}, v{E_}, v{w+3}, v{U1}")
                a(f"v_mul_f32 v{V0}, v{C_}, v{w}")
                a(f"v_fma_f32 v{V0}, -v{A_}, v{w+1}, v{V0}")
                a(f"v_mul_f32 v{V1}, v{E_}, v{w+2}")
                a(f"v_fma_f32 v{V1}, -v{B_}, v{w+3}, v{V1}")
                a("s_mov_b64 exec, -1")
            if i == 0:
                x = EX + 4 * q
                a(f"s_mov_b64 exec, s[{sMB}:{sMB+1}]")
                a(f"v_mov_b32 v{U0}, v{FR+12}")
                a(f"v_mov_b32 v{U1}, v{FR+13}")
                a(f"v_add_f32 v{P_}, v{x}, v{x+2}")
                a(f"v_sub_f32 v{Mi}, v{x+1}, v{x+3}")
                a(f"v_mul_f32 v{V0}, v{C_}, v{P_}")
                a(f"v_mul_f32 v{V1}, v{E_}, v{P_}")
                a(f"v_fma_f32 v{V0}, v{E_}, v{Mi}, v{V0}")
                a(f"v_fma_f32 v{V1}, -v{C_}, v{Mi}, v{V1}")
                a(f"v_mul_f32 v{V0}, 0.5, v{V0}")
                a(f"v_mul_f32 v{V1}, 0.5, v{V1}")
                if q == 0:
                    a(f"s_and_b64 exec, s[{sMB}:{sMB+1}], s[{sMA}:{sMA+1}]")
                    a(f"v_mul_f32 v{U0}, v{A_}, v{w}")
                    a(f"v_mul_f32 v{U1}, v{B_}, v{w+2}")
                    a(f"v_mul_f32 v{V0}, v{C_}, v{x}")
                    a(f"v_mul_f32 v{V1}, v{E_}, v{x+2}")
                    for r in (U0, U1, V0, V1):
                        a(f"v_mul_f32 v{r}, 0.5, v{r}")
                a("s_mov_b64 exec, -1")
            a(f"v_cvt_pk_bf16_f32 v{OU+q}, v{U0}, v{U1}")
            a(f"v_cvt_pk_bf16_f32 v{OV+q}, v{V0}, v{V1}")
        a(f"s_add_u32 s{sO3}, s{sO2}, 4096")
        for u in range(2):
            a(f"buffer_store_dwordx4 {vr(OU+4*u,4)}, v{vOA}, {WS}, s{sO2} offen offset:{16*u} sc1")
            a(f"buffer_store_dwordx4 {vr(OV+4*u,4)}, v{vOA}, {WS}, s{sO3} offen offset:{16*u} sc1")
        a(f"s_add_u32 s{sO2}, s{sO2}, {64*4096}")
    fbarrier(1)
    prof.stamp(4)
    gemm(3)
    store_plain(Z_OFF, 2048)
    fbarrier(2)
    prof.stamp(5)
    gemm(4)
    prof.stamp(6)
    vXA = vW1; vFA = vW2
    a(f"s_lshl_b32 s{sT0}, s{sX}, 10")
    a(f"s_add_u32 s{sT0}, s{sT0}, {GATE_OFF:#x}")
    a(f"v_lshlrev_b32 v{t0}, 2, v{vC}")
    for i in range(8):
        a(f"buffer_load_dword v{EX+i}, v{t0}, {WS}, s{sT0} offen offset:{128*i} sc1")
    a(f"v_lshrrev_b32 v{t0}, 4, v{vC}")
    a(f"v_lshlrev_b32 v{t0}, 10, v{t0}")
    a(f"v_lshl_add_u32 v{t0}, v{vHH}, 8, v{t0}")
    a(f"v_and_b32 v{t1}, 15, v0")
    a(f"v_lshl_add_u32 v{vXA}, v{t1}, 4, v{t0}")
    a(f"v_and_b32 v{t0}, 7, v0")
    a(f"v_lshlrev_b32 v{vFA}, 2, v{t0}")
    a(f"s_lshl_b32 s{sT0}, s{sFI}, 2")
    a(f"s_add_u32 s{sT0}, s{sT0}, s{sWV}")
    a(f"s_lshl_b32 s{sO0}, s{sT0}, 17")
    a(f"s_lshl_b32 s{sT1}, s{sX}, 14")
    a(f"s_add_u32 s{sO0}, s{sO0}, s{sT1}")
    a(f"s_add_u32 s{sO0}, s{sO0}, {XPART_OFF:#x}")
    a(f"s_lshl_b32 s{sO1}, s{sT0}, 13")
    a(f"s_lshl_b32 s{sT1}, s{sX}, 10")
    a(f"s_add_u32 s{sO1}, s{sO1}, s{sT1}")
    a(f"s_add_u32 s{sO1}, s{sO1}, {FLG_OFF:#x}")
    a(f"s_lshl_b32 s{sO2}, s{sX}, 19")
    a(f"s_lshl_b32 s{sT1}, s{sT0}, 6")
    a(f"s_add_u32 s{sO2}, s{sO2}, s{sT1}")
    a(f"v_lshlrev_b32 v{vOA}, 11, v{vC}")
    a(f"v_lshl_add_u32 v{vOA}, v{vHH}, 5, v{vOA}")
    SUM = FR; BV = FR + 16
    for i in range(8):
        poll(a, [f"buffer_load_dword v{t2}, v{vFA}, {WS}, s{sO1} offen offset:{128*i} sc1"], [t2], t3, sleep=Cfg.f_sleep)
        a(f"s_add_u32 s{sT0}, s{sO0}, {2048*i}")
        for p in range(8):
            for u in range(2):
                a(f"buffer_load_dwordx4 {vr(BIG+8*p+4*u,4)}, v{vXA}, {WS}, s{sT0} offen offset:{512*u} sc1")
            if p < 7:
                a(f"s_add_u32 s{sT0}, s{sT0}, {4*MB:#x}")
        for r in range(16):
            a(f"v_accvgpr_read_b32 v{BV+r}, a{16*i+r}")
        for p in range(8):
            a(f"s_waitcnt vmcnt({14-2*p})")
            for r in range(8):
                src = BIG + 8 * p + r
                if p == 0:
                    a(f"v_lshlrev_b32 v{SUM+2*r}, 16, v{src}")
                    a(f"v_and_b32 v{SUM+2*r+1}, 0xffff0000, v{src}")
                else:
                    a(f"v_lshlrev_b32 v{t0}, 16, v{src}")
                    a(f"v_and_b32 v{t1}, 0xffff0000, v{src}")
                    a(f"v_add_f32 v{SUM+2*r}, v{SUM+2*r}, v{t0}")
                    a(f"v_add_f32 v{SUM+2*r+1}, v{SUM+2*r+1}, v{t1}")
        for r in range(16):
            a(f"v_sub_f32 v{SUM+r}, v{SUM+r}, v{BV+r}")
            a(f"v_fma_f32 v{SUM+r}, v{SUM+r}, v{EX+i}, v{BV+r}")
        o = EX + 8 + 8 * (i & 1)
        for r in range(8):
            a(f"v_cvt_pk_bf16_f32 v{o+r}, v{SUM+2*r}, v{SUM+2*r+1}")
        for u in range(2):
            a(f"buffer_store_dwordx4 {vr(o+4*u,4)}, v{vOA}, {OUTS}, s{sO2} offen offset:{16*u}")
        a(f"s_add_u32 s{sO2}, s{sO2}, 65536")
    prof.stamp(7)
    prof.dump()
    a("s_endpgm")
```

```python
from gen import *

def role_or(a, mode):
    loc = "" if mode == 0 else "sc1"
    va = VAlloc()
    sB, sJ, sVM, sVX, sPP, sPX, sPARTw, sPARTr, sMEMw, sXPW, sFL = 72, 74, 75, 76, 77, 78, 79, 80, 81, 82, 83
    sA, sBb, sC, sD, sE, sF, sG = 85, 86, 87, 88, 89, 90, 91
    sR0, sR1, sMp, sMr = 84, 71, sT4, sT5
    sM0 = 92
    srd(a, S_AUX, P_MEM0, 16384)
    PXL = 32768
    VML = 49152
    PPL_ = 57344
    a(f"s_sub_u32 s{sJ}, s{sSLOT}, 12")
    a(f"s_lshl_b32 s{sT2}, s{sX}, 20")
    a(f"s_lshl_b32 s{sT1}, s{sJ}, 8")
    a(f"s_add_u32 s{sT2}, s{sT2}, s{sT1}")
    a(f"s_add_u32 s{S_W}, s{P_WO}, s{sT2}")
    a(f"s_addc_u32 s{S_W+1}, s{P_WO+1}, 0")
    a(f"s_sub_u32 s{S_W+2}, {8*MB:#x}, s{sT2}")
    a(f"s_mov_b32 s{S_W+3}, 0x00020000")
    a(f"s_lshl_b32 s{sVM}, s{sX}, 2")
    a(f"s_add_u32 s{sVM}, s{sVM}, s{sWV}")
    a(f"s_lshl_b32 s{sVM}, s{sVM}, 13")
    a(f"s_add_u32 s{sVM}, s{sVM}, {PM_OFF + 64*8192:#x}")
    a(f"s_lshl_b32 s{sT0}, s{sX}, 2")
    a(f"s_lshr_b32 s{sT1}, s{sWV}, 1")
    a(f"s_add_u32 s{sT0}, s{sT0}, s{sT1}")
    a(f"s_lshl_b32 s{sVX}, s{sT0}, {XP_SH}")
    a(f"s_and_b32 s{sT1}, s{sWV}, 1")
    a(f"s_lshl_b32 s{sT1}, s{sT1}, 12")
    a(f"s_add_u32 s{sVX}, s{sVX}, s{sT1}")
    a(f"s_add_u32 s{sVX}, s{sVX}, {64<<XP_SH:#x}")
    a(f"s_lshl_b32 s{sPP}, s{sX}, 14")
    a(f"s_add_u32 s{sPP}, s{sPP}, {PP_OFF:#x}")
    a(f"s_lshl_b32 s{sPX}, s{sX}, 16")
    a(f"s_mul_i32 s{sT1}, s{sWV}, 3072")
    a(f"s_add_u32 s{sPX}, s{sPX}, s{sT1}")
    a(f"s_add_u32 s{sPX}, s{sPX}, {PX_OFF:#x}")
    a(f"s_lshl_b32 s{sT0}, s{sJ}, 2")
    a(f"s_add_u32 s{sT0}, s{sT0}, s{sWV}")
    a(f"s_and_b32 s{sT1}, s{sT0}, 15")
    a(f"s_lshl_b32 s{sT1}, s{sT1}, 9")
    a(f"s_lshr_b32 s{sT2}, s{sT0}, 4")
    a(f"s_lshl_b32 s{sT2}, s{sT2}, 14")
    a(f"s_add_u32 s{sT1}, s{sT1}, s{sT2}")
    a(f"s_add_u32 s{sPARTr}, s{sT1}, {PART_OFF:#x}")
    a(f"s_lshl_b32 s{sT2}, s{sX}, 15")
    a(f"s_add_u32 s{sPARTw}, s{sPARTr}, s{sT2}")
    a(f"s_lshl_b32 s{sT1}, s{sT0}, 9")
    a(f"s_lshl_b32 s{sT2}, s{sX}, 16")
    a(f"s_add_u32 s{sMEMw}, s{sT1}, s{sT2}")
    a(f"s_add_u32 s{sMEMw}, s{sMEMw}, {MEM_OFF:#x}")
    a(f"s_lshl_b32 s{sT1}, s{sT0}, 17")
    a(f"s_add_u32 s{sXPW}, s{sT1}, {XPART_OFF:#x}")
    a(f"s_lshl_b32 s{sT2}, s{sX}, 22")
    a(f"s_add_u32 s{sXPW}, s{sXPW}, s{sT2}")
    a(f"s_lshl_b32 s{sFL}, s{sT0}, 13")
    a(f"s_lshl_b32 s{sT1}, s{sX}, 2")
    a(f"s_add_u32 s{sFL}, s{sFL}, s{sT1}")
    a(f"s_add_u32 s{sFL}, s{sFL}, {FLG_OFF:#x}")
    prof = Prof(a, va)
    vW, vTR, t0, t1 = weight_addr_setup(a, va, 2048, sB, True)
    t2 = va.get(); vtmp = va.get()
    vL16 = va.get(); vPW = va.get(); vPF = va.get(); vMW = va.get(); vFL = va.get(); vZ = va.get()
    vSEN = va.get(4, 4)
    a(f"v_lshlrev_b32 v{vL16}, 4, v0")
    a(f"v_lshrrev_b32 v{t0}, 5, v0")
    a(f"v_and_b32 v{t1}, 15, v0")
    a(f"v_lshl_add_u32 v{t0}, v{t0}, 4, v{t1}")
    a(f"v_lshlrev_b32 v{t0}, 4, v{t0}")
    a(f"v_bfe_u32 v{t1}, v0, 4, 1")
    a(f"v_lshl_add_u32 v{vPW}, v{t1}, 13, v{t0}")
    a(f"s_lshl_b32 s{sT0}, s{sWV}, 10")
    a(f"s_add_u32 s{sT0}, s{sT0}, {PPL_}")
    a(f"v_add_u32 v{vPF}, s{sT0}, v{vL16}")
    a(f"s_lshl_b32 s{sT0}, s{sWV}, 11")
    a(f"s_add_u32 s{sT0}, s{sT0}, {VML}")
    a(f"v_add_u32 v{vMW}, s{sT0}, v{vL16}")
    for r in range(4):
        a(f"v_mov_b32 v{vSEN+r}, -1")
    a(f"v_mov_b32 v{vZ}, 0")
    a(f"v_lshlrev_b32 v{t0}, 7, v0")
    a(f"buffer_store_dword v{vSEN}, v{t0}, {WS}, s{sFL} offen sc1")
    a(f"v_min_u32 v{t0}, 1, v0")
    a(f"v_lshlrev_b32 v{vFL}, 28, v{t0}")
    for sl in range(4):
        a(f"s_add_u32 s{sT0}, s{sPARTw}, {sl*262144}")
        a(f"buffer_store_dwordx4 {vr(vSEN,4)}, v{vPW}, {WS}, s{sT0} offen sc1")
    PK = va.get(4, 4)
    vPR = va.get(); vME = va.get(); SEL = va.get(8, 4)
    a(f"v_lshrrev_b32 v{t0}, 4, v0")
    a(f"v_lshlrev_b32 v{t0}, 15, v{t0}")
    a(f"v_and_b32 v{t1}, 15, v0")
    a(f"v_lshl_add_u32 v{vPR}, v{t1}, 4, v{t0}")
    a(f"v_and_b32 v{t0}, 31, v0")
    a(f"v_lshlrev_b32 v{t0}, 4, v{t0}")
    a(f"v_lshrrev_b32 v{t1}, 5, v0")
    a(f"v_lshl_add_u32 v{vME}, v{t1}, 3, v{t0}")
    for sl in range(1, 4):
        a(f"s_add_u32 s{sT0}, s{sMEMw}, {sl*16384}")
        a(f"buffer_store_dwordx2 {vr(vSEN,2)}, v{vME}, {WS}, s{sT0} offen {loc}")
    a(f"v_and_b32 v{t0}, 7, v0")
    a(f"v_lshlrev_b32 v{t0}, 11, v{t0}")
    a(f"v_bfe_u32 v{t1}, v0, 4, 1")
    a(f"v_lshl_add_u32 v{t0}, v{t1}, 5, v{t0}")
    a(f"v_lshrrev_b32 v{t1}, 5, v0")
    a(f"v_lshl_add_u32 v{t0}, v{t1}, 4, v{t0}")
    a(f"v_bfe_u32 v{t1}, v0, 3, 1")
    a(f"v_lshl_add_u32 v{t0}, v{t1}, 2, v{t0}")
    a(f"s_lshl_b32 s{sT0}, s{sJ}, 2")
    a(f"s_add_u32 s{sT0}, s{sT0}, s{sWV}")
    a(f"s_lshl_b32 s{sT0}, s{sT0}, 6")
    a(f"buffer_load_dword v{PK}, v{t0}, {sr(S_AUX,4)}, s{sT0} offen")
    a(f"buffer_load_dword v{PK+1}, v{t0}, {sr(S_AUX,4)}, s{sT0} offen offset:8")
    a("s_waitcnt vmcnt(0)")
    a(f"v_min_u32 v{PK}, -2, v{PK}")
    a(f"v_min_u32 v{PK+1}, -2, v{PK+1}")
    a(f"buffer_store_dwordx2 {vr(PK,2)}, v{vME}, {WS}, s{sMEMw} offen {loc}")
    a("s_waitcnt vmcnt(0)")
    a("s_barrier")
    wave0_atomic_add(a, DBG_H1 + 32 * mode, "1", t0, t1)
    weight_dma(a, vW, 0, 0, 2048, sB)
    weight_dma(a, vW, 1, 1, 2048, sB)
    vIDX = va.get()
    idx_setup(a, vIDX, t0)
    a(f"v_and_b32 v{t0}, 15, v0")
    a(f"v_and_b32 v{t1}, 1, v0")
    a(f"v_lshlrev_b32 v{t1}, 4, v{t1}")
    a(f"v_mov_b32 v{t2}, 0x3f80")
    a(f"v_lshlrev_b32 v{t1}, v{t1}, v{t2}")
    a(f"v_lshrrev_b32 v{t0}, 1, v{t0}")
    for k in range(8):
        a(f"v_cmp_eq_u32 vcc, {k}, v{t0}")
        a("s_nop 1")
        a(f"v_cndmask_b32 v{SEL+k}, 0, v{t1}, vcc")

    PXR = va.get(48, 4)
    VM = PXR
    UA = va.get(32, 4)
    UX = va.get(32, 8); UN = va.get(16, 8); UM = va.get(16, 8)
    FR = va.get(24, 4)
    VO = va.get(8, 4); PPR = FR
    ACC = UA
    WT = PXR
    assert UA == PXR + 48
    a(f"v_and_b32 v{t0}, 2, v0")
    a(f"v_cmp_eq_u32 s[92:93], 0, v{t0}")
    a(f"v_cmp_ne_u32 s[94:95], 0, v{t0}")
    for c in range(2):
        a(f"s_waitcnt vmcnt({16 if c == 0 else 0})")
        a("s_barrier")
        for ks in range(8):
            for t in range(2):
                for q in range(2):
                    d = (ks >> 1) * 16 + t * 8 + (ks & 1) * 4 + 2 * q
                    a(f"ds_read_b64_tr_b16 {vr(WT+d,2)}, v{vTR[c][q]} offset:{ks*8192 + 8*t}")
        a("s_waitcnt lgkmcnt(0)")
        for t in range(2):
            a(f"s_mov_b64 vcc, s[{92+2*t}:{93+2*t}]")
            for kb in range(4):
                for r in range(8):
                    A = WT + kb * 16 + r; B = A + 8
                    if t == 0:
                        a(f"v_cndmask_b32_dpp v{vtmp}, v{B}, v{A}, vcc quad_perm:[0,1,0,1] row_mask:0xf bank_mask:0xf")
                    else:
                        a(f"v_cndmask_b32_dpp v{vtmp}, v{A}, v{B}, vcc quad_perm:[2,3,2,3] row_mask:0xf bank_mask:0xf")
                    a(f"v_accvgpr_write_b32 a{c*64 + kb*16 + 8*t + r}, v{vtmp}")
                    a("s_nop 0")
    a("s_barrier")
    a(f"s_lshl_b32 s{sT0}, s{sX}, 5")
    a(f"s_lshl_b32 s{sT1}, s{sJ}, 2")
    a(f"s_add_u32 s{sT0}, s{sT0}, s{sT1}")
    a(f"s_add_u32 s{sT0}, s{sT0}, s{sWV}")
    a(f"s_and_b32 s{sT1}, s{sT0}, 63")
    a(f"s_lshl_b32 s{sT1}, s{sT1}, 7")
    a(f"s_lshr_b32 s{sT0}, s{sT0}, 6")
    a(f"s_lshl_b32 s{sT0}, s{sT0}, 14")
    a(f"s_add_u32 s{sT0}, s{sT0}, s{sT1}")
    a(f"s_add_u32 s{sE}, s{sT0}, {PART_OFF + MB:#x}")
    a(f"s_add_u32 s{sF}, s{sE}, 8192")
    a(f"s_mov_b32 s{sC}, -1")
    a(f"s_mov_b32 s{sD}, -1")
    for rep in range(4):
        for k in range(2):
            a(f"buffer_store_dword v{vSEN}, v{vFL}, {WS}, s{sE+k} offen sc1")
            a("s_waitcnt vmcnt(0)")
            a("s_memtime s[94:95]")
            a("s_waitcnt lgkmcnt(0)")
            a(f"buffer_load_dword v{t0}, v{vFL}, {WS}, s{sE+k} offen sc1")
            a("s_waitcnt vmcnt(0)")
            a("s_memtime s[96:97]")
            a("s_waitcnt lgkmcnt(0)")
            a("s_sub_u32 s96, s96, s94")
            a(f"s_min_u32 s{sC+k}, s{sC+k}, s96")
    a(f"s_cmp_lt_u32 s{sD}, s{sC}")
    a(f"s_cselect_b32 s{sT0}, 8192, 0")
    a(f"s_add_u32 s{sPARTr}, s{sPARTr}, s{sT0}")
    handshake_wait(a, mode, t0, t1, 8)

    def vm_loads():
        return [f"buffer_load_dwordx4 {vr(VO+4*b,4)}, v{vL16}, {WS}, s{sA} offen offset:{1024*b} sc1" for b in range(2)]
    def vm_slots():
        a(f"s_and_b32 s{sT0}, s{sS}, 3")
        a(f"s_lshl_b32 s{sT0}, s{sT0}, 11")
        a(f"s_add_u32 s{sA}, s{sT0}, s{sVM}")
    def vx_setup():
        a(f"s_add_u32 s{sT0}, s{sS}, 1")
        a(f"s_and_b32 s{sT0}, s{sT0}, {XP_MASK}")
        a(f"s_lshl_b32 s{sT0}, s{sT0}, 13")
        a(f"s_add_u32 s{sE}, s{sT0}, s{sVX}")
        a(f"s_add_u32 s{sF}, s{sE}, {2<<XP_SH:#x}")
    def vx_one(pair, i):
        def f():
            a(f"s_lshl_b32 m0, s{sWV}, 12")
            if pair:
                a("s_add_u32 m0, m0, 16384")
            a("s_nop 0")
            a(f"buffer_load_dwordx4 v{vL16}, {WS}, s{sE+pair} offen offset:{1024*i} sc1 lds")
        return f
    def px_one(i):
        def f():
            a(f"s_mul_i32 m0, s{sWV}, 3072")
            a(f"s_add_u32 m0, m0, {PXL}")
            a("s_nop 0")
            a(f"buffer_load_dwordx4 v{vL16}, {WS}, s{sG} offen offset:{1024*i} sc1 lds")
        return f
    def ux_pair(pair, dst, dstride, extra={}):
        frs = [(hl, ks, rt) for hl in (2 * pair, 2 * pair + 1) for ks in range(4) for rt in range(2)]
        DEPTH = 4
        def rd(f):
            hl, ks, rt = frs[f]
            a(f"ds_read_b128 {vr(FR+4*(f%6),4)}, v{vL16} offset:{hl*8192 + rt*4096 + ks*1024}")
        def cvts(hl):
            base = UA + 16 * (hl & 1)
            out = []
            for t in range(2):
                for rt in range(2):
                    acc = base + 8 * rt + 4 * t
                    d = dst + dstride * t + 4 * (hl & 1) + 2 * rt
                    out.append(f"v_cvt_pk_bf16_f32 v{d}, v{acc}, v{acc+1}")
                    out.append(f"v_cvt_pk_bf16_f32 v{d+1}, v{acc+2}, v{acc+3}")
            return out
        for f in range(DEPTH):
            rd(f)
        pend = []
        for f in range(16):
            hl, ks, rt = frs[f]
            a(f"s_waitcnt lgkmcnt({min(DEPTH-1, 15-f)})")
            for t in range(2):
                acc = UA + 16 * (hl & 1) + 8 * rt + 4 * t
                c = "0" if ks == 0 else vr(acc, 4)
                a(f"v_mfma_f32_16x16x32_bf16 {vr(acc,4)}, {vr(FR+4*(f%6),4)}, {ar((2*hl+(ks>>1))*16+8*t+4*(ks&1),4)}, {c}")
            if f + DEPTH < 16:
                rd(f + DEPTH)
            for fn in extra.get(f, []):
                fn()
            if f == 11:
                pend = cvts(2 * pair)
            if pend:
                a(pend.pop(0)); a(pend.pop(0))
        a.nop(8)
        for l in cvts(2 * pair + 1):
            a(l)

    a(f"s_mov_b32 s{sS}, -1")
    vm_slots()
    poll(a, vm_loads(), range(VO, VO + 8), vtmp, sleep=4)
    a("s_barrier")
    vx_setup()
    for p in range(2):
        for i in range(4):
            vx_one(p, i)()
    a("s_waitcnt vmcnt(0)")
    a("s_barrier")
    ux_pair(0, UX, 16)
    ux_pair(1, UX + 8, 16)
    a(f"s_mov_b32 s{sS}, 0")
    LOOP = a.newlabel("or_loop")
    a.label(LOOP)
    for r in range(0, 32, 2):
        a(f"v_mov_b64 {vr(UA+r,2)}, 0")
    for r in range(0, 16, 2):
        a(f"v_mov_b64 {vr(PXR+32+r,2)}, -1")
    vm_slots()
    vx_setup()
    prof.stamp(0)
    a("s_waitcnt vmcnt(0)")
    poll2(a, vm_loads(), range(VO, VO + 8), vtmp, gap=2)
    prof.stamp(1)
    for b in range(2):
        a(f"ds_write_b128 v{vMW}, {vr(VO+4*b,4)} offset:{1024*b}")
    a(f"s_and_b32 s{sT0}, s{sS}, 3")
    a(f"s_lshl_b32 s{sA}, s{sT0}, 12")
    a(f"s_add_u32 s{sA}, s{sA}, s{sPP}")
    a(f"s_lshl_b32 s{sG}, s{sT0}, 14")
    a(f"s_add_u32 s{sG}, s{sG}, s{sPX}")
    a(f"s_lshl_b32 s{sC}, s{sT0}, 18")
    a(f"s_xor_b32 s{sD}, s{sC}, {2<<18:#x}")
    a(f"s_add_u32 s{sR0}, s{sC}, s{sPARTr}")
    a(f"s_add_u32 s{sR1}, s{sR0}, 131072")
    a(f"s_add_u32 s{sMp}, s{sS}, 1")
    a(f"s_and_b32 s{sMp}, s{sMp}, 3")
    a(f"s_lshl_b32 s{sMp}, s{sMp}, 14")
    a(f"s_xor_b32 s{sMr}, s{sMp}, {2<<14:#x}")
    a(f"s_add_u32 s{sMp}, s{sMp}, s{sMEMw}")
    a(f"s_add_u32 s{sMr}, s{sMr}, s{sMEMw}")
    a(f"s_add_u32 s{sC}, s{sC}, s{sPARTw}")
    a(f"s_add_u32 s{sD}, s{sD}, s{sPARTw}")
    a(f"s_min_u32 s{sT1}, s{sWV}, 2")
    a(f"s_lshl_b32 s{sT1}, s{sT1}, 10")
    a(f"s_add_u32 s{sBb}, s{sA}, s{sT1}")
    a("s_waitcnt lgkmcnt(0)")
    a("s_barrier")
    for k in range(8):
        a(f"ds_read_b128 {vr(VM+4*k,4)}, v{vL16} offset:{VML + 1024*k}")
    def um_cvt(hl):
        for t in range(2):
            acc = UA + 8 * hl + 4 * t
            a(f"v_cvt_pk_bf16_f32 v{UM+8*t+2*hl}, v{acc}, v{acc+1}")
            a(f"v_cvt_pk_bf16_f32 v{UM+8*t+2*hl+1}, v{acc+2}, v{acc+3}")
    for hl in range(4):
        for b in range(2):
            a(f"s_waitcnt lgkmcnt({7-2*hl-b})")
            for t in range(2):
                a(f"v_smfmac_f32_16x16x64_bf16 {vr(UA+8*hl+4*t,4)}, {vr(VM+8*hl+4*b,4)}, {ar((2*hl+b)*16+8*t,8)}, v{vIDX}")
        if Cfg.v01_early:
            vx_one(0, hl)()
    PPL = [f"buffer_load_dwordx4 {vr(PPR+4*k,4)}, v{vL16}, {WS}, s{sA} offen offset:{1024*k} sc1" for k in range(3)]
    for hl in range(4):
        um_cvt(hl)
    for r in range(0, 8, 2):
        a(f"v_mov_b64 {vr(ACC+r,2)}, 0")
    prof.stamp(2)
    if Cfg.pp_lds:
        poll2(a, [f"buffer_load_dwordx4 {vr(VO,4)}, v{vL16}, {WS}, s{sBb} offen sc1"], range(VO, VO + 4), vtmp, gap=2)
        a(f"ds_write_b128 v{vPF}, {vr(VO,4)}")
        a("s_waitcnt lgkmcnt(0)")
        a("s_barrier")
        for k in range(3):
            a(f"ds_read_b128 {vr(PPR+4*k,4)}, v{vL16} offset:{PPL_ + 1024*k}")
    else:
        pf = poll2 if Cfg.pipe_pp else poll
        pf(a, PPL, range(PPR, PPR + 12), vtmp)
    prof.stamp(3)
    for k in range(3):
        if Cfg.pp_lds:
            a(f"s_waitcnt lgkmcnt({2-k})")
        for t in range(2):
            b = UX + 16 * t + 8 * k if k < 2 else UM + 8 * t
            a(f"v_smfmac_f32_16x16x64_bf16 {vr(ACC+4*t,4)}, {vr(PPR+4*k,4)}, {vr(b,8)}, v{vIDX}")
    a.nop(8)
    for r in range(4):
        a(f"v_permlane32_swap_b32 v{ACC+r}, v{ACC+4+r}")
    for r in range(4):
        a(f"v_add_f32 v{ACC+r}, v{ACC+r}, v{ACC+4+r}")
    a(f"v_cvt_pk_bf16_f32 v{PK}, v{ACC}, v{ACC+1}")
    a(f"v_cvt_pk_bf16_f32 v{PK+1}, v{ACC+2}, v{ACC+3}")
    a(f"v_min_u32 v{PK+2}, -2, v{PK}")
    a(f"v_min_u32 v{PK}, -2, v{PK}")
    a(f"v_min_u32 v{PK+3}, -2, v{PK+1}")
    a(f"v_min_u32 v{PK+1}, -2, v{PK+1}")
    a(f"v_permlane16_swap_b32 v{PK}, v{PK+2}")
    a("s_nop 0")
    a(f"v_permlane16_swap_b32 v{PK+1}, v{PK+3}")
    a(f"buffer_store_dwordx4 {vr(PK,4)}, v{vPW}, {WS}, s{sC} offen sc1")
    prof.stamp(4)
    def resets():
        a(f"buffer_store_dwordx4 {vr(vSEN,4)}, v{vPW}, {WS}, s{sD} offen sc1")
        NOF = a.newlabel("or_nof")
        a(f"s_cmp_eq_u32 s{sS}, 0")
        a(f"s_cbranch_scc1 {NOF}")
        a(f"s_sub_u32 s{sT0}, s{sS}, 1")
        a(f"s_lshl_b32 s{sT0}, s{sT0}, 7")
        a(f"s_add_u32 s{sT0}, s{sT0}, s{sFL}")
        a(f"buffer_store_dword v{vZ}, v{vFL}, {WS}, s{sT0} offen sc1")
        a.label(NOF)
    if not Cfg.v01_early:
        for i in range(4):
            vx_one(0, i)()
        a("s_waitcnt vmcnt(0)")
    if not (Cfg.pp_lds and Cfg.v01_early):
        a("s_barrier")
    PR = PXR + 32
    def r_load(pg, hf):
        def f():
            a(f"buffer_load_dwordx4 {vr(PR+8*pg+4*hf,4)}, v{vPR}, {WS}, s{(sR0, sR1)[pg]} offen offset:{256*hf} sc1")
        return f
    ex = {}
    for i in range(4):
        ex.setdefault(i, []).append(vx_one(1, i))
        ex.setdefault(min(15, Cfg.r_at + i // 2), []).append(r_load(i >> 1, i & 1))
    for i in range(3):
        ex.setdefault(13 + i, []).append(px_one(i))
    ux_pair(0, UN, 8, ex)
    prof.stamp(5)
    RL = a.newlabel("rpoll"); RD = a.newlabel("rok"); RS = a.newlabel("rspin")
    a(f"s_mov_b32 s{sT0}, {Cfg.r_spin}")
    a(f"s_branch {RS}")
    a.label(RL)
    a("s_waitcnt vmcnt(0)")
    a.label(RS)
    for pg in range(2):
        maxtree(a, range(PR + 8 * pg, PR + 8 * pg + 8), vtmp)
        a(f"v_cmp_eq_u32 s[{sM0+2*pg}:{sM0+2*pg+1}], -1, v{vtmp}")
    a("s_nop 0")
    a(f"s_or_b64 vcc, s[{sM0}:{sM0+1}], s[{sM0+2}:{sM0+3}]")
    a(f"s_cbranch_scc0 {RD}")
    a(f"s_sub_u32 s{sT0}, s{sT0}, 1")
    a(f"s_cbranch_scc0 {RS}")
    a(f"s_mov_b32 s{sT0}, {Cfg.r_spin2}")
    for pg in range(2):
        SKP = a.newlabel("rskip")
        a(f"s_mov_b64 exec, s[{sM0+2*pg}:{sM0+2*pg+1}]")
        a(f"s_cbranch_execz {SKP}")
        for hf in range(2):
            r_load(pg, hf)()
        a.label(SKP)
    a("s_mov_b64 exec, -1")
    a(f"s_sub_u32 s{sBUD}, s{sBUD}, 1")
    a(f"s_cbranch_scc0 {RS if Cfg.r_spin2 else RL}")
    a("s_endpgm")
    a.label(RD)
    first = True
    for pg in range(2):
        for hf in range(2):
            c = "0" if first else vr(ACC, 4)
            first = False
            a(f"v_mfma_f32_16x16x32_bf16 {vr(ACC,4)}, {vr(PR+8*pg+4*hf,4)}, {vr(SEL+4*hf,4)}, {c}")
    a.nop(8)
    a(f"v_cvt_pk_bf16_f32 v{PK}, v{ACC}, v{ACC+1}")
    a(f"v_cvt_pk_bf16_f32 v{PK+1}, v{ACC+2}, v{ACC+3}")
    a(f"v_min_u32 v{PK}, -2, v{PK}")
    a(f"v_min_u32 v{PK+1}, -2, v{PK+1}")
    a(f"buffer_store_dwordx2 {vr(PK,2)}, v{vME}, {WS}, s{sMp} offen {loc}")
    prof.stamp(6)
    a("s_waitcnt vmcnt(1)")
    a(f"buffer_store_dwordx2 {vr(vSEN,2)}, v{vME}, {WS}, s{sMr} offen {loc}")
    RETRY = a.newlabel("or_pxretry"); PXOK = a.newlabel("or_pxok")
    a.label(RETRY)
    a("s_barrier")
    order = [(ks, rt) for ks in range(6) for rt in range(2)]
    for ks, rt in order:
        k = 6 * rt + ks
        a(f"ds_read_b128 {vr(PXR+4*k,4)}, v{vL16} offset:{PXL + 1024*k}")
    a(f"v_mov_b32 v{vtmp}, 0")
    for n, (ks, rt) in enumerate(order):
        k = 6 * rt + ks
        a(f"s_waitcnt lgkmcnt({11-n})")
        for t in range(2):
            u = UX + 16 * t + 4 * ks if ks < 4 else UM + 8 * t + 4 * (ks - 4)
            acc = ACC + 8 * rt + 4 * t
            c = "0" if ks == 0 else vr(acc, 4)
            a(f"v_mfma_f32_16x16x32_bf16 {vr(acc,4)}, {vr(u,4)}, {vr(PXR+4*k,4)}, {c}")
            a(f"v_max3_u32 v{vtmp}, v{vtmp}, v{PXR+4*k+2*t}, v{PXR+4*k+2*t+1}")
    a(f"v_cmp_eq_u32 vcc, -1, v{vtmp}")
    a(f"s_cbranch_vccz {PXOK}")
    a("s_barrier")
    for i in range(3):
        px_one(i)()
    a("s_waitcnt vmcnt(0)")
    a(f"s_sub_u32 s{sBUD}, s{sBUD}, 1")
    a(f"s_cbranch_scc0 {RETRY}")
    a("s_endpgm")
    a.label(PXOK)
    for t in range(2):
        for r in range(0, 8, 2):
            a(f"v_mov_b64 {vr(UX+16*t+r,2)}, {vr(UN+8*t+r,2)}")
    a(f"s_lshl_b32 s{sT1}, s{sS}, 11")
    a(f"s_add_u32 s{sT1}, s{sT1}, s{sXPW}")
    for rt in range(2):
        for t in range(2):
            acc = ACC + 8 * rt + 4 * t
            a(f"v_cvt_pk_bf16_f32 v{PXR+4*rt+t}, v{acc}, v{acc+1}")
            a(f"v_cvt_pk_bf16_f32 v{PXR+4*rt+2+t}, v{acc+2}, v{acc+3}")
        a(f"buffer_store_dwordx4 {vr(PXR+4*rt,4)}, v{vL16}, {WS}, s{sT1} offen offset:{1024*rt} sc1")
    resets()
    prof.stamp(7)
    TAIL = a.newlabel("or_tail")
    a(f"s_cmp_eq_u32 s{sS}, 63")
    a(f"s_cbranch_scc1 {TAIL}")
    ux_pair(1, UX + 8, 16)
    a(f"s_add_u32 s{sS}, s{sS}, 1")
    a(f"s_branch {LOOP}")
    a.label(TAIL)
    a("s_waitcnt vmcnt(0)")
    a(f"s_add_u32 s{sT0}, s{sFL}, {63<<7}")
    a(f"buffer_store_dword v{vZ}, v{vFL}, {WS}, s{sT0} offen sc1")
    prof.dump()
    a("s_endpgm")
```

```python
from gen import *

def role_proj(a, mode):
    loc = "" if mode == 0 else "sc1"
    va = VAlloc()
    sB, sPM, sMEM, sXP, sTY, sSL, sSL2 = 72, 74, 75, 76, 77, 78, 79
    sXM = 80
    STAGE = 131072
    a(f"s_and_b32 s{sT1}, s{sSLOT}, 3")
    a(f"s_lshr_b32 s{sTY}, s{sSLOT}, 2")
    a(f"s_lshl_b32 s{sT2}, s{sX}, 2")
    a(f"s_add_u32 s{sT1}, s{sT1}, s{sT2}")
    a(f"s_cmp_eq_u32 s{sTY}, 0")
    a(f"s_cselect_b64 s[{S_W}:{S_W+1}], s[{P_WQ}:{P_WQ+1}], s[{P_WK}:{P_WK+1}]")
    a(f"s_cmp_eq_u32 s{sTY}, 2")
    a(f"s_cselect_b64 s[{S_W}:{S_W+1}], s[{P_WV}:{P_WV+1}], s[{S_W}:{S_W+1}]")
    a(f"s_lshl_b32 s{sT2}, s{sT1}, 8")
    a(f"s_add_u32 s{S_W}, s{S_W}, s{sT2}")
    a(f"s_addc_u32 s{S_W+1}, s{S_W+1}, 0")
    a(f"s_sub_u32 s{S_W+2}, {8*MB:#x}, s{sT2}")
    a(f"s_mov_b32 s{S_W+3}, 0x00020000")
    a(f"s_lshl_b32 s{sT2}, s{sTY}, 5")
    a(f"s_add_u32 s{sT2}, s{sT2}, s{sT1}")
    a(f"s_lshl_b32 s{sPM}, s{sT2}, 13")
    a(f"s_add_u32 s{sPM}, s{sPM}, {PM_OFF:#x}")
    a(f"s_lshl_b32 s{sXP}, s{sT2}, {XP_SH}")
    a(f"s_lshl_b32 s{sT3}, s{sWV}, 10")
    a(f"s_add_u32 s{sXP}, s{sXP}, s{sT3}")
    a(f"s_lshl_b32 s{sMEM}, s{sX}, 16")
    a(f"s_lshl_b32 s{sT3}, s{sWV}, 12")
    a(f"s_add_u32 s{sMEM}, s{sMEM}, s{sT3}")
    a(f"s_add_u32 s{sMEM}, s{sMEM}, {MEM_OFF:#x}")
    prof = Prof(a, va)
    vW, vTR, t0, t1 = weight_addr_setup(a, va, 8192, sB, False)
    t2 = va.get(); t3 = va.get()
    vL16 = va.get()
    a(f"v_lshlrev_b32 v{vL16}, 4, v0")
    vPMo = va.get()
    a(f"s_cmp_eq_u32 s{sTY}, 2")
    a("s_cselect_b64 vcc, -1, 0")
    a(f"v_and_b32 v{t0}, 15, v0")
    a(f"v_lshrrev_b32 v{t1}, 5, v0")
    a(f"v_lshl_add_u32 v{t0}, v{t1}, 4, v{t0}")
    a(f"v_lshlrev_b32 v{t0}, 4, v{t0}")
    a(f"v_bfe_u32 v{t1}, v0, 4, 1")
    a(f"v_lshl_add_u32 v{t2}, v{t1}, 3, v{t0}")
    a(f"v_lshrrev_b32 v{t0}, 4, v0")
    a(f"v_lshlrev_b32 v{t0}, 7, v{t0}")
    a(f"v_and_b32 v{t1}, 7, v0")
    a(f"v_lshl_add_u32 v{t0}, v{t1}, 4, v{t0}")
    a(f"v_bfe_u32 v{t1}, v0, 3, 1")
    a(f"v_lshl_add_u32 v{t3}, v{t1}, 3, v{t0}")
    a(f"v_cndmask_b32 v{t2}, v{t3}, v{t2}, vcc")
    a(f"s_lshl_b32 s{sT3}, s{sWV}, 9")
    a(f"v_add_u32 v{vPMo}, s{sT3}, v{t2}")
    vSEN = va.get(2)
    a(f"v_mov_b32 v{vSEN}, -1")
    a(f"v_mov_b32 v{vSEN+1}, -1")
    for sl in range(4):
        a(f"s_add_u32 s{sT0}, s{sPM}, {sl*2048}")
        a(f"buffer_store_dwordx2 {vr(vSEN,2)}, v{vPMo}, {WS}, s{sT0} offen {loc}")
    a("s_waitcnt vmcnt(0)")
    a("s_barrier")
    wave0_atomic_add(a, DBG_H1 + 32 * mode, "1", t0, t1)
    weight_dma(a, vW, 0, 0, 8192, sB)
    weight_dma(a, vW, 1, 1, 8192, sB)
    vXD = va.get()
    a(f"v_lshrrev_b32 v{t0}, 3, v0")
    a(f"v_lshrrev_b32 v{t1}, 4, v0")
    a(f"s_and_b32 s{sT3}, s{sWV}, 1")
    a(f"s_lshl_b32 s{sT3}, s{sT3}, 2")
    a(f"v_add_u32 v{t1}, s{sT3}, v{t1}")
    a(f"v_and_b32 v{t2}, 7, v0")
    a(f"v_xor_b32 v{t1}, v{t1}, v{t2}")
    a(f"v_lshlrev_b32 v{t1}, 4, v{t1}")
    a(f"s_lshl_b32 s{sT3}, s{sWV}, 3")
    a(f"v_add_u32 v{t0}, s{sT3}, v{t0}")
    a(f"v_lshl_add_u32 v{vXD}, v{t0}, 11, v{t1}")
    vXR = va.get(8); vST = va.get(4)
    a(f"v_bfe_u32 v{t0}, v0, 3, 1")
    a(f"v_lshlrev_b32 v{t0}, 10, v{t0}")
    a(f"v_and_b32 v{t1}, 7, v0")
    a(f"v_lshl_add_u32 v{t0}, v{t1}, 7, v{t0}")
    a(f"v_bfe_u32 v{t1}, v0, 1, 3")
    a(f"v_lshrrev_b32 v{t2}, 4, v0")
    a(f"v_xor_b32 v{t1}, v{t1}, v{t2}")
    a(f"v_lshl_add_u32 v{t0}, v{t1}, 4, v{t0}")
    for G in range(4):
        a(f"s_add_u32 s{sT3}, s{sWV}, {G}")
        a(f"s_and_b32 s{sT3}, s{sT3}, 3")
        a(f"s_lshl_b32 s{sT4}, s{sT3}, 14")
        a(f"v_add_u32 v{vXR+2*G}, s{sT4}, v{t0}")
        a(f"v_xor_b32 v{vXR+2*G+1}, 64, v{vXR+2*G}")
        a(f"s_lshl_b32 s{sT4}, s{sT3}, 12")
        a(f"s_add_u32 s{sT4}, s{sT4}, {STAGE}")
        a(f"v_add_u32 v{vST+G}, s{sT4}, v{vL16}")
    vIDX = va.get()
    idx_setup(a, vIDX, t0)
    SEL = va.get(4, 4)
    a(f"v_and_b32 v{t1}, 1, v0")
    a(f"v_lshlrev_b32 v{t1}, 4, v{t1}")
    a(f"v_mov_b32 v{t2}, 0x3f80")
    a(f"v_lshlrev_b32 v{t1}, v{t1}, v{t2}")
    a(f"v_bfe_u32 v{t0}, v0, 3, 1")
    a(f"v_bfe_u32 v{t2}, v0, 1, 1")
    a(f"v_lshl_add_u32 v{t0}, v{t0}, 1, v{t2}")
    a(f"v_bfe_u32 v{t2}, v0, 4, 1")
    a(f"v_bfe_u32 v{t3}, v0, 2, 1")
    a(f"v_xor_b32 v{t2}, v{t2}, v{t3}")
    a(f"v_lshl_add_u32 v{t0}, v{t2}, 2, v{t0}")
    for k in range(4):
        a(f"v_cmp_eq_u32 vcc, {k}, v{t0}")
        a("s_nop 1")
        a(f"v_cndmask_b32 v{SEL+k}, 0, v{t1}, vcc")

    def x_dma_one(kb):
        a(f"s_add_u32 m0, s{sXM}, {kb*(4096-128)}")
        a("s_nop 0")
        a(f"buffer_load_dwordx4 v{vXD}, {XS}, s{sXM+1} offen offset:{kb*128} lds")

    for c in range(4):
        a(f"s_waitcnt vmcnt({16})")
        a("s_barrier")
        a(f"s_sub_u32 s{sT3}, {c+4}, s{sWV}")
        a(f"s_and_b32 s{sT3}, s{sT3}, 3")
        done = a.newlabel("wl_done")
        for G in range(4):
            nxt = a.newlabel("wl_next")
            if G < 3:
                a(f"s_cmp_eq_u32 s{sT3}, {G}")
                a(f"s_cbranch_scc0 {nxt}")
            weight_tr(a, vTR[c & 1], G)
            if G < 3:
                a(f"s_branch {done}")
                a.label(nxt)
        a.label(done)
        a("s_barrier")
        if c < 2:
            weight_dma(a, vW, c + 2, c & 1, 8192, sB)
        elif c == 2:
            a(f"s_lshl_b32 s{sXM}, s{sWV}, 10")
            a(f"s_mov_b32 s{sXM+1}, 0")
            for kb in range(16):
                x_dma_one(kb)
    M = va.get(16, 4); M2 = va.get(48, 4)
    ACC = va.get(16, 4); FR = va.get(32, 4); OUTR = va.get(8, 4); PK = va.get(4, 4); vtmp = va.get()
    a(f"s_mov_b32 s{sS}, -2")
    LOOP = a.newlabel("proj_loop"); CRIT = a.newlabel("proj_crit"); XPASS = a.newlabel("proj_x"); END = a.newlabel("proj_end")
    a.label(LOOP)
    a(f"s_cmp_ge_i32 s{sS}, 0")
    a(f"s_cbranch_scc1 {CRIT}")
    a("s_waitcnt vmcnt(0)")
    a("s_barrier")
    a(f"s_cmp_eq_i32 s{sS}, -2")
    a(f"s_cbranch_scc1 {XPASS}")
    handshake_wait(a, mode, t0, t1, 8)
    a(f"v_mov_b32 v{PK}, 0")
    a(f"v_mov_b32 v{PK+1}, 0")
    a(f"s_add_u32 s{sT0}, s{sPM}, {3*2048}")
    a(f"buffer_store_dwordx2 {vr(PK,2)}, v{vPMo}, {WS}, s{sT0} offen {loc}")
    a(f"s_branch {XPASS}")
    a.label(CRIT)
    a(f"s_and_b32 s{sSL}, s{sS}, 3")
    a(f"s_lshl_b32 s{sT1}, s{sSL}, 14")
    a(f"s_add_u32 s{sT1}, s{sT1}, s{sMEM}")
    a(f"s_lshl_b32 s{sSL2}, s{sSL}, 11")
    a(f"s_xor_b32 s{sSL}, s{sSL2}, 4096")
    a(f"s_add_u32 s{sSL2}, s{sSL2}, s{sPM}")
    a(f"s_add_u32 s{sSL}, s{sSL}, s{sPM}")
    for r in range(8):
        a(f"v_mov_b32 v{ACC+r}, 0")
    prof.stamp(0)
    pf = poll2 if Cfg.pipe_mem else poll
    pf(a, [f"buffer_load_dwordx4 {vr(M+4*i,4)}, v{vL16}, {WS}, s{sT1} offen offset:{1024*i} sc1" for i in range(4)],
       range(M, M + 16), vtmp)
    prof.stamp(1)
    for i in range(4):
        a(f"ds_write_b128 v{vST}, {vr(M+4*i,4)} offset:{1024*i}")
    def sm(frag, kbslot):
        for t in range(2):
            a(f"v_smfmac_f32_16x16x64_bf16 {vr(ACC+4*t,4)}, {vr(frag,4)}, {ar(kbslot*16+8*t,8)}, v{vIDX}")
    sm(M, 0)
    sm(M + 4, 1)
    a("s_waitcnt lgkmcnt(0)")
    a("s_barrier")
    for G in range(1, 4):
        for i in range(4):
            a(f"ds_read_b128 {vr(M2+16*(G-1)+4*i,4)}, v{vST+G} offset:{1024*i}")
        if G < 3:
            sm(M + 4 * (G + 1), G + 1)
    for n in range(12):
        a(f"s_waitcnt lgkmcnt({11-n})")
        sm(M2 + 4 * n, 4 + n)
    a.nop(7)
    for t in range(2):
        a(f"v_cvt_pk_bf16_f32 v{PK+2*t}, v{ACC+4*t}, v{ACC+4*t+1}")
        a(f"v_cvt_pk_bf16_f32 v{PK+2*t+1}, v{ACC+4*t+2}, v{ACC+4*t+3}")
    a.nop(2)
    a(f"v_mfma_f32_16x16x32_bf16 {vr(ACC+8,4)}, {vr(PK,4)}, {vr(SEL,4)}, 0")
    a.nop(8)
    a(f"v_cvt_pk_bf16_f32 v{PK}, v{ACC+8}, v{ACC+9}")
    a(f"v_cvt_pk_bf16_f32 v{PK+1}, v{ACC+10}, v{ACC+11}")
    a(f"v_min_u32 v{PK}, -2, v{PK}")
    a(f"v_min_u32 v{PK+1}, -2, v{PK+1}")
    a(f"buffer_store_dwordx2 {vr(PK,2)}, v{vPMo}, {WS}, s{sSL2} offen {loc}")
    a(f"buffer_store_dwordx2 {vr(vSEN,2)}, v{vPMo}, {WS}, s{sSL} offen {loc}")
    prof.stamp(2)
    a(f"s_cmp_ge_i32 s{sS}, 62")
    a(f"s_cbranch_scc1 {END}")
    a.label(XPASS)
    a(f"s_add_u32 s{sT0}, s{sS}, 3")
    a(f"s_min_u32 s{sT1}, s{sT0}, 63")
    a(f"s_lshl_b32 s{sXM+1}, s{sT1}, 16")
    a(f"s_and_b32 s{sT0}, s{sT0}, 1")
    a(f"s_lshl_b32 s{sT0}, s{sT0}, 16")
    a(f"s_lshl_b32 s{sXM}, s{sWV}, 10")
    a(f"s_add_u32 s{sXM}, s{sXM}, s{sT0}")
    DEPTH = 6
    frs = [(ks, rt) for ks in range(32) for rt in range(2)]
    def rd(f):
        ks, rt = frs[f]
        G = ks >> 3
        a(f"ds_read_b128 {vr(FR+4*(f%8),4)}, v{vXR+2*G+(ks&1)} offset:{((ks>>1)&3)*4096 + rt*2048}")
    for f in range(DEPTH):
        rd(f)
    for f in range(64):
        ks, rt = frs[f]
        a(f"s_waitcnt lgkmcnt({min(DEPTH-1, 63-f)})")
        for t in range(2):
            acc = ACC + 8 * rt + 4 * t
            c = "0" if ks == 0 else vr(acc, 4)
            a(f"v_mfma_f32_16x16x32_bf16 {vr(acc,4)}, {ar((ks>>1)*16+8*t+4*(ks&1),4)}, {vr(FR+4*(f%8),4)}, {c}")
        if f + DEPTH < 64:
            rd(f + DEPTH)
        if f % 3 == 1 and f // 3 < 16:
            x_dma_one(f // 3)
    for k in range(8):
        a(f"v_xor_b32 v{vXR+k}, 0x10000, v{vXR+k}")
    a(f"s_add_u32 s{sT0}, s{sS}, 2")
    a(f"s_and_b32 s{sT0}, s{sT0}, {XP_MASK}")
    a(f"s_lshl_b32 s{sT0}, s{sT0}, 13")
    a(f"s_add_u32 s{sT0}, s{sT0}, s{sXP}")
    a(f"s_add_u32 s{sT1}, s{sT0}, 4096")
    for rt in range(2):
        for t in range(2):
            acc = ACC + 8 * rt + 4 * t
            a(f"v_cvt_pk_bf16_f32 v{OUTR+4*rt+2*t}, v{acc}, v{acc+1}")
            a(f"v_cvt_pk_bf16_f32 v{OUTR+4*rt+2*t+1}, v{acc+2}, v{acc+3}")
    NS = a.newlabel("proj_noswap")
    a(f"s_cmp_eq_u32 s{sTY}, 2")
    a(f"s_cbranch_scc0 {NS}")
    a(f"v_swap_b32 v{OUTR+1}, v{OUTR+2}")
    a(f"v_swap_b32 v{OUTR+5}, v{OUTR+6}")
    a.label(NS)
    for rt in range(2):
        a(f"buffer_store_dwordx4 {vr(OUTR+4*rt,4)}, v{vL16}, {WS}, s{sT0+rt} offen {loc}")
    prof.stamp(3)
    a.label(END)
    a("s_waitcnt vmcnt(0)")
    a(f"s_add_u32 s{sS}, s{sS}, 1")
    a(f"s_cmp_lt_i32 s{sS}, 64")
    a(f"s_cbranch_scc1 {LOOP}")
    prof.dump()
    a("s_endpgm")
```

```python
from gen import *

SCL = 128 ** -0.5 * math.log2(math.e)

def role_t(a, mode):
    loc = "" if mode == 0 else "sc1"
    va = VAlloc()
    sQM, sKM, sQX, sKX, sPO, sHL, sA, sBq, sC, sD, sSC = 72, 73, 74, 75, 76, 77, 78, 79, 80, 81, 82
    a(f"s_sub_u32 s{sHL}, s{sSLOT}, 20")
    a(f"s_lshl_b32 s{sT2}, s{sX}, 2")
    a(f"s_add_u32 s{sT1}, s{sHL}, s{sT2}")
    a(f"s_lshl_b32 s{sQM}, s{sT1}, 13")
    a(f"s_add_u32 s{sQM}, s{sQM}, {PM_OFF:#x}")
    a(f"s_add_u32 s{sKM}, s{sQM}, {32*8192}")
    a(f"s_lshl_b32 s{sQX}, s{sT1}, {XP_SH}")
    a(f"s_add_u32 s{sKX}, s{sQX}, {32<<XP_SH:#x}")
    a(f"s_mov_b32 s{sSC}, {f32bits(SCL):#x}")
    prof = Prof(a, va)
    t0 = va.get(); t1 = va.get(); t2 = va.get(); vtmp = va.get()
    vL16 = va.get(); vMO = va.get(); vO1 = va.get(); vO2 = va.get()
    vSEN = va.get(4, 4)
    KX = va.get(32, 4); Q = va.get(16, 4); KM = va.get(16, 4); D = va.get(12, 4); E = va.get(12, 4); PK = va.get(6, 4)
    vm = va.get(); vs = va.get(); vs2 = va.get(); vNEG = va.get(); vLIM = va.get()
    a(f"v_lshlrev_b32 v{vL16}, 4, v0")
    a(f"v_lshrrev_b32 v{t0}, 4, v0")
    a(f"v_lshlrev_b32 v{t0}, 7, v{t0}")
    a(f"v_and_b32 v{t1}, 7, v0")
    a(f"v_lshl_add_u32 v{vMO}, v{t1}, 4, v{t0}")
    for r in range(4):
        a(f"v_mov_b32 v{vSEN+r}, -1")
    XW = a.newlabel("t_xw"); JOIN = a.newlabel("t_join"); XW2 = a.newlabel("t_xw2")
    a(f"s_cmp_eq_u32 s{sWV}, 0")
    a(f"s_cbranch_scc0 {XW}")
    a(f"v_bfe_u32 v{t0}, v0, 3, 1")
    a(f"v_lshl_add_u32 v{vMO}, v{t0}, 18, v{vMO}")
    a(f"v_and_b32 v{t0}, 15, v0")
    a(f"v_lshlrev_b32 v{t0}, 4, v{t0}")
    a(f"v_bfe_u32 v{t1}, v0, 4, 1")
    a(f"v_lshl_add_u32 v{t0}, v{t1}, 3, v{t0}")
    a(f"v_lshrrev_b32 v{t1}, 5, v0")
    a(f"v_lshl_add_u32 v{t2}, v{t1}, 8, v{t0}")
    a(f"s_lshl_b32 s{sT0}, s{sHL}, 9")
    a(f"v_add_u32 v{vO1}, s{sT0}, v{t2}")
    a(f"s_lshr_b32 s{sT0}, s{sHL}, 1")
    a(f"s_lshl_b32 s{sT0}, s{sT0}, 9")
    a(f"s_and_b32 s{sT1}, s{sHL}, 1")
    a(f"s_lshl_b32 s{sT1}, s{sT1}, 2")
    a(f"s_add_u32 s{sT0}, s{sT0}, s{sT1}")
    a(f"s_add_u32 s{sT0}, s{sT0}, 2048")
    a(f"v_add_u32 v{vO2}, s{sT0}, v{t0}")
    a(f"v_xor_b32 v{t1}, 1, v{t1}")
    a(f"v_lshl_add_u32 v{vO2}, v{t1}, 28, v{vO2}")
    a(f"v_mov_b32 v{vNEG}, 0xff800000")
    a(f"s_lshl_b32 s{sPO}, s{sX}, 14")
    a(f"s_add_u32 s{sPO}, s{sPO}, {PP_OFF:#x}")
    def pp_store(r2, r1, so):
        a(f"buffer_store_dwordx2 {vr(r2,2)}, v{vO1}, {WS}, s{so} offen {loc}")
        a(f"buffer_store_dword v{r1}, v{vO2}, {WS}, s{so} offen {loc}")
        a(f"buffer_store_dword v{r1}, v{vO2}, {WS}, s{so} offen offset:256 {loc}")
    for sl in range(4):
        a(f"s_add_u32 s{sT0}, s{sPO}, {sl*4096}")
        pp_store(vSEN, vSEN, sT0)
    a(f"s_branch {JOIN}")
    a.label(XW)
    a(f"s_sub_u32 s{sT2}, s{sWV}, 1")
    a(f"s_and_b32 s{sT2}, s{sT2}, 1")
    a(f"s_mul_i32 s{sT3}, s{sT2}, 6144")
    a(f"s_lshl_b32 s{sT0}, s{sHL}, 10")
    a(f"s_add_u32 s{sT0}, s{sT0}, s{sT3}")
    a(f"v_add_u32 v{vO1}, s{sT0}, v{vL16}")
    a(f"s_lshr_b32 s{sT0}, s{sHL}, 1")
    a(f"s_lshl_b32 s{sT0}, s{sT0}, 10")
    a(f"s_and_b32 s{sT1}, s{sHL}, 1")
    a(f"s_lshl_b32 s{sT1}, s{sT1}, 3")
    a(f"s_add_u32 s{sT0}, s{sT0}, s{sT1}")
    a(f"s_add_u32 s{sT0}, s{sT0}, s{sT3}")
    a(f"s_add_u32 s{sT0}, s{sT0}, 4096")
    a(f"v_add_u32 v{vO2}, s{sT0}, v{vL16}")
    a(f"s_lshl_b32 s{sT0}, s{sT2}, 4")
    a(f"v_and_b32 v{t0}, 15, v0")
    a(f"v_add_u32 v{t0}, s{sT0}, v{t0}")
    a(f"v_lshrrev_b32 v{t1}, 4, v0")
    a(f"v_lshlrev_b32 v{t1}, 2, v{t1}")
    a(f"v_sub_u32 v{vLIM}, v{t0}, v{t1}")
    a(f"v_mov_b32 v{vNEG}, {f32bits(-1e9 / (128 ** -0.5)):#x}")
    a(f"s_lshl_b32 s{sT2}, s{sT2}, 12")
    a(f"s_add_u32 s{sQX}, s{sQX}, s{sT2}")
    a(f"s_lshl_b32 s{sPO}, s{sX}, 16")
    a(f"s_add_u32 s{sPO}, s{sPO}, {PX_OFF:#x}")
    a(f"s_cmp_eq_u32 s{sWV}, 3")
    a(f"s_cbranch_scc1 {JOIN}")
    for sl in range(4):
        a(f"s_add_u32 s{sT0}, s{sPO}, {sl*16384}")
        a(f"buffer_store_dwordx4 {vr(vSEN,4)}, v{vO1}, {WS}, s{sT0} offen {loc}")
        a(f"buffer_store_dwordx2 {vr(vSEN,2)}, v{vO2}, {WS}, s{sT0} offen {loc}")
    a.label(JOIN)
    a("s_waitcnt vmcnt(0)")
    a("s_barrier")
    wave0_atomic_add(a, DBG_H1 + 32 * mode, "1", t0, t1)
    a("s_sleep 100")
    handshake_wait(a, mode, t0, t1, 40)
    GO = a.newlabel("t_go")
    a(f"s_cmp_eq_u32 s{sWV}, 3")
    a(f"s_cbranch_scc0 {GO}")
    a("s_endpgm")
    a.label(GO)

    def ld_m(dst, sbase):
        return [f"buffer_load_dwordx4 {vr(dst+4*ks,4)}, v{vMO}, {WS}, s{sbase} offen offset:{512*ks} sc1" for ks in range(4)]
    def prefetch(seg_add, with_q):
        a(f"s_add_u32 s{sT0}, s{sS}, {seg_add}")
        a(f"s_and_b32 s{sT0}, s{sT0}, {XP_MASK}")
        a(f"s_lshl_b32 s{sT0}, s{sT0}, 13")
        a(f"s_add_u32 s{sT1}, s{sT0}, s{sKX}")
        a(f"s_add_u32 s{sT2}, s{sT1}, 4096")
        for t in range(2):
            for ks in range(4):
                a(f"buffer_load_dwordx4 {vr(KX+16*t+4*ks,4)}, v{vL16}, {WS}, s{sT1+t} offen offset:{1024*ks} sc1")
        if with_q:
            a(f"s_add_u32 s{sT0}, s{sT0}, s{sQX}")
            for ks in range(4):
                a(f"buffer_load_dwordx4 {vr(Q+4*ks,4)}, v{vL16}, {WS}, s{sT0} offen offset:{1024*ks} sc1")
    def scores(km):
        for ks in range(4):
            for t in range(3):
                src = KX + 16 * t + 4 * ks if t < 2 else km + 4 * ks
                c = "0" if ks == 0 else vr(D + 4 * t, 4)
                a(f"v_mfma_f32_16x16x32_bf16 {vr(D+4*t,4)}, {vr(src,4)}, {vr(Q+4*ks,4)}, {c}")
    def slots(stride_log):
        a(f"s_and_b32 s{sT0}, s{sS}, 3")
        a(f"s_lshl_b32 s{sT1}, s{sT0}, 11")
        a(f"s_add_u32 s{sA}, s{sT1}, s{sQM}")
        a(f"s_add_u32 s{sBq}, s{sT1}, s{sKM}")
        a(f"s_lshl_b32 s{sC}, s{sT0}, {stride_log}")
        a(f"s_xor_b32 s{sD}, s{sC}, {2 << stride_log}")
        a(f"s_add_u32 s{sC}, s{sC}, s{sPO}")
        a(f"s_add_u32 s{sD}, s{sD}, s{sPO}")
    def softmax(vals, nx):
        n = len(vals)
        a(f"v_max3_f32 v{vm}, v{vals[0]}, v{vals[1]}, v{vals[2]}")
        i = 3
        while i < n:
            if i + 1 < n:
                a(f"v_max3_f32 v{vm}, v{vm}, v{vals[i]}, v{vals[i+1]}"); i += 2
            else:
                a(f"v_max_f32 v{vm}, v{vm}, v{vals[i]}"); i += 1
        if n == 6:
            a("s_nop 1")
            a(f"v_max_f32_dpp v{vm}, v{vm}, v{vm} row_ror:8 row_mask:0xf bank_mask:0xf")
        xlane_gg(a, "v_max_f32", vm, t0)
        a(f"v_mul_f32 v{vm}, s{sSC}, v{vm}")
        for i in range(n):
            a(f"v_fma_f32 v{E+i}, v{vals[i]}, s{sSC}, -v{vm}")
        for i in range(n):
            a(f"v_exp_f32 v{E+i}, v{E+i}")
        a(f"v_add_f32 v{vs}, v{E}, v{E+1}")
        for i in range(2, nx):
            a(f"v_add_f32 v{vs}, v{vs}, v{E+i}")
        if nx < n:
            a(f"v_add_f32 v{vs2}, v{E+nx}, v{E+nx+1}")
            for i in range(nx + 2, n):
                a(f"v_add_f32 v{vs2}, v{vs2}, v{E+i}")
            a(f"v_fma_f32 v{vs}, v{vs2}, 0.5, v{vs}")
        if n == 6:
            a("s_nop 1")
            a(f"v_add_f32_dpp v{vs}, v{vs}, v{vs} row_ror:8 row_mask:0xf bank_mask:0xf")
        xlane_gg(a, "v_add_f32", vs, t0)
        a(f"v_rcp_f32 v{vs}, v{vs}")
        a("s_nop 0")
        for i in range(n):
            a(f"v_mul_f32 v{E+i}, v{E+i}, v{vs}")
        for i in range(n // 2):
            a(f"v_cvt_pk_bf16_f32 v{PK+i}, v{E+2*i}, v{E+2*i+1}")
        for i in range(n // 2):
            a(f"v_min_u32 v{PK+i}, -2, v{PK+i}")

    a(f"s_mov_b32 s{sS}, -1")
    a(f"s_cmp_eq_u32 s{sWV}, 0")
    a(f"s_cbranch_scc0 {XW2}")
    a(f"s_add_u32 s{sA}, s{sQM}, {3*2048}")
    poll(a, ld_m(Q, sA), range(Q, Q + 16), vtmp, sleep=4)
    a("s_barrier")
    prefetch(1, False)
    a(f"s_mov_b32 s{sS}, 0")
    L0 = a.newlabel("t0_loop")
    a.label(L0)
    slots(12)
    prof.stamp(0)
    a("s_waitcnt vmcnt(0)")
    poll2(a, ld_m(Q, sA), range(Q, Q + 16), vtmp, gap=2)
    prof.stamp(1)
    scores(Q)
    a("s_barrier")
    a.nop(5)
    def ror(t, r, rm):
        a(f"v_mov_b32_dpp v{D+4*t+r}, v{D+4*t+2+r} row_ror:8 row_mask:{rm} bank_mask:0xc")
    def neg(r):
        a(f"v_mov_b32_dpp v{D+8+r}, v{vNEG} quad_perm:[0,1,2,3] row_mask:0x3 bank_mask:0xf")
    ror(0, 0, "0xf"); ror(0, 1, "0xf"); ror(1, 0, "0xf"); neg(0); neg(1); ror(1, 1, "0xf"); ror(2, 0, "0xc"); ror(2, 1, "0xc")
    softmax([D, D + 1, D + 4, D + 5, D + 8, D + 9], 6)
    pp_store(PK, PK + 2, sC)
    prof.stamp(2)
    pp_store(vSEN, vSEN, sD)
    SK = a.newlabel("t0_skip")
    a(f"s_cmp_ge_i32 s{sS}, 63")
    a(f"s_cbranch_scc1 {SK}")
    prefetch(1, False)
    a.label(SK)
    a(f"s_add_u32 s{sS}, s{sS}, 1")
    a(f"s_cmp_lt_i32 s{sS}, 64")
    a(f"s_cbranch_scc1 {L0}")
    prof.dump()
    a("s_endpgm")
    a.label(XW2)
    a("s_barrier")
    prefetch(1, True)
    a(f"s_mov_b32 s{sS}, 0")
    L1 = a.newlabel("tx_loop")
    a.label(L1)
    slots(14)
    prof.stamp(0)
    a("s_barrier")
    for l in ld_m(KM, sBq):
        a(l)
    a("s_waitcnt vmcnt(0)")
    prof.stamp(1)
    scores(KM)
    a.nop(6)
    for t in range(2):
        for r in range(4):
            a(f"v_cmp_le_i32 vcc, {16*t+r}, v{vLIM}")
            a("s_nop 1")
            a(f"v_cndmask_b32 v{D+4*t+r}, v{vNEG}, v{D+4*t+r}, vcc")
    softmax(list(range(D, D + 12)), 8)
    a(f"buffer_store_dwordx4 {vr(PK,4)}, v{vO1}, {WS}, s{sC} offen {loc}")
    a(f"buffer_store_dwordx2 {vr(PK+4,2)}, v{vO2}, {WS}, s{sC} offen {loc}")
    prof.stamp(2)
    a(f"buffer_store_dwordx4 {vr(vSEN,4)}, v{vO1}, {WS}, s{sD} offen {loc}")
    a(f"buffer_store_dwordx2 {vr(vSEN,2)}, v{vO2}, {WS}, s{sD} offen {loc}")
    SK = a.newlabel("tx_skip")
    a(f"s_cmp_ge_i32 s{sS}, 63")
    a(f"s_cbranch_scc1 {SK}")
    prefetch(1, True)
    a.label(SK)
    a(f"s_add_u32 s{sS}, s{sS}, 1")
    a(f"s_cmp_lt_i32 s{sS}, 64")
    a(f"s_cbranch_scc1 {L1}")
    prof.dump()
    a("s_endpgm")
```

```python
import sys, os, struct, math

KNAME = "gated_mix__memory_aug_recurrent_mem_tr__spectral_gfnet__prompt_kernel"
MB = 1 << 20

XP_OFF    = 0
XP_SH, XP_MASK = 15, 3
XPART_OFF = 48 * MB
FLG_OFF   = 80 * MB
RT_OFF    = 84 * MB
HT_OFF    = 88 * MB
Z_OFF     = 92 * MB
GATE_OFF  = 96 * MB
MEM_OFF   = 97 * MB
PM_OFF    = 98 * MB
PP_OFF    = 99 * MB
PX_OFF    = 100 * MB
PART_OFF  = 102 * MB
PROF_OFF  = 104 * MB
WS_HALF   = 128 * MB

LDS_BYTES = 163840

def f32bits(x):
    return struct.unpack("<I", struct.pack("<f", x))[0]

class Asm:
    def __init__(self):
        self.lines = []
        self.uid = 0
    def __call__(self, s):
        for ln in s.split("\n"):
            ln = ln.strip()
            if ln:
                self.lines.append("    " + ln)
    def label(self, n):
        self.lines.append(n + ":")
    def newlabel(self, p):
        self.uid += 1
        return f"L_{p}_{self.uid}"
    def nop(self, n):
        while n > 0:
            k = min(n, 16)
            self(f"s_nop {k-1}")
            n -= k
    def text(self):
        return "\n".join(self.lines) + "\n"

def vr(b, n=1):
    return f"v{b}" if n == 1 else f"v[{b}:{b+n-1}]"
def ar(b, n=1):
    return f"a{b}" if n == 1 else f"a[{b}:{b+n-1}]"
def sr(b, n=1):
    return f"s{b}" if n == 1 else f"s[{b}:{b+n-1}]"

S_WS, S_X, S_W, S_DBG, S_OUT, S_WR, S_WI, S_AUX = 4, 8, 12, 16, 20, 24, 28, 32
P_X, P_MEM0, P_WQ, P_WK, P_WV, P_WO, P_WR, P_WI, P_GATE, P_OUT, P_DBG, P_WS = range(36, 60, 2)
sX, sSLOT, sWV, sBUD, sS = 60, 61, 62, 63, 64
sT0, sT1, sT2, sT3, sT4, sT5 = 65, 66, 67, 68, 69, 70
WS, XS, WW, DBG = sr(S_WS, 4), sr(S_X, 4), sr(S_W, 4), sr(S_DBG, 4)

DBG_TICKET = 0
DBG_H1 = 128
DBG_FB = 136

class Cfg:
    profile = False
    force_fallback = False
    no_f = False
    realtime = False
    r_at = 14
    f_sleep = 8
    r_spin = 6
    r_spin2 = 3
    v01_early = True
    pp_lds = True
    pipe_mem = False
    pipe_pp = False
    pipe_part = False
    budget = 400000

class VAlloc:
    def __init__(self, start=1):
        self.n = start
    def get(self, cnt=1, align=1):
        if cnt > 1 and align == 1:
            align = 2
        self.n = (self.n + align - 1) // align * align
        b = self.n
        self.n += cnt
        assert self.n <= 256, "out of VGPRs"
        return b

def srd(a, s, ptr, nbytes):
    a(f"s_mov_b32 s{s}, s{ptr}")
    a(f"s_mov_b32 s{s+1}, s{ptr+1}")
    a(f"s_mov_b32 s{s+2}, {nbytes:#x}")
    a(f"s_mov_b32 s{s+3}, 0x00020000")

def maxtree(a, regs, tmp):
    regs = list(regs)
    if len(regs) == 1:
        a(f"v_mov_b32 v{tmp}, v{regs[0]}")
        return
    if len(regs) == 2:
        a(f"v_max_u32 v{tmp}, v{regs[0]}, v{regs[1]}")
        return
    a(f"v_max3_u32 v{tmp}, v{regs[0]}, v{regs[1]}, v{regs[2]}")
    i = 3
    while i < len(regs):
        if i + 1 < len(regs):
            a(f"v_max3_u32 v{tmp}, v{tmp}, v{regs[i]}, v{regs[i+1]}")
            i += 2
        else:
            a(f"v_max_u32 v{tmp}, v{tmp}, v{regs[i]}")
            i += 1

def poll(a, loads, regs, tmp, sleep=0):
    L = a.newlabel("poll")
    D = a.newlabel("pok")
    a.label(L)
    for l in loads:
        a(l)
    a("s_waitcnt vmcnt(0)")
    maxtree(a, regs, tmp)
    a(f"v_cmp_eq_u32 vcc, -1, v{tmp}")
    a(f"s_cbranch_vccz {D}")
    if sleep:
        a(f"s_sleep {sleep}")
    a(f"s_sub_u32 s{sBUD}, s{sBUD}, 1")
    a(f"s_cbranch_scc0 {L}")
    a("s_endpgm")
    a.label(D)

def poll2(a, loads, regs, tmp, pre=None, gap=0):
    L = a.newlabel("poll")
    D = a.newlabel("pok")
    for l in loads:
        a(l)
    if gap:
        a(f"s_sleep {gap}")
    a.label(L)
    for l in loads:
        a(l)
    a(f"s_waitcnt vmcnt({len(loads)})")
    maxtree(a, regs, tmp)
    a(f"v_cmp_eq_u32 vcc, -1, v{tmp}")
    a(f"s_cbranch_vccz {D}")
    a(f"s_sub_u32 s{sBUD}, s{sBUD}, 1")
    a(f"s_cbranch_scc0 {L}")
    a("s_endpgm")
    a.label(D)

def wave0_atomic_add(a, byte_off, val_sreg_or_imm, vt0, vt1):
    L = a.newlabel("noadd")
    a(f"v_mov_b32 v{vt0}, {byte_off}")
    a(f"v_mov_b32 v{vt1}, {val_sreg_or_imm}")
    a(f"s_cmp_eq_u32 s{sWV}, 0")
    a(f"s_cbranch_scc0 {L}")
    a("s_mov_b64 exec, 1")
    a(f"buffer_atomic_add v{vt1}, v{vt0}, {DBG}, 0 offen sc1")
    a("s_mov_b64 exec, -1")
    a.label(L)

def wait_counter(a, byte_off, target, vt0, vt1, sleep, split16=False):
    L = a.newlabel("wc")
    D = a.newlabel("wcok")
    a(f"v_mov_b32 v{vt0}, {byte_off}")
    a.label(L)
    a(f"buffer_load_dword v{vt1}, v{vt0}, {DBG}, 0 offen sc1")
    a("s_waitcnt vmcnt(0)")
    a(f"v_readfirstlane_b32 s{sT0}, v{vt1}")
    a("s_nop 3")
    if split16:
        a(f"s_lshr_b32 s{sT1}, s{sT0}, 16")
        a(f"s_and_b32 s{sT2}, s{sT0}, 0xffff")
        a(f"s_add_u32 s{sT2}, s{sT2}, s{sT1}")
        a(f"s_cmp_ge_u32 s{sT2}, {target}")
    else:
        a(f"s_cmp_ge_u32 s{sT0}, {target}")
    a(f"s_cbranch_scc1 {D}")
    a(f"s_sleep {sleep}")
    a(f"s_sub_u32 s{sBUD}, s{sBUD}, 1")
    a(f"s_cbranch_scc0 {L}")
    a("s_endpgm")
    a.label(D)

def handshake_wait(a, mode, vt0, vt1, sleep):
    wait_counter(a, DBG_H1 + 32 * mode, 256, vt0, vt1, sleep, split16=True)
    if mode == 0:
        if Cfg.force_fallback:
            a("s_branch L_fallback")
        else:
            a(f"s_cmp_lg_u32 s{sT1}, 0")
            a("s_cbranch_scc1 L_fallback")

class Prof:
    def __init__(self, a, va):
        self.a = a
        if Cfg.profile:
            self.vo = va.get()
            self.vd = va.get(8)
            a(f"s_lshl_b32 s{sT0}, s{sX}, 5")
            a(f"s_add_u32 s{sT0}, s{sT0}, s{sSLOT}")
            a(f"s_lshl_b32 s{sT0}, s{sT0}, 2")
            a(f"s_add_u32 s{sT0}, s{sT0}, s{sWV}")
            a(f"s_lshl_b32 s{sT0}, s{sT0}, 11")
            a(f"s_add_u32 s{sT0}, s{sT0}, {PROF_OFF:#x}")
            a(f"v_lshlrev_b32 v{self.vo}, 2, v0")
            a(f"v_add_u32 v{self.vo}, s{sT0}, v{self.vo}")
            for k in range(8):
                a(f"v_mov_b32 v{self.vd+k}, 0")
    def stamp(self, k, real=False):
        if not Cfg.profile:
            return
        a = self.a
        a("s_memrealtime s[98:99]" if (real or Cfg.realtime) else "s_memtime s[98:99]")
        a(f"s_and_b32 m0, s{sS}, 63")
        a("s_waitcnt lgkmcnt(0)")
        a(f"v_writelane_b32 v{self.vd+k}, s98, m0")
    def dump(self):
        if not Cfg.profile:
            return
        a = self.a
        for k in range(8):
            a(f"buffer_store_dword v{self.vd+k}, v{self.vo}, {WS}, 0 offen offset:{256*k}")

def weight_dma(a, vW, chunk, buf, stride, sB):
    for i in range(16):
        a(f"s_add_u32 m0, s{sB+1}, {buf*65536 + i*1024}")
        a(f"s_add_u32 s{sT0}, s{sB}, {(chunk*256 + 4*i)*stride}")
        a(f"buffer_load_dwordx4 v{vW}, {WW}, s{sT0} offen lds")

def weight_tr(a, vTR, group):
    for ks in range(8):
        for t in range(2):
            for q in range(2):
                d = group * 64 + (ks >> 1) * 16 + t * 8 + (ks & 1) * 4 + 2 * q
                a(f"ds_read_b64_tr_b16 {ar(d,2)}, v{vTR[q]} offset:{ks*8192 + 8*t}")
    a("s_waitcnt lgkmcnt(0)")

def weight_addr_setup(a, va, stride, sB, swap):
    vW = va.get(); vTR = va.get(4); t0 = va.get(); t1 = va.get()
    a(f"v_lshrrev_b32 v{t0}, 4, v0")
    a(f"v_lshlrev_b32 v{t1}, 2, v{t0}")
    a(f"v_and_b32 v{vW}, 15, v0")
    a(f"v_xor_b32 v{vW}, v{vW}, v{t1}")
    a(f"v_lshlrev_b32 v{vW}, 4, v{vW}")
    a(f"v_mul_u32_u24 v{t0}, {stride}, v{t0}")
    a(f"v_add_u32 v{vW}, v{vW}, v{t0}")
    if swap:
        a(f"v_bfe_u32 v{t0}, v0, 3, 1")
        a(f"v_bfe_u32 v{t1}, v0, 2, 1")
        a(f"v_lshl_add_u32 v{t0}, v{t0}, 2, v{t1}")
    else:
        a(f"v_bfe_u32 v{t0}, v0, 2, 2")
    if swap:
        a(f"v_bfe_u32 v{t1}, v0, 1, 1")
        a(f"v_and_b32 v{vTR}, 1, v0")
        a(f"v_lshl_add_u32 v{t1}, v{vTR}, 1, v{t1}")
    else:
        a(f"v_and_b32 v{t1}, 3, v0")
    a(f"s_lshl_b32 s{sT0}, s{sWV}, 2")
    a(f"v_add_u32 v{t1}, s{sT0}, v{t1}")
    a(f"v_and_b32 v{vTR}, 3, v{t0}")
    a(f"v_lshlrev_b32 v{vTR}, 2, v{vTR}")
    a(f"v_xor_b32 v{t1}, v{t1}, v{vTR}")
    a(f"v_lshlrev_b32 v{t1}, 4, v{t1}")
    a(f"v_lshrrev_b32 v{vTR}, 4, v0")
    a(f"v_lshlrev_b32 v{vTR}, 3, v{vTR}")
    a(f"v_add_u32 v{vTR}, v{vTR}, v{t0}")
    a(f"v_lshlrev_b32 v{vTR}, 8, v{vTR}")
    a(f"v_add_u32 v{vTR}, v{vTR}, v{t1}")
    if swap:
        a(f"v_xor_b32 v{vTR+1}, 128, v{vTR}")
        a(f"v_add_u32 v{vTR+1}, 512, v{vTR+1}")
    else:
        a(f"v_add_u32 v{vTR+1}, 1024, v{vTR}")
    a(f"v_add_u32 v{vTR+2}, 0x10000, v{vTR}")
    a(f"v_add_u32 v{vTR+3}, 0x10000, v{vTR+1}")
    a(f"s_mul_i32 s{sB}, s{sWV}, {64*stride}")
    a(f"s_lshl_b32 s{sB+1}, s{sWV}, 14")
    return vW, ((vTR, vTR + 1), (vTR + 2, vTR + 3)), t0, t1

def idx_setup(a, vIDX, t0):
    a(f"v_and_b32 v{t0}, 8, v0")
    a(f"v_cmp_ne_u32 vcc, 0, v{t0}")
    a(f"v_mov_b32 v{vIDX}, 0x44444444")
    a(f"v_mov_b32 v{t0}, 0xeeeeeeee")
    a("s_nop 1")
    a(f"v_cndmask_b32 v{vIDX}, v{vIDX}, v{t0}, vcc")

def halfsum(a, acc0, acc1, out):
    for r in range(4):
        a(f"v_permlane32_swap_b32 v{acc0+r}, v{acc1+r}")
    for r in range(4):
        a(f"v_add_f32 v{acc0+r}, v{acc0+r}, v{acc1+r}")
    a(f"v_cvt_pk_bf16_f32 v{out}, v{acc0}, v{acc0+1}")
    a(f"v_cvt_pk_bf16_f32 v{out+1}, v{acc0+2}, v{acc0+3}")

def xlane_gg(a, op, v, t):
    for sw in ("v_permlane16_swap_b32", "v_permlane32_swap_b32"):
        a(f"v_mov_b32 v{t}, v{v}")
        a("s_nop 1")
        a(f"{sw} v{v}, v{t}")
        a(f"{op} v{v}, v{v}, v{t}")

def dispatch(a, mode):
    from gen_f import role_f
    from gen_proj import role_proj
    from gen_t import role_t
    from gen_or import role_or
    LP, LO, LT, LF = (f"L_role_{n}_{mode}" for n in "potf")
    a(f"s_cmp_lt_u32 s{sSLOT}, 12")
    a(f"s_cbranch_scc1 {LP}")
    a(f"s_cmp_lt_u32 s{sSLOT}, 20")
    a(f"s_cbranch_scc1 {LO}")
    a(f"s_cmp_lt_u32 s{sSLOT}, 24")
    a(f"s_cbranch_scc1 {LT}")
    a(f"s_branch {LF}")
    for lab, fn in ((LP, role_proj), (LO, role_or), (LT, role_t), (LF, role_f)):
        a.lines.append(".p2align 6")
        a.label(lab)
        fn(a, mode)

def build():
    a = Asm()
    a("s_cmp_ge_u32 s2, 256")
    a("s_cbranch_scc0 L_start")
    a("s_endpgm")
    a.label("L_start")
    for i, off in enumerate((0, 16, 32, 64, 80, 96)):
        a(f"s_load_dwordx4 s[{36+4*i}:{39+4*i}], s[0:1], {off}")
    a(f"s_getreg_b32 s{sX}, hwreg(HW_REG_XCC_ID)")
    a(f"s_and_b32 s{sX}, s{sX}, 15")
    a("v_lshrrev_b32 v1, 6, v0")
    a("v_and_b32 v0, 63, v0")
    a(f"v_readfirstlane_b32 s{sWV}, v1")
    a(f"s_mov_b32 s{sBUD}, {Cfg.budget}")
    a(f"s_mov_b32 s{sS}, -2")
    a("s_waitcnt lgkmcnt(0)")
    srd(a, S_WS, P_WS, WS_HALF)
    srd(a, S_X, P_X, 4 * MB)
    srd(a, S_DBG, P_DBG, 256)
    a(f"s_lshl_b32 s{sT0}, s{sX}, 2")
    a(f"v_mov_b32 v1, s{sT0}")
    a("v_mov_b32 v2, 1")
    a("v_mov_b32 v3, 0")
    a(f"s_cmp_eq_u32 s{sWV}, 0")
    a("s_cbranch_scc0 L_noticket")
    a("s_mov_b64 exec, 1")
    a(f"buffer_atomic_add v2, v1, {DBG}, 0 offen sc0 sc1")
    a("s_waitcnt vmcnt(0)")
    a("ds_write_b32 v3, v2")
    a("s_waitcnt lgkmcnt(0)")
    a("s_mov_b64 exec, -1")
    a.label("L_noticket")
    a("s_barrier")
    a("ds_read_b32 v2, v3")
    a("s_waitcnt lgkmcnt(0)")
    a(f"v_readfirstlane_b32 s{sSLOT}, v2")
    a("s_barrier")
    a(f"s_cmp_ge_u32 s{sX}, 8")
    a("s_cbranch_scc1 L_overflow")
    a(f"s_cmp_ge_u32 s{sSLOT}, 32")
    a("s_cbranch_scc1 L_overflow")
    a("s_branch L_mode0")
    a.label("L_overflow")
    wave0_atomic_add(a, DBG_H1, "0x10000", 1, 2)
    a.label("L_fallback")
    a("s_mov_b64 exec, -1")
    a("s_waitcnt vmcnt(0) lgkmcnt(0)")
    a("s_barrier")
    a(f"s_lshr_b32 s{sX}, s2, 5")
    a(f"s_and_b32 s{sSLOT}, s2, 31")
    a(f"s_add_u32 s{S_WS}, s{P_WS}, {WS_HALF:#x}")
    a(f"s_addc_u32 s{S_WS+1}, s{P_WS+1}, 0")
    a(f"s_mov_b32 s{sS}, -2")
    dispatch(a, 1)
    a.lines.append(".p2align 6")
    a.label("L_mode0")
    dispatch(a, 0)
    return a.text()

HEADER = open(os.path.join(os.path.dirname(os.path.abspath(__file__)), "header.txt")).read()

def full_text():
    body = build()
    return (HEADER + f"; @launch grid=(256,1,1) block=(256,1,1) lds={LDS_BYTES}\n"
            + '.amdgcn_target "amdgcn-amd-amdhsa--gfx950"\n.text\n'
            + f".globl {KNAME}\n.p2align 8\n.type {KNAME},@function\n{KNAME}:\n"
            + body
            + '.section .rodata,"a"\n.p2align 6\n'
            + f".amdhsa_kernel {KNAME}\n"
            + "  .amdhsa_next_free_vgpr 512\n  .amdhsa_next_free_sgpr 102\n  .amdhsa_accum_offset 256\n"
            + "  .amdhsa_group_segment_fixed_size 0\n  .amdhsa_kernarg_size 112\n  .amdhsa_user_sgpr_count 2\n"
            + "  .amdhsa_user_sgpr_kernarg_segment_ptr 1\n  .amdhsa_system_sgpr_workgroup_id_x 1\n"
            + "  .amdhsa_float_denorm_mode_32 3\n"
            + ".end_amdhsa_kernel\n")

if __name__ == "__main__":
    import gen as G
    out = sys.argv[1]
    for o in sys.argv[2:]:
        if "=" in o:
            k, v = o.split("="); setattr(G.Cfg, k, int(v))
        else:
            setattr(G.Cfg, o, True)
    open(out, "w").write(G.full_text())
```

```python
from gen import *

LOG2E = math.log2(math.e)

def role_f(a, mode):
    va = VAlloc()
    t0 = va.get(); t1 = va.get(); t2 = va.get(); t3 = va.get()
    sFI, sE, sDB, sK, sLB = 72, 73, 74, 75, 76
    sROW = 78
    sO0, sO1, sO2, sO3 = 86, 87, 88, 89
    sMA, sMB = 90, 92
    a(f"s_sub_u32 s{sFI}, s{sSLOT}, 28")
    prof = Prof(a, va)
    signal(a, DBG_H1, 1)
    dbg_time(a, 5, True)
    if Cfg.no_f:
        a("s_sleep 100")
        handshake_wait(a, mode, t0, t1, 40)
        a("s_endpgm")
        return
    OUTS, WRS, WIS, AUX = sr(S_OUT, 4), sr(S_WR, 4), sr(S_WI, 4), sr(S_AUX, 4)
    srd(a, S_OUT, P_OUT, 4 * MB)
    srd(a, S_WR, P_WR, 2048 * 1026)
    srd(a, S_WI, P_WI, 2048 * 1026)
    srd(a, S_AUX, P_GATE, 2048)
    vC = va.get(); vHH = va.get(); vPERM = va.get()
    vDM = va.get(2); vRB = va.get(4); vINC = va.get(2); vOA = va.get(); vLW = va.get(); vLR = va.get()
    vW1 = va.get(); vW2 = va.get(); vW20 = va.get(); Y = va.get(4)
    TH = va.get(16, 4); CS = va.get(16, 4); GN = va.get(16, 4); FR = va.get(32, 4)
    BIG = va.get(128, 4)
    EX = TH
    a(f"v_and_b32 v{vC}, 31, v0")
    a(f"v_lshrrev_b32 v{vHH}, 5, v0")
    a(f"v_bfe_u32 v{t0}, v0, 2, 1")
    a(f"v_bfe_u32 v{t1}, v0, 3, 2")
    a(f"v_lshlrev_b32 v{t0}, 4, v{t0}")
    a(f"v_lshl_add_u32 v{t0}, v{t1}, 2, v{t0}")
    a(f"v_and_b32 v{t1}, 3, v0")
    a(f"v_add_u32 v{vPERM}, v{t0}, v{t1}")

    a(f"s_lshl_b32 s{sT0}, s{sX}, 2")
    a(f"s_add_u32 s{sT0}, s{sT0}, s{sFI}")
    a(f"s_lshl_b32 s{sT0}, s{sT0}, 2")
    a(f"s_add_u32 s{sT0}, s{sT0}, s{sWV}")
    a(f"s_lshl_b32 s{sT1}, s{sT0}, 15")
    a(f"v_lshlrev_b32 v{t0}, 4, v0")
    for k in range(2):
        a(f"buffer_load_dwordx4 {vr(EX+4*k,4)}, v{t0}, {AUX}, 0 offen offset:{1024*k}")
    for r in range(16):
        for k in range(2):
            a(f"buffer_load_dwordx4 {vr(BIG+8*r+4*k,4)}, v{t0}, {XS}, s{sT1} offen offset:{1024*k}")
        a(f"s_add_u32 s{sT1}, s{sT1}, 2048")
    a("s_waitcnt vmcnt(0)")
    G = EX + 8
    for r in range(16):
        a(f"v_mov_b32 v{G+r}, 0")
    for k in range(8):
        for r in range(16):
            a(f"v_dot2_f32_bf16 v{G+r}, v{BIG+8*r+k}, v{EX+k}, v{G+r}")
    a.nop(3)
    for sh in (8, 4, 2, 1):
        for r in range(16):
            a(f"v_add_f32_dpp v{G+r}, v{G+r}, v{G+r} row_ror:{sh} row_mask:0xf bank_mask:0xf")
    a(f"v_mov_b32 v{t2}, v{G}")
    a(f"v_and_b32 v{t0}, 15, v0")
    for r in range(1, 16):
        a(f"v_cmp_eq_u32 vcc, {r}, v{t0}")
        a("s_nop 1")
        a(f"v_cndmask_b32 v{t2}, v{t2}, v{G+r}, vcc")
    xlane_gg(a, "v_add_f32", t2, t1)
    a(f"v_mul_f32 v{t2}, {f32bits(-LOG2E):#x}, v{t2}")
    a(f"v_exp_f32 v{t2}, v{t2}")
    a("s_nop 0")
    a(f"v_add_f32 v{t2}, 1.0, v{t2}")
    a(f"v_rcp_f32 v{t2}, v{t2}")
    a(f"v_lshrrev_b32 v{t1}, 4, v0")
    a(f"v_min_u32 v{t1}, 1, v{t1}")
    a(f"v_lshlrev_b32 v{t1}, 28, v{t1}")
    a(f"v_lshl_add_u32 v{t1}, v0, 2, v{t1}")
    a(f"s_lshl_b32 s{sT0}, s{sT0}, 6")
    a(f"s_add_u32 s{sT0}, s{sT0}, {GATE_OFF:#x}")
    a(f"buffer_store_dword v{t2}, v{t1}, {WS}, s{sT0} offen sc1")

    DEPTH = 6
    NFR = 8

    def gemm(stage, half=0):
        fwd = stage in (1, 2)
        gen_is_a = stage in (2, 4)
        N = 1024 if stage in (1, 4) else 2048
        K = 512 if stage == 4 else 1024
        NG = 1 if stage == 4 else 2
        accb = 128 * half
        stride = {1: 2048, 2: 4096, 3: 4096, 4: 2048}[stage]
        src = XS if stage == 1 else WS
        src_off = {1: 0, 2: RT_OFF, 3: HT_OFF, 4: Z_OFF + 1024 * half}[stage]
        fl = "" if stage == 1 else "sc1"
        if stage == 1:
            a(f"s_lshr_b32 s{sE}, s{sFI}, 1")
        elif stage == 4:
            a(f"s_mov_b32 s{sE}, {half}")
        else:
            a(f"s_and_b32 s{sE}, s{sX}, 1")
        if stage == 4:
            a(f"s_lshl_b32 s{sT0}, s{sWV}, 7")
            a(f"s_add_u32 s{sT0}, s{sT0}, s{sX}")
            a(f"s_mul_i32 s{sT0}, s{sT0}, {4*stride}")
        elif stage == 1:
            a(f"s_lshl_b32 s{sT0}, s{sX}, 1")
            a(f"s_and_b32 s{sT1}, s{sWV}, 1")
            a(f"s_add_u32 s{sT0}, s{sT0}, s{sT1}")
            a(f"s_lshr_b32 s{sT1}, s{sWV}, 1")
            a(f"s_lshl_b32 s{sT1}, s{sT1}, 4")
            a(f"s_add_u32 s{sT0}, s{sT0}, s{sT1}")
            a(f"s_mul_i32 s{sT0}, s{sT0}, {64*stride}")
        else:
            a(f"s_lshr_b32 s{sDB}, s{sX}, 1")
            a(f"s_lshl_b32 s{sT0}, s{sDB}, 2")
            a(f"s_add_u32 s{sT0}, s{sT0}, s{sWV}")
            a(f"s_mul_i32 s{sT0}, s{sT0}, {64*stride}")
            a(f"s_lshl_b32 s{sT1}, s{sE}, 11")
            a(f"s_add_u32 s{sT0}, s{sT0}, s{sT1}")
        a(f"v_lshrrev_b32 v{t0}, 3, v0")
        if stage in (1, 3):
            a(f"v_lshrrev_b32 v{t1}, 2, v{t0}")
            a(f"v_and_b32 v{t2}, 3, v{t0}")
            a(f"v_lshl_add_u32 v{t1}, v{t1}, 4, v{t2}")
            rows = [32 * (m >> 2) + 4 * (m & 3) for m in range(8)]
        elif stage == 2:
            a(f"v_lshlrev_b32 v{t1}, 1, v{t0}")
            rows = [16 * (m & 3) + (m >> 2) for m in range(8)]
        else:
            a(f"v_lshrrev_b32 v{t1}, 2, v{t0}")
            a(f"v_and_b32 v{t2}, 3, v{t0}")
            a(f"v_lshl_add_u32 v{t1}, v{t1}, 5, v{t2}")
            rows = [256 * (m >> 2) + 64 * (m & 3) for m in range(8)]
        a(f"v_mul_u32_u24 v{t1}, {stride}, v{t1}")
        a(f"v_lshrrev_b32 v{t0}, 1, v{t0}")
        a(f"v_and_b32 v{t2}, 7, v0")
        a(f"v_xor_b32 v{t0}, v{t0}, v{t2}")
        a(f"v_lshl_add_u32 v{vDM}, v{t0}, 4, v{t1}")
        a(f"v_xor_b32 v{vDM+1}, 64, v{vDM}")
        for m in range(8):
            a(f"s_add_u32 s{sROW+m}, s{sT0}, {src_off + rows[m]*stride:#x}")
        a(f"s_lshl_b32 s{sLB}, s{sWV}, 13")
        def dma_pre(m):
            a(f"s_add_u32 m0, s{sLB}, {1024*m}")
        def dma(m):
            a(f"buffer_load_dwordx4 v{vDM+(m&1)}, {src}, s{sROW+m} offen {fl} lds")
        def dma_adv():
            a(f"v_add_u32 v{vDM}, 128, v{vDM}")
            a(f"v_add_u32 v{vDM+1}, 128, v{vDM+1}")
            a(f"s_add_u32 s{sLB}, s{sLB}, 32768")
            a(f"s_and_b32 s{sLB}, s{sLB}, 0x1ffff")
        for st in range(2):
            for m in range(8):
                dma_pre(m)
                a("s_nop 0")
                dma(m)
            dma_adv()
        a(f"v_bfe_u32 v{t0}, v0, 1, 3")
        a(f"v_xor_b32 v{t0}, v{t0}, v{vHH}")
        a(f"v_lshlrev_b32 v{t0}, 4, v{t0}")
        a(f"v_lshl_add_u32 v{vRB}, v{vC}, 7, v{t0}")
        for ks in range(1, 4):
            a(f"v_xor_b32 v{vRB+ks}, {ks<<5}, v{vRB}")
        a(f"s_mov_b32 s{sT1}, {f32bits(1.0 / N):#x}")
        for u in range(NG):
            if stage == 1:
                a(f"s_and_b32 s{sT0}, s{sFI}, 1")
            else:
                a(f"s_mov_b32 s{sT0}, s{sFI}")
            a(f"s_lshl_b32 s{sT0}, s{sT0}, 2")
            a(f"s_add_u32 s{sT0}, s{sT0}, s{sWV}")
            a(f"s_lshl_b32 s{sT0}, s{sT0}, {4 + NG}")
            a(f"s_add_u32 s{sT0}, s{sT0}, {32*u}")
            a(f"v_add_u32 v{t0}, s{sT0}, v{vPERM if gen_is_a else vC}")
            T = TH + 8 * u; C = CS + 8 * u
            if fwd:
                a(f"v_and_b32 v{t1}, -2, v{t0}")
                a(f"v_add_u32 v{t1}, s{sE}, v{t1}")
                a(f"v_and_b32 v{t2}, 1, v{t0}")
                a(f"v_lshl_add_u32 v{t3}, v{t1}, 1, v{t2}")
                a(f"v_cmp_eq_u32 vcc, 1, v{t3}")
                a(f"v_cvt_f32_u32 v{t2}, v{t2}")
                a(f"v_mul_f32 v{t2}, {f32bits(-0.25):#x}, v{t2}")
                a(f"v_mov_b32 v{t3}, {N//2}")
                a(f"v_cndmask_b32 v{t1}, v{t1}, v{t3}, vcc")
                a(f"v_cndmask_b32 v{t2}, v{t2}, 0, vcc")
                for j in range(8):
                    a(f"v_lshl_add_u32 v{t3}, v{vHH}, 3, {j}")
                    a(f"v_mul_u32_u24 v{t3}, v{t3}, v{t1}")
                    a(f"v_and_b32 v{t3}, {N-1}, v{t3}")
                    a(f"v_cvt_f32_u32 v{t3}, v{t3}")
                    a(f"v_fma_f32 v{T+j}, v{t3}, s{sT1}, v{t2}")
                a(f"v_lshlrev_b32 v{t3}, 4, v{t1}")
            else:
                for j in range(0, 8, 2):
                    a(f"v_lshl_add_u32 v{t3}, v{vHH}, 3, {j}")
                    a(f"v_add_u32 v{t3}, s{sE}, v{t3}")
                    a(f"v_mul_u32_u24 v{t3}, v{t3}, v{t0}")
                    a(f"v_and_b32 v{t3}, {N-1}, v{t3}")
                    a(f"v_cvt_f32_u32 v{t3}, v{t3}")
                    a(f"v_mul_f32 v{T+j}, s{sT1}, v{t3}")
                    a(f"v_add_f32 v{T+j+1}, {f32bits(-0.25):#x}, v{T+j}")
                a(f"v_lshlrev_b32 v{t3}, 4, v{t0}")
            a(f"v_and_b32 v{t3}, {N-1}, v{t3}")
            a(f"v_cvt_f32_u32 v{t3}, v{t3}")
            a(f"v_mul_f32 v{vINC+u}, s{sT1}, v{t3}")
            for j in range(8):
                a(f"v_cos_f32 v{C+j}, v{T+j}")
            if not fwd:
                a(f"v_and_b32 v{t1}, 1, v{t0}")
                a(f"v_cvt_f32_u32 v{t1}, v{t1}")
                a(f"v_fma_f32 v{t1}, v{t1}, -2.0, 1.0")
                a(f"v_add_u32 v{t2}, s{sE}, v{vHH}")
                a(f"v_cmp_eq_u32 vcc, 0, v{t2}")
                a("s_nop 1")
                a(f"v_cndmask_b32 v{C+1}, v{C+1}, v{t1}, vcc")
            for j in range(8):
                a(f"v_add_f32 v{T+j}, v{T+j}, v{vINC+u}")
            for j in range(4):
                a(f"v_cvt_pk_bf16_f32 v{GN+4*u+j}, v{C+2*j}, v{C+2*j+1}")
        for r in range(4):
            a(f"v_mov_b32 v{FR+28+r}, 0")
        a("s_nop 1")
        for tl in range(8 * NG):
            a(f"v_mfma_f32_32x32x16_bf16 {ar(accb+16*tl,16)}, {vr(FR+28,4)}, {vr(FR+28,4)}, 0")
        a("s_waitcnt vmcnt(8)")
        a("s_barrier")
        def rd(f):
            f64 = f % 64
            st, ks, tl = f64 >> 5, (f64 >> 3) & 3, f64 & 7
            a(f"ds_read_b128 {vr(FR+4*(f%NFR),4)}, v{vRB+ks} offset:{st*32768 + tl*4096}")
            if st == 1 and tl == 7:
                a(f"v_xor_b32 v{vRB+ks}, 0x10000, v{vRB+ks}")
        for f in range(DEPTH):
            rd(f)
        a(f"s_mov_b32 s{sK}, {K // 128}")
        L = a.newlabel("f_loop")
        a.label(L)
        for f in range(64):
            ksg, tl = f >> 3, f & 7
            cur = GN + 8 * (ksg & 1); nxt = GN + 8 * ((ksg + 1) & 1)
            fs = f & 31
            dm = fs // 3 if (fs % 3 == 2 and fs // 3 < 8) else None
            if fs == 32 - DEPTH:
                a("s_waitcnt vmcnt(8)")
                a("s_barrier")
            a(f"s_waitcnt lgkmcnt({DEPTH-1})")
            if dm is not None:
                dma_pre(dm)
            d = vr(FR + 4 * (f % NFR), 4)
            for u in range(NG):
                g = vr(cur + 4 * u, 4)
                A, B = (g, d) if gen_is_a else (d, g)
                acc = ar(accb + 128 * u + 16 * tl, 16)
                a(f"v_mfma_f32_32x32x16_bf16 {acc}, {A}, {B}, {acc}")
                if u == 0:
                    rd(f + DEPTH)
                if u == NG - 1 and dm is not None:
                    dma(dm)
                if NG == 2:
                    gap = 2 * tl + u
                    ops = []
                    for uu, start in ((0, 0), (1, 6)):
                        j = gap - start
                        if 0 <= j < 8:
                            ops.append(f"v_cos_f32 v{CS+8*uu+j}, v{TH+8*uu+j}")
                        if 1 <= j < 9:
                            ops.append(f"v_add_f32 v{TH+8*uu+j-1}, v{TH+8*uu+j-1}, v{vINC+uu}")
                        if j in (2, 4, 6, 8):
                            m = j // 2 - 1
                            ops.append(f"v_cvt_pk_bf16_f32 v{nxt+4*uu+m}, v{CS+8*uu+2*m}, v{CS+8*uu+2*m+1}")
                    for o in ops:
                        a(o)
                else:
                    if tl < 4:
                        for j in (2 * tl, 2 * tl + 1):
                            a(f"v_cos_f32 v{CS+j}, v{TH+j}")
                    else:
                        for j in (2 * (tl - 4), 2 * (tl - 4) + 1):
                            a(f"v_add_f32 v{TH+j}, v{TH+j}, v{vINC}")
                        if tl < 6:
                            for j in (2 * (tl - 4), 2 * (tl - 4) + 1):
                                a(f"v_cvt_pk_bf16_f32 v{nxt+j}, v{CS+2*j}, v{CS+2*j+1}")
            if fs == 24:
                dma_adv()
        a(f"s_sub_u32 s{sK}, s{sK}, 1")
        a(f"s_cmp_lg_u32 s{sK}, 0")
        a(f"s_cbranch_scc1 {L}")
        a("s_waitcnt vmcnt(0) lgkmcnt(0)")
        a("s_barrier")
        a.nop(12)

    def image_out(swz_shift, seg_stride, row_stride, sbase):
        a("s_waitcnt lgkmcnt(0)")
        a("s_barrier")
        a(f"v_lshrrev_b32 v{t0}, 4, v{vC}")
        a(f"v_mul_u32_u24 v{t0}, {seg_stride}, v{t0}")
        a(f"v_and_b32 v{t1}, 15, v0")
        a(f"v_lshl_add_u32 v{t0}, v{t1}, 4, v{t0}")
        a(f"v_mul_u32_u24 v{t1}, {row_stride}, v{vHH}")
        a(f"v_add_u32 v{vOA}, v{t0}, v{t1}")
        a(f"s_mul_i32 s{sT0}, s{sWV}, {64*row_stride}")
        a(f"s_add_u32 s{sT0}, s{sT0}, s{sbase}")
        a(f"s_lshl_b32 s{sT1}, s{sWV}, 15")
        if swz_shift == 0:
            a(f"v_xor_b32 v{t0}, v{vC}, v{vHH}")
        else:
            a(f"v_mov_b32 v{t0}, v{vC}")
        a(f"v_lshlrev_b32 v{t0}, 4, v{t0}")
        a(f"v_lshl_add_u32 v{t0}, v{vHH}, 9, v{t0}")
        a(f"v_add_u32 v{vLR}, s{sT1}, v{t0}")
        nvar = 4 if swz_shift == 0 else 8
        for k in range(nvar):
            x = (2 * k if swz_shift == 0 else k) << 4
            a(f"v_xor_b32 v{EX+k}, {x}, v{vLR}")
        for m in range(32):
            a(f"ds_read_b128 {vr(BIG+4*m,4)}, v{EX + m % nvar} offset:{1024*m}")
        for m in range(32):
            if m < 32 - 15:
                if m == 0:
                    a("s_waitcnt lgkmcnt(15)")
            else:
                a(f"s_waitcnt lgkmcnt({31-m})")
            a(f"buffer_store_dwordx4 {vr(BIG+4*m,4)}, v{vOA}, {WS}, s{sT0} offen sc1")
            a(f"s_add_u32 s{sT0}, s{sT0}, {2*row_stride}")

    def epi_rows(fold):
        a(f"v_and_b32 v{t0}, 7, v0")
        a(f"v_lshlrev_b32 v{t1}, 1, v{vHH}")
        a(f"v_xor_b32 v{t0}, v{t0}, v{t1}")
        a(f"v_lshlrev_b32 v{t0}, 4, v{t0}")
        a(f"v_lshl_add_u32 v{t0}, v{vC}, 9, v{t0}")
        a(f"s_lshl_b32 s{sT1}, s{sWV}, 15")
        a(f"v_add_u32 v{EX}, s{sT1}, v{t0}")
        for k, x in enumerate((16, 64, 80)):
            a(f"v_xor_b32 v{EX+1+k}, {x}, v{EX}")
        def put(src, u, tl):
            for r in range(8):
                a(f"v_cvt_pk_bf16_f32 v{src+r}, v{src+2*r}, v{src+2*r+1}")
            for q in range(2):
                a(f"ds_write_b128 v{EX + 2*(tl&1) + q}, {vr(src+4*q,4)} offset:{u*16384 + (tl>>1)*128}")
        for u in range(2):
            for i in range(4):
                b = BIG + 48 * (i & 1)
                ta, tb = (i, i + 4) if fold else (2 * i, 2 * i + 1)
                for r in range(16):
                    a(f"v_accvgpr_read_b32 v{b+r}, a{128*u+16*ta+r}")
                    a(f"v_accvgpr_read_b32 v{b+16+r}, a{128*u+16*tb+r}")
                if fold:
                    for r in range(0, 16, 2):
                        a(f"v_pk_add_f32 {vr(b+32+r,2)}, {vr(b+r,2)}, {vr(b+16+r,2)}")
                        a(f"v_pk_add_f32 {vr(b+16+r,2)}, {vr(b+r,2)}, {vr(b+16+r,2)} neg_lo:[0,1] neg_hi:[0,1]")
                    put(b + 32, u, ta)
                else:
                    put(b, u, ta)
                put(b + 16, u, tb)

    def fbarrier(k):
        a("s_waitcnt vmcnt(0)")
        a("s_barrier")
        signal(a, DBG_FB + 4 * k, 1)
        SK = a.newlabel("fb_skip")
        a(f"s_cmp_eq_u32 s{sWV}, 0")
        a(f"s_cbranch_scc0 {SK}")
        wait_counter(a, DBG_FB + 4 * k, 32, t0, t1, 10)
        a.label(SK)
        a("s_barrier")

    prof.mark(2)
    gemm(1)
    prof.mark(3)
    epi_rows(True)
    a(f"s_lshl_b32 s{sO0}, s{sFI}, 20")
    a(f"s_lshl_b32 s{sT1}, s{sX}, 8")
    a(f"s_add_u32 s{sO0}, s{sO0}, s{sT1}")
    a(f"s_add_u32 s{sO0}, s{sO0}, {RT_OFF:#x}")
    image_out(0, 2048, 4096, sO0)
    handshake_wait(a, mode, t0, t1, 8)
    prof.mark(4)
    a(f"s_and_b32 s{sE}, s{sX}, 1")
    a(f"s_lshr_b32 s{sDB}, s{sX}, 1")
    a(f"s_lshl_b32 s{sT0}, s{sFI}, 2")
    a(f"s_add_u32 s{sT0}, s{sT0}, s{sWV}")
    a(f"s_lshl_b32 s{sT0}, s{sT0}, 6")
    a(f"s_add_u32 s{sT0}, s{sT0}, s{sE}")
    a(f"v_lshl_add_u32 v{t0}, v{vHH}, 4, s{sT0}")
    a(f"s_and_b32 s{sT1}, s{sDB}, 1")
    a(f"s_lshl_b32 s{sT1}, s{sT1}, 9")
    a(f"s_and_b32 s{sT2}, s{sDB}, 2")
    a(f"s_add_u32 s{sT1}, s{sT1}, s{sT2}")
    a(f"v_lshl_add_u32 v{vLW}, v{vC}, 2, s{sT1}")
    a(f"v_mul_u32_u24 v{vW1}, 1026, v{t0}")
    a(f"v_sub_u32 v{t2}, {2048-46}, v{t0}")
    a(f"v_mul_u32_u24 v{vW2}, 1026, v{t2}")
    a(f"v_sub_u32 v{t2}, 2048, v{t0}")
    a(f"v_cmp_eq_u32 s[{sMA}:{sMA+1}], 0, v{t0}")
    a(f"v_mov_b32 v{t3}, 1024")
    a("s_nop 0")
    a(f"v_cndmask_b32 v{t2}, v{t2}, v{t3}, s[{sMA}:{sMA+1}]")
    a(f"v_mul_u32_u24 v{vW20}, 1026, v{t2}")
    a(f"v_cmp_eq_u32 s[{sMB}:{sMB+1}], 0, v{vLW}")
    for r in (vW1, vW2, vW20):
        a(f"v_add_u32 v{r}, v{r}, v{vLW}")
    wreg = lambda u, i, q: BIG + 64 * u + 16 * i + 2 * q
    a(f"v_and_b32 v{t1}, 8, v0")
    a(f"v_and_b32 v{t2}, 7, v0")
    a(f"v_lshl_add_u32 v{t1}, v{t1}, 1, v{t2}")
    a(f"v_lshl_add_u32 v{t1}, v{t1}, 1, v{t0}")
    a(f"v_sub_u32 v{t2}, 2048, v{t1}")
    a(f"v_cmp_eq_u32 vcc, 0, v{t1}")
    a(f"v_mul_u32_u24 v{t1}, 1026, v{t1}")
    a("s_nop 0")
    a(f"v_cndmask_b32 v{t2}, v{t2}, v{t3}, vcc")
    a(f"v_mul_u32_u24 v{t2}, 1026, v{t2}")
    a(f"buffer_load_ushort v{Y}, v{t1}, {WRS}, 0 offen offset:1024")
    a(f"buffer_load_ushort v{Y+1}, v{t1}, {WIS}, 0 offen offset:1024")
    a(f"buffer_load_ushort v{Y+2}, v{t2}, {WRS}, 0 offen offset:1024")
    a(f"buffer_load_ushort v{Y+3}, v{t2}, {WIS}, 0 offen offset:1024")
    def w_pack(n):
        u, q = n >> 3, n & 7
        for i in range(4):
            for k in range(2):
                a(f"v_lshl_or_b32 v{wreg(u,i,q)+k}, v{EX+8*(n%4)+2*i+k}, 16, v{wreg(u,i,q)+k}")
    for n in range(16):
        u, q = n >> 3, n & 7
        dk = 2 * q + 32 * u
        a(f"s_mov_b32 s{sT2}, {dk*1026}")
        a(f"s_mov_b32 s{sT3}, {0 if dk == 0 else (46-dk)*1026}")
        v2 = vW20 if dk == 0 else vW2
        for i in range(4):
            dst = wreg(u, i, q); tmp = EX + 8 * (n % 4) + 2 * i
            a(f"buffer_load_ushort v{dst}, v{vW1}, {WRS}, s{sT2} offen offset:{128*i}")
            a(f"buffer_load_ushort v{dst+1}, v{v2}, {WRS}, s{sT3} offen offset:{128*i}")
            a(f"buffer_load_ushort v{tmp}, v{vW1}, {WIS}, s{sT2} offen offset:{128*i}")
            a(f"buffer_load_ushort v{tmp+1}, v{v2}, {WIS}, s{sT3} offen offset:{128*i}")
        if n >= 2:
            a("s_waitcnt vmcnt(32)")
            w_pack(n - 2)
    a("s_waitcnt vmcnt(0)")
    w_pack(14)
    w_pack(15)
    for k in range(4):
        a(f"v_lshlrev_b32 v{Y+k}, 16, v{Y+k}")
    fbarrier(0)
    prof.mark(5)
    gemm(2)
    prof.mark(6)
    SC = 2.0 / (2048 * 1024)
    a(f"s_mov_b32 s{sO0}, {f32bits(SC):#x}")
    a(f"v_and_b32 v{t0}, 7, v0")
    a(f"v_lshlrev_b32 v{t1}, 1, v{vHH}")
    a(f"v_xor_b32 v{t0}, v{t0}, v{t1}")
    a(f"v_lshlrev_b32 v{t0}, 4, v{t0}")
    a(f"v_lshl_add_u32 v{t0}, v{vC}, 10, v{t0}")
    a(f"s_lshl_b32 s{sT1}, s{sWV}, 7")
    IW = EX + 32
    a(f"v_add_u32 v{IW}, s{sT1}, v{t0}")
    for k, x in enumerate((16, 64, 80)):
        a(f"v_xor_b32 v{IW+1+k}, {x}, v{IW}")
    for k in range(4):
        a(f"v_add_u32 v{IW+4+k}, 0x10000, v{IW+k}")
    A_, B_, C_, E_, P_, M_, Pi, Mi = range(FR, FR + 8)
    U0, U1, V0, V1 = range(FR + 8, FR + 12)
    w1r, w1i, w2r, w2i = range(FR + 12, FR + 16)
    OU = FR + 16; OV = FR + 24
    K0, K1 = EX + 40, EX + 41
    def unpack(w):
        a(f"v_lshlrev_b32 v{w1r}, 16, v{w}")
        a(f"v_and_b32 v{w1i}, 0xffff0000, v{w}")
        a(f"v_lshlrev_b32 v{w2r}, 16, v{w+1}")
        a(f"v_and_b32 v{w2i}, 0xffff0000, v{w+1}")
    for i in range(4):
        for u in range(2):
            for q in range(8):
                ab = 128 * u + 32 * i + 2 * q
                a(f"v_accvgpr_read_b32 v{A_}, a{ab}")
                a(f"v_accvgpr_read_b32 v{B_}, a{ab+1}")
                a(f"v_accvgpr_read_b32 v{C_}, a{ab+16}")
                a(f"v_accvgpr_read_b32 v{E_}, a{ab+17}")
                unpack(wreg(u, i, q))
                a(f"v_add_f32 v{P_}, v{w1r}, v{w2r}")
                a(f"v_sub_f32 v{M_}, v{w1r}, v{w2r}")
                a(f"v_add_f32 v{Pi}, v{w1i}, v{w2i}")
                a(f"v_sub_f32 v{Mi}, v{w1i}, v{w2i}")
                a(f"v_pk_mul_f32 {vr(U0,2)}, {vr(A_,2)}, {vr(P_,2)} op_sel_hi:[1,0]")
                a(f"v_pk_mul_f32 {vr(V0,2)}, {vr(C_,2)}, {vr(P_,2)} op_sel_hi:[1,0]")
                a(f"v_pk_fma_f32 {vr(U0,2)}, {vr(A_,2)}, {vr(Pi,2)}, {vr(U0,2)} op_sel:[1,1,0] op_sel_hi:[0,1,1] neg_hi:[1,0,0]")
                a(f"v_pk_fma_f32 {vr(V0,2)}, {vr(C_,2)}, {vr(Pi,2)}, {vr(V0,2)} op_sel:[1,1,0] op_sel_hi:[0,1,1] neg_hi:[1,0,0]")
                if i == 0:
                    a(f"v_mul_f32 v{K0}, 0.5, v{U0}")
                    a(f"v_mul_f32 v{K1}, 0.5, v{U1}")
                a(f"v_pk_fma_f32 {vr(U0,2)}, {vr(C_,2)}, {vr(P_,2)}, {vr(U0,2)} op_sel:[1,1,0] op_sel_hi:[0,1,1] neg_lo:[1,0,0]")
                a(f"v_pk_fma_f32 {vr(V0,2)}, {vr(A_,2)}, {vr(P_,2)}, {vr(V0,2)} op_sel:[1,1,0] op_sel_hi:[0,1,1] neg_hi:[1,0,0]")
                a(f"v_pk_fma_f32 {vr(U0,2)}, {vr(C_,2)}, {vr(Pi,2)}, {vr(U0,2)} op_sel_hi:[1,0,1]")
                a(f"v_pk_fma_f32 {vr(V0,2)}, {vr(A_,2)}, {vr(Pi,2)}, {vr(V0,2)} op_sel_hi:[1,0,1] neg_lo:[1,0,0] neg_hi:[1,0,0]")
                first = (u == 0 and q == 0)
                if first:
                    a(f"s_mov_b64 exec, s[{sMA}:{sMA+1}]")
                    a(f"v_mul_f32 v{U0}, v{A_}, v{w1r}")
                    a(f"v_mul_f32 v{U1}, v{B_}, v{w2r}")
                    if i == 0:
                        a(f"v_mul_f32 v{K0}, 0.5, v{U0}")
                        a(f"v_mul_f32 v{K1}, 0.5, v{U1}")
                    a(f"v_fma_f32 v{U0}, v{C_}, v{w1i}, v{U0}")
                    a(f"v_fma_f32 v{U1}, v{E_}, v{w2i}, v{U1}")
                    a(f"v_mul_f32 v{V0}, v{C_}, v{w1r}")
                    a(f"v_fma_f32 v{V0}, -v{A_}, v{w1i}, v{V0}")
                    a(f"v_mul_f32 v{V1}, v{E_}, v{w2r}")
                    a(f"v_fma_f32 v{V1}, -v{B_}, v{w2i}, v{V1}")
                    a("s_mov_b64 exec, -1")
                if i == 0:
                    for k in range(4):
                        if first:
                            a(f"v_mov_b32 v{w1r+k}, v{Y+k}")
                        else:
                            a(f"v_mov_b32_dpp v{w1r+k}, v{Y+k} row_shl:{8*u+q} row_mask:0xf bank_mask:0xf")
                    a(f"s_mov_b64 exec, s[{sMB}:{sMB+1}]")
                    a(f"v_mov_b32 v{U0}, v{K0}")
                    a(f"v_mov_b32 v{U1}, v{K1}")
                    a(f"v_add_f32 v{P_}, v{w1r}, v{w2r}")
                    a(f"v_sub_f32 v{Mi}, v{w1i}, v{w2i}")
                    a(f"v_mul_f32 v{V0}, v{C_}, v{P_}")
                    a(f"v_mul_f32 v{V1}, v{E_}, v{P_}")
                    a(f"v_fma_f32 v{V0}, v{E_}, v{Mi}, v{V0}")
                    a(f"v_fma_f32 v{V1}, -v{C_}, v{Mi}, v{V1}")
                    if first:
                        a(f"s_and_b64 exec, s[{sMB}:{sMB+1}], s[{sMA}:{sMA+1}]")
                        a(f"v_mul_f32 v{V0}, v{C_}, v{w1r}")
                        a(f"v_mul_f32 v{V1}, v{E_}, v{w2r}")
                        a(f"s_mov_b64 exec, s[{sMB}:{sMB+1}]")
                    a(f"v_mul_f32 v{V0}, 0.5, v{V0}")
                    a(f"v_mul_f32 v{V1}, 0.5, v{V1}")
                    a("s_mov_b64 exec, -1")
                for r in (U0, U1, V0, V1):
                    a(f"v_mul_f32 v{r}, s{sO0}, v{r}")
                a(f"v_cvt_pk_bf16_f32 v{OU+q}, v{U0}, v{U1}")
                a(f"v_cvt_pk_bf16_f32 v{OV+q}, v{V0}, v{V1}")
            for q in range(2):
                ad = IW + 4 * (i >> 1) + 2 * u + q
                a(f"ds_write_b128 v{ad}, {vr(OU+4*q,4)} offset:{(i&1)*32768}")
                a(f"ds_write_b128 v{ad}, {vr(OV+4*q,4)} offset:{(i&1)*32768 + 512}")
    a(f"s_lshl_b32 s{sO0}, s{sDB}, 20")
    a(f"s_lshl_b32 s{sT1}, s{sE}, 2")
    a(f"s_add_u32 s{sT1}, s{sT1}, s{sFI}")
    a(f"s_lshl_b32 s{sT1}, s{sT1}, 9")
    a(f"s_add_u32 s{sO0}, s{sO0}, s{sT1}")
    a(f"s_add_u32 s{sO0}, s{sO0}, {HT_OFF:#x}")
    image_out(1, 256, 4096, sO0)
    fbarrier(1)
    prof.mark(7)
    gemm(3)
    prof.mark(8)
    epi_rows(False)
    a(f"s_lshl_b32 s{sT1}, s{sE}, 2")
    a(f"s_add_u32 s{sT1}, s{sT1}, s{sFI}")
    a(f"s_lshl_b32 s{sO0}, s{sT1}, 19")
    a(f"s_lshl_b32 s{sT1}, s{sDB}, 9")
    a(f"s_add_u32 s{sO0}, s{sO0}, s{sT1}")
    a(f"s_add_u32 s{sO0}, s{sO0}, {Z_OFF:#x}")
    image_out(0, 256, 2048, sO0)
    fbarrier(2)
    prof.mark(9)
    gemm(4, 0)
    gemm(4, 1)
    dbg_time(a, 7)
    prof.mark(10)
    a(f"s_lshl_b32 s{sT1}, s{sWV}, 15")
    a(f"v_lshlrev_b32 v{t0}, 4, v0")
    a(f"v_add_u32 v{vLR}, s{sT1}, v{t0}")
    for i in range(4):
        AE, AO, BE, BO, S0, S1 = (BIG + 16 * k for k in range(6))
        for r in range(16):
            a(f"v_accvgpr_read_b32 v{AE+r}, a{16*i+r}")
            a(f"v_accvgpr_read_b32 v{AO+r}, a{64+16*i+r}")
            a(f"v_accvgpr_read_b32 v{BE+r}, a{128+16*i+r}")
            a(f"v_accvgpr_read_b32 v{BO+r}, a{192+16*i+r}")
        NEG = "neg_lo:[0,1] neg_hi:[0,1]"
        for r in range(0, 16, 2):
            a(f"v_pk_add_f32 {vr(S0+r,2)}, {vr(AE+r,2)}, {vr(AO+r,2)}")
            a(f"v_pk_add_f32 {vr(AE+r,2)}, {vr(AE+r,2)}, {vr(AO+r,2)} {NEG}")
            a(f"v_pk_add_f32 {vr(S1+r,2)}, {vr(BE+r,2)}, {vr(BO+r,2)}")
            a(f"v_pk_add_f32 {vr(BE+r,2)}, {vr(BE+r,2)}, {vr(BO+r,2)} {NEG}")
        for hn, (x, y) in enumerate(((S0, S1), (AE, BE))):
            for hd in range(2):
                o = FR + 8 * (2 * hn + hd)
                for r in range(0, 16, 2):
                    a(f"v_pk_add_f32 {vr(AO,2)}, {vr(x+r,2)}, {vr(y+r,2)} {NEG if hd else ''}")
                    a(f"v_cvt_pk_bf16_f32 v{o+r//2}, v{AO}, v{AO+1}")
                for q in range(2):
                    a(f"ds_write_b128 v{vLR}, {vr(o+4*q,4)} offset:{((hn*4+i)*2+hd)*2048 + 1024*q}")
    vXA = vW1; vFA = vW2; vGA = vW20
    a(f"v_lshrrev_b32 v{t2}, 2, v{vC}")
    a(f"v_and_b32 v{t3}, 3, v0")
    a(f"v_lshlrev_b32 v{t0}, 11, v{t2}")
    a(f"v_lshl_add_u32 v{t0}, v{vHH}, 8, v{t0}")
    a(f"v_lshl_add_u32 v{t0}, v{t3}, 4, v{t0}")
    a(f"s_lshr_b32 s{sT0}, s{sX}, 2")
    a(f"s_lshl_b32 s{sT0}, s{sT0}, 10")
    a(f"s_and_b32 s{sT1}, s{sX}, 3")
    a(f"s_lshl_b32 s{sT1}, s{sT1}, 6")
    a(f"s_add_u32 s{sT0}, s{sT0}, s{sT1}")
    a(f"v_add_u32 v{vXA}, s{sT0}, v{t0}")
    a(f"v_cmp_eq_u32 s[{sMB}:{sMB+1}], 7, v{t2}")
    a(f"v_cmp_ne_u32 s[{sMA}:{sMA+1}], 7, v{t2}")
    a(f"v_lshl_add_u32 v{t0}, v{t2}, 5, v{t3}")
    a(f"s_lshl_b32 s{sT0}, s{sX}, 2")
    a(f"v_add_u32 v{t0}, s{sT0}, v{t0}")
    a(f"v_lshlrev_b32 v{vGA}, 2, v{t0}")
    a(f"v_lshlrev_b32 v{vOA}, 11, v{t0}")
    a(f"v_lshl_add_u32 v{vOA}, v{vHH}, 5, v{vOA}")
    a(f"v_and_b32 v{t0}, 7, v0")
    a(f"v_lshlrev_b32 v{t0}, 2, v{t0}")
    a(f"v_bfe_u32 v{t1}, v0, 3, 1")
    a(f"v_lshl_add_u32 v{vFA}, v{t1}, 17, v{t0}")
    a(f"s_lshl_b32 s{sO3}, s{sFI}, 2")
    a(f"s_add_u32 s{sO3}, s{sO3}, s{sWV}")
    a(f"s_lshl_b32 s{sO0}, s{sO3}, 17")
    a(f"s_add_u32 s{sO0}, s{sO0}, {XPART_OFF:#x}")
    a(f"s_lshl_b32 s{sO1}, s{sO3}, 13")
    a(f"s_add_u32 s{sO1}, s{sO1}, {FLG_OFF:#x}")
    a(f"s_lshl_b32 s{sO2}, s{sO3}, 6")
    a(f"s_mov_b32 s{sLB}, {GATE_OFF:#x}")
    a(f"s_mov_b32 s{sK}, 0")
    SUM = FR; BV = FR + 16; GV = EX; BP = EX + 4; OP = EX + 24
    L = a.newlabel("f_mix")
    a.label(L)
    a(f"buffer_load_dword v{GV}, v{vGA}, {WS}, s{sLB} offen sc1")
    for k in range(4):
        a(f"ds_read_b128 {vr(BP+4*k,4)}, v{vLR} offset:{1024*k}")
    a(f"v_add_u32 v{vLR}, 4096, v{vLR}")
    for ph in range(2):
        PL = a.newlabel("f_fl"); PF = a.newlabel("f_fl1"); PS = a.newlabel("f_fl2")
        a(f"s_branch {PF}")
        a.label(PL)
        if ph == 1:
            a(f"s_cmp_eq_u32 s{sK}, 7")
            a(f"s_cbranch_scc1 {PS}")
        a(f"s_sleep {Cfg.f_sleep}")
        a.label(PS)
        a("s_sleep 2")
        a(f"s_sub_u32 s{sBUD}, s{sBUD}, 1")
        a(f"s_cbranch_scc1 {a.abort}")
        a.label(PF)
        a(f"buffer_load_dword v{t2}, v{vFA}, {WS}, s{sO1} offen offset:{(6+ph)*128} sc1")
        a("s_waitcnt vmcnt(0)")
        a(f"v_cmp_eq_u32 vcc, -1, v{t2}")
        a(f"s_cbranch_vccnz {PL}")
        a(f"s_mov_b64 exec, s[{sMA+2*ph}:{sMA+2*ph+1}]")
        for hd in range(2):
            a(f"s_add_u32 s{sT0}, s{sO0}, {hd*16<<17:#x}")
            for p in range(8):
                for u in range(2):
                    a(f"buffer_load_dwordx4 {vr(BIG+64*hd+8*p+4*u,4)}, v{vXA}, {WS}, s{sT0} offen offset:{512*u} sc1")
                if p < 7:
                    a(f"s_add_u32 s{sT0}, s{sT0}, {4*MB:#x}")
        a("s_mov_b64 exec, -1")
    a("s_waitcnt lgkmcnt(0)")
    for hd in range(2):
        for r in range(8):
            a(f"v_lshlrev_b32 v{BV+2*r}, 16, v{BP+8*hd+r}")
            a(f"v_and_b32 v{BV+2*r+1}, 0xffff0000, v{BP+8*hd+r}")
        for p in range(8):
            a(f"s_waitcnt vmcnt({30-16*hd-2*p + 2*hd})")
            for r in range(8):
                src = BIG + 64 * hd + 8 * p + r
                d = SUM + 2 * r if p == 0 else EX + 20
                a(f"v_lshlrev_b32 v{d}, 16, v{src}")
                a(f"v_and_b32 v{d+1}, 0xffff0000, v{src}")
                if p:
                    a(f"v_pk_add_f32 {vr(SUM+2*r,2)}, {vr(SUM+2*r,2)}, {vr(d,2)}")
        for r in range(0, 16, 2):
            a(f"v_pk_add_f32 {vr(SUM+r,2)}, {vr(SUM+r,2)}, {vr(BV+r,2)} neg_lo:[0,1] neg_hi:[0,1]")
            a(f"v_pk_fma_f32 {vr(SUM+r,2)}, {vr(SUM+r,2)}, {vr(GV,2)}, {vr(BV+r,2)} op_sel_hi:[1,0,1]")
            a(f"v_cvt_pk_bf16_f32 v{OP+8*hd+r//2}, v{SUM+r}, v{SUM+r+1}")
        for u in range(2):
            a(f"buffer_store_dwordx4 {vr(OP+8*hd+4*u,4)}, v{vOA}, {OUTS}, s{sO2} offen offset:{1024*hd + 16*u}")
    a(f"s_add_u32 s{sO0}, s{sO0}, 16384")
    a(f"s_add_u32 s{sO1}, s{sO1}, 1024")
    a(f"s_add_u32 s{sO2}, s{sO2}, {256*2048}")
    a(f"s_add_u32 s{sLB}, s{sLB}, 1024")
    a(f"s_add_u32 s{sK}, s{sK}, 1")
    a(f"s_cmp_lt_u32 s{sK}, 8")
    a(f"s_cbranch_scc1 {L}")
    dbg_time(a, 6)
    prof.mark(20)
    prof.dump()
    a("s_endpgm")
```

```python
from gen import *

def role_or(a, mode):
    loc = "" if mode == 0 else "sc1"
    va = VAlloc()
    sB, sJ, sVM, sVX, sPP, sPX, sPARTw, sPARTr, sTW, sXPW, sFL = 72, 74, 75, 76, 77, 78, 79, 80, 81, 82, 83
    sA, sBb, sC, sD, sE, sF, sG = 85, 86, 87, 88, 89, 90, 91
    sR0, sR1, sMp, sMr = 84, 71, sT4, sT5
    sM0 = 92
    PXL = 32768
    VML = 49152
    PPL_ = 57344
    a(f"s_sub_u32 s{sJ}, s{sSLOT}, 12")
    a(f"s_lshl_b32 s{sT2}, s{sX}, 20")
    a(f"s_lshl_b32 s{sT1}, s{sJ}, 8")
    a(f"s_add_u32 s{sT2}, s{sT2}, s{sT1}")
    a(f"s_add_u32 s{S_W}, s{P_WO}, s{sT2}")
    a(f"s_addc_u32 s{S_W+1}, s{P_WO+1}, 0")
    a(f"s_sub_u32 s{S_W+2}, {8*MB:#x}, s{sT2}")
    a(f"s_mov_b32 s{S_W+3}, 0x00020000")
    a(f"s_lshl_b32 s{sVM}, s{sX}, 2")
    a(f"s_add_u32 s{sVM}, s{sVM}, s{sWV}")
    a(f"s_lshl_b32 s{sVM}, s{sVM}, 13")
    a(f"s_add_u32 s{sVM}, s{sVM}, {PM_OFF + 64*8192:#x}")
    a(f"s_lshl_b32 s{sT0}, s{sX}, 2")
    a(f"s_lshr_b32 s{sT1}, s{sWV}, 1")
    a(f"s_add_u32 s{sT0}, s{sT0}, s{sT1}")
    a(f"s_lshl_b32 s{sVX}, s{sT0}, {XP_SH}")
    a(f"s_and_b32 s{sT1}, s{sWV}, 1")
    a(f"s_lshl_b32 s{sT1}, s{sT1}, 12")
    a(f"s_add_u32 s{sVX}, s{sVX}, s{sT1}")
    a(f"s_add_u32 s{sVX}, s{sVX}, {64<<XP_SH:#x}")
    a(f"s_lshl_b32 s{sPP}, s{sX}, 14")
    a(f"s_add_u32 s{sPP}, s{sPP}, {PP_OFF:#x}")
    a(f"s_min_u32 s{sT1}, s{sWV}, 2")
    a(f"s_lshl_b32 s{sT1}, s{sT1}, 10")
    a(f"s_add_u32 s{sPP}, s{sPP}, s{sT1}")
    a(f"s_lshl_b32 s{sTW}, s{sX}, 12")
    a(f"s_lshl_b32 s{sT1}, s{sJ}, 7")
    a(f"s_add_u32 s{sTW}, s{sTW}, s{sT1}")
    a(f"s_add_u32 s{sTW}, s{sTW}, {TW_OFF:#x}")
    a(f"s_lshl_b32 s{sPX}, s{sX}, 16")
    a(f"s_mul_i32 s{sT1}, s{sWV}, 3072")
    a(f"s_add_u32 s{sPX}, s{sPX}, s{sT1}")
    a(f"s_add_u32 s{sPX}, s{sPX}, {PX_OFF:#x}")
    a(f"s_lshl_b32 s{sT0}, s{sJ}, 2")
    a(f"s_add_u32 s{sT0}, s{sT0}, s{sWV}")
    a(f"s_and_b32 s{sT1}, s{sT0}, 15")
    a(f"s_lshl_b32 s{sT1}, s{sT1}, 9")
    a(f"s_lshr_b32 s{sT2}, s{sT0}, 4")
    a(f"s_lshl_b32 s{sT2}, s{sT2}, 14")
    a(f"s_add_u32 s{sT1}, s{sT1}, s{sT2}")
    a(f"s_add_u32 s{sPARTr}, s{sT1}, {PART_OFF:#x}")
    a(f"s_lshl_b32 s{sT2}, s{sX}, 15")
    a(f"s_add_u32 s{sPARTw}, s{sPARTr}, s{sT2}")
    a(f"s_lshl_b32 s{sT1}, s{sT0}, 17")
    a(f"s_add_u32 s{sXPW}, s{sT1}, {XPART_OFF:#x}")
    a(f"s_lshl_b32 s{sT2}, s{sX}, 22")
    a(f"s_add_u32 s{sXPW}, s{sXPW}, s{sT2}")
    a(f"s_lshl_b32 s{sFL}, s{sT0}, 13")
    a(f"s_lshl_b32 s{sT1}, s{sX}, 2")
    a(f"s_add_u32 s{sFL}, s{sFL}, s{sT1}")
    a(f"s_add_u32 s{sFL}, s{sFL}, {FLG_OFF:#x}")
    prof = Prof(a, va)
    vW, vTR, t0, t1 = weight_addr_setup(a, va, 2048, sB, True)
    t2 = va.get(); vtmp = va.get()
    vL16 = va.get(); vPW = va.get(); vPF = va.get(); vMW = va.get(); vFL = va.get(); vZ = va.get()
    vSEN = va.get(4, 4)
    a(f"v_lshlrev_b32 v{vL16}, 4, v0")
    a(f"v_lshrrev_b32 v{t0}, 5, v0")
    a(f"v_and_b32 v{t1}, 15, v0")
    a(f"v_lshl_add_u32 v{t0}, v{t0}, 4, v{t1}")
    a(f"v_lshlrev_b32 v{t0}, 4, v{t0}")
    a(f"v_bfe_u32 v{t1}, v0, 4, 1")
    a(f"v_lshl_add_u32 v{vPW}, v{t1}, 13, v{t0}")
    a(f"s_lshl_b32 s{sT0}, s{sWV}, 10")
    a(f"s_add_u32 s{sT0}, s{sT0}, {PPL_}")
    a(f"v_add_u32 v{vPF}, s{sT0}, v{vL16}")
    a(f"s_lshl_b32 s{sT0}, s{sWV}, 11")
    a(f"s_add_u32 s{sT0}, s{sT0}, {VML}")
    a(f"v_add_u32 v{vMW}, s{sT0}, v{vL16}")
    for r in range(4):
        a(f"v_mov_b32 v{vSEN+r}, -1")
    a(f"v_mov_b32 v{vZ}, 0")
    a(f"v_lshlrev_b32 v{t0}, 7, v0")
    a(f"buffer_store_dword v{vSEN}, v{t0}, {WS}, s{sFL} offen sc1")
    a(f"v_min_u32 v{t0}, 1, v0")
    a(f"v_lshlrev_b32 v{vFL}, 28, v{t0}")
    vTWo = va.get()
    a(f"s_cmp_eq_u32 s{sWV}, 3")
    a(f"s_cselect_b32 s{sT0}, 0, 0x10000000")
    a(f"v_or_b32 v{vTWo}, s{sT0}, v{vFL}")
    for sl in range(4):
        a(f"buffer_store_dword v{vSEN}, v{vTWo}, {WS}, s{sTW} offen offset:{sl*1024} {loc}")
        a(f"s_add_u32 s{sT0}, s{sPARTw}, {sl*262144}")
        a(f"buffer_store_dwordx4 {vr(vSEN,4)}, v{vPW}, {WS}, s{sT0} offen sc1")
    PK = va.get(4, 4)
    prof.mark(2)
    weight_dma(a, vW, 0, 0, 2048, sB)
    weight_dma(a, vW, 1, 1, 2048, sB)
    vIDX = va.get()
    idx_setup(a, vIDX, t0)

    PXR = va.get(48, 4)
    VM = PXR
    UA = va.get(32, 4)
    UX = va.get(32, 8); UM = va.get(16, 8)
    FR = PXR
    VO = va.get(8, 4); PPR = FR; XO = va.get(8, 4)
    ACC = UA
    WT = PXR
    assert UA == PXR + 48
    a(f"v_and_b32 v{t0}, 2, v0")
    a(f"v_cmp_eq_u32 s[92:93], 0, v{t0}")
    a(f"v_cmp_ne_u32 s[94:95], 0, v{t0}")
    for c in range(2):
        a(f"s_waitcnt vmcnt({16 if c == 0 else 0})")
        a("s_barrier")
        if c == 0:
            signal(a, DBG_H1, 1)
        for ks in range(8):
            for t in range(2):
                for q in range(2):
                    d = (ks >> 1) * 16 + t * 8 + (ks & 1) * 4 + 2 * q
                    a(f"ds_read_b64_tr_b16 {vr(WT+d,2)}, v{vTR[c][q]} offset:{ks*8192 + 8*t}")
        a("s_waitcnt lgkmcnt(0)")
        for t in range(2):
            a(f"s_mov_b64 vcc, s[{92+2*t}:{93+2*t}]")
            for kb in range(4):
                for r in range(8):
                    A = WT + kb * 16 + r; B = A + 8
                    if t == 0:
                        a(f"v_cndmask_b32_dpp v{vtmp}, v{B}, v{A}, vcc quad_perm:[0,1,0,1] row_mask:0xf bank_mask:0xf")
                    else:
                        a(f"v_cndmask_b32_dpp v{vtmp}, v{A}, v{B}, vcc quad_perm:[2,3,2,3] row_mask:0xf bank_mask:0xf")
                    a(f"v_accvgpr_write_b32 a{c*64 + kb*16 + 8*t + r}, v{vtmp}")
                    a("s_nop 0")
    a("s_barrier")
    prof.mark(8)
    handshake_wait(a, mode, t0, t1, 8)
    prof.mark(9)

    def vm_loads():
        return [f"buffer_load_dwordx4 {vr(VO+4*b,4)}, v{vL16}, {WS}, s{sA} offen offset:{1024*b} sc1" for b in range(2)]
    def vm_slots():
        a(f"s_and_b32 s{sT0}, s{sS}, 3")
        a(f"s_lshl_b32 s{sT0}, s{sT0}, 11")
        a(f"s_add_u32 s{sA}, s{sT0}, s{sVM}")
    def vx_setup():
        a(f"s_add_u32 s{sT0}, s{sS}, 1")
        a(f"s_and_b32 s{sT0}, s{sT0}, {XP_MASK}")
        a(f"s_lshl_b32 s{sT0}, s{sT0}, 13")
        a(f"s_add_u32 s{sE}, s{sT0}, s{sVX}")
        a(f"s_add_u32 s{sF}, s{sE}, {2<<XP_SH:#x}")
    def vx_dma(pair):
        a(f"s_lshl_b32 m0, s{sWV}, 12")
        if pair:
            a("s_add_u32 m0, m0, 16384")
        a("s_nop 0")
        for i in range(4):
            a(f"buffer_load_dwordx4 v{vL16}, {WS}, s{sE+pair} offen offset:{1024*i} sc1 lds")
    def px_dma():
        a(f"s_mul_i32 m0, s{sWV}, 3072")
        a(f"s_add_u32 m0, m0, {PXL}")
        a("s_nop 0")
        for i in range(3):
            a(f"buffer_load_dwordx4 v{vL16}, {WS}, s{sG} offen offset:{1024*i} sc1 lds")
    def ux_all(dst, extra={}, mid=None):
        frs = [(hl, ks, rt) for hl in range(4) for ks in range(4) for rt in range(2)]
        DEPTH = 5; NR = 8
        def rd(f):
            hl, ks, rt = frs[f]
            a(f"ds_read_b128 {vr(FR+4*(f%NR),4)}, v{vL16} offset:{hl*8192 + rt*4096 + ks*1024}")
        def cvts(hl):
            base = UA + 16 * (hl & 1)
            out = []
            for t in range(2):
                for rt in range(2):
                    acc = base + 8 * rt + 4 * t
                    d = dst + 16 * t + 4 * hl + 2 * rt
                    out.append(f"v_cvt_pk_bf16_f32 v{d}, v{acc}, v{acc+1}")
                    out.append(f"v_cvt_pk_bf16_f32 v{d+1}, v{acc+2}, v{acc+3}")
            return out
        for f in range(DEPTH):
            rd(f)
        pend = []
        for f in range(32):
            hl, ks, rt = frs[f]
            if mid and f + DEPTH == 16:
                mid(f)
            a(f"s_waitcnt lgkmcnt({min(DEPTH-1, 31-f)})")
            if hl > 0 and f % 8 == 3:
                pend = cvts(hl - 1)
            for t in range(2):
                acc = UA + 16 * (hl & 1) + 8 * rt + 4 * t
                c = "0" if ks == 0 else vr(acc, 4)
                a(f"v_mfma_f32_16x16x32_bf16 {vr(acc,4)}, {vr(FR+4*(f%NR),4)}, {ar((2*hl+(ks>>1))*16+8*t+4*(ks&1),4)}, {c}")
                if t == 0 and f + DEPTH < 32:
                    rd(f + DEPTH)
                if t == 1:
                    for l in extra.get(f, []):
                        a(l)
                if pend:
                    a(pend.pop(0))
        return cvts(3)

    a(f"s_mov_b32 s{sS}, -1")
    vm_slots()
    poll(a, vm_loads(), range(VO, VO + 8, 2), vtmp, sleep=4)
    a("s_barrier")
    prof.mark(10)
    vx_setup()
    vx_dma(0)
    vx_dma(1)
    a("s_waitcnt vmcnt(0)")
    a("s_barrier")
    last = ux_all(UX)
    a.nop(8)
    for l in last:
        a(l)
    a(f"s_mov_b32 s{sS}, 0")
    dbg_time(a, 9)
    prof.mark(11)
    PQ = va.get(4, 4)
    PA = va.get(8, 4)
    LOOP = a.newlabel("or_loop")
    a.label(LOOP)
    for r in range(32):
        a(f"v_mov_b32 v{UA+r}, 0")
    for r in range(8):
        a(f"v_mov_b32 v{PA+r}, 0")
    vm_slots()
    vx_setup()
    a(f"s_and_b32 s{sT0}, s{sS}, 3")
    a(f"s_lshl_b32 s{sBb}, s{sT0}, 12")
    a(f"s_add_u32 s{sBb}, s{sBb}, s{sPP}")
    a(f"s_lshl_b32 s{sG}, s{sT0}, 14")
    a(f"s_add_u32 s{sG}, s{sG}, s{sPX}")
    a(f"s_lshl_b32 s{sC}, s{sT0}, 18")
    a(f"s_xor_b32 s{sD}, s{sC}, {2<<18:#x}")
    a(f"s_add_u32 s{sC}, s{sC}, s{sPARTw}")
    a(f"s_add_u32 s{sD}, s{sD}, s{sPARTw}")
    a(f"s_lshl_b32 s{sT4}, s{sT0}, 10")
    a(f"s_xor_b32 s{sT5}, s{sT4}, 2048")
    a(f"s_add_u32 s{sT4}, s{sT4}, s{sTW}")
    a(f"s_add_u32 s{sT5}, s{sT5}, s{sTW}")
    prof.stamp(0)
    a("s_waitcnt vmcnt(0)")
    poll2(a, vm_loads(), range(VO, VO + 8, 2), vtmp, gap=2)
    prof.stamp(1)
    for b in range(2):
        a(f"ds_write_b128 v{vMW}, {vr(VO+4*b,4)} offset:{1024*b}")
    a(f"s_lshl_b32 m0, s{sWV}, 12")
    a("s_waitcnt lgkmcnt(0)")
    a("s_barrier")
    for k in range(8):
        a(f"ds_read_b128 {vr(VM+4*k,4)}, v{vL16} offset:{VML + 1024*k}")
    PP1 = f"buffer_load_dwordx4 {vr(PQ,4)}, v{vL16}, {WS}, s{sBb} offen sc1"
    def um_cvt(hl):
        for t in range(2):
            acc = UA + 8 * hl + 4 * t
            a(f"v_cvt_pk_bf16_f32 v{UM+8*t+2*hl}, v{acc}, v{acc+1}")
            a(f"v_cvt_pk_bf16_f32 v{UM+8*t+2*hl+1}, v{acc+2}, v{acc+3}")
    for hl in range(4):
        for b in range(2):
            a(f"s_waitcnt lgkmcnt({7-2*hl-b})")
            for t in range(2):
                a(f"v_smfmac_f32_16x16x64_bf16 {vr(UA+8*hl+4*t,4)}, {vr(VM+8*hl+4*b,4)}, {ar((2*hl+b)*16+8*t,8)}, v{vIDX}")
                if hl < 2 and t == 1:
                    a(f"buffer_load_dwordx4 v{vL16}, {WS}, s{sE} offen offset:{1024*(2*hl+b)} sc1 lds")
                if (hl, b, t) == (Cfg.pp_prime, 0, 1):
                    a(PP1)
                if hl >= 2:
                    acc = UA + 8 * (hl - 2) + 4 * b
                    a(f"v_cvt_pk_bf16_f32 v{UM+8*b+2*(hl-2)+t}, v{acc+2*t}, v{acc+2*t+1}")
    um_cvt(2)
    a(f"s_mul_i32 m0, s{sWV}, 3072")
    a(f"s_add_u32 m0, m0, {PXL}")
    NL = a.newlabel("or_notlast"); PXW = a.newlabel("or_pxwait")
    a(f"s_cmp_lt_u32 s{sS}, 63")
    a("s_nop 0")
    um_cvt(3)
    prof.stamp(2, keep_m0=True)
    PXD = [f"buffer_load_dwordx4 v{vL16}, {WS}, s{sG} offen offset:{1024*i} sc1 lds" for i in range(3)]
    a(f"s_cbranch_scc1 {NL}")
    for l in PXD:
        a(l)
    a("s_waitcnt vmcnt(0)")
    a(f"s_branch {PXW}")
    a.label(NL)
    poll2(a, [PP1], range(PQ, PQ + 4), vtmp, primed=True)
    prof.stamp(6, keep_m0=True)
    a(f"ds_write_b128 v{vPF}, {vr(PQ,4)}")
    WARM = f"v_mfma_f32_16x16x32_bf16 {vr(UA,4)}, {vr(UM,4)}, {vr(UM,4)}, 0"
    for i in range(Cfg.warm1):
        a(WARM)
    a("s_waitcnt lgkmcnt(0)")
    a("s_barrier")
    for k in range(3):
        a(f"ds_read_b128 {vr(PPR+4*k,4)}, v{vL16} offset:{PPL_ + 1024*k}")
    a(f"buffer_store_dword v{vZ}, v{vTWo}, {WS}, s{sT4} offen {loc}")
    for l in PXD:
        a(l)
    for i in range(Cfg.warm2):
        a(WARM)
    for k in range(3):
        a(f"s_waitcnt lgkmcnt({2-k})")
        for t in range(2):
            b = UX + 16 * t + 8 * k if k < 2 else UM + 8 * t
            a(f"v_smfmac_f32_16x16x64_bf16 {vr(PA+4*t,4)}, {vr(PPR+4*k,4)}, {vr(b,8)}, v{vIDX}")
    a.nop(8)
    for r in range(4):
        a(f"v_permlane32_swap_b32 v{PA+r}, v{PA+4+r}")
    for r in range(0, 4, 2):
        a(f"v_pk_add_f32 {vr(PA+r,2)}, {vr(PA+r,2)}, {vr(PA+4+r,2)}")
    a(f"v_cvt_pk_bf16_f32 v{PK}, v{PA}, v{PA+1}")
    a(f"v_cvt_pk_bf16_f32 v{PK+1}, v{PA+2}, v{PA+3}")
    a(f"v_cvt_pk_bf16_f32 v{PK+3}, v{PA+2}, v{PA+3}")
    a(f"v_min_u32 v{PK+2}, -2, v{PK}")
    a(f"v_min_u32 v{PK}, -2, v{PK}")
    a(f"v_permlane16_swap_b32 v{PK+1}, v{PK+3}")
    a("s_nop 0")
    a(f"v_permlane16_swap_b32 v{PK}, v{PK+2}")
    a(f"buffer_store_dwordx4 {vr(PK,4)}, v{vPW}, {WS}, s{sC} offen sc1")
    prof.stamp(4)
    a("s_waitcnt vmcnt(1)")
    a.label(PXW)
    RETRY = a.newlabel("or_pxretry"); PXOK = a.newlabel("or_pxok")
    a("s_barrier")
    vx_dma(1)
    a.label(RETRY)
    order = [(ks, rt) for ks in range(6) for rt in range(2)]
    for ks, rt in order:
        k = 6 * rt + ks
        a(f"ds_read_b128 {vr(PXR+4*k,4)}, v{vL16} offset:{PXL + 1024*k}")
    a(f"v_mov_b32 v{vtmp}, 0")
    for n, (ks, rt) in enumerate(order):
        k = 6 * rt + ks
        a(f"s_waitcnt lgkmcnt({11-n})")
        for t in range(2):
            u = UX + 16 * t + 4 * ks if ks < 4 else UM + 8 * t + 4 * (ks - 4)
            acc = ACC + 8 * rt + 4 * t
            c = "0" if ks == 0 else vr(acc, 4)
            a(f"v_mfma_f32_16x16x32_bf16 {vr(acc,4)}, {vr(u,4)}, {vr(PXR+4*k,4)}, {c}")
        a(f"v_max3_u32 v{vtmp}, v{vtmp}, v{PXR+4*k}, v{PXR+4*k+2}")
    a(f"v_cmp_eq_u32 vcc, -1, v{vtmp}")
    a(f"s_cbranch_vccz {PXOK}")
    a("s_barrier")
    px_dma()
    a("s_waitcnt vmcnt(0)")
    a("s_barrier")
    a(f"s_sub_u32 s{sBUD}, s{sBUD}, 1")
    a(f"s_cbranch_scc0 {RETRY}")
    a("s_endpgm")
    a.label(PXOK)
    a(f"s_lshl_b32 s{sT1}, s{sS}, 11")
    a(f"s_add_u32 s{sT1}, s{sT1}, s{sXPW}")
    a(f"s_sub_u32 s{sT2}, s{sS}, 1")
    a(f"s_lshl_b32 s{sT2}, s{sT2}, 7")
    a(f"s_cmp_lt_u32 s{sS}, 1")
    a(f"s_cselect_b32 s{sT2}, 64, s{sT2}")
    a(f"s_add_u32 s{sT2}, s{sT2}, s{sFL}")
    for rt in range(2):
        for t in range(2):
            acc = ACC + 8 * rt + 4 * t
            a(f"v_cvt_pk_bf16_f32 v{XO+4*rt+t}, v{acc}, v{acc+1}")
            a(f"v_cvt_pk_bf16_f32 v{XO+4*rt+2+t}, v{acc+2}, v{acc+3}")
    XST = [f"buffer_store_dwordx4 {vr(XO+4*rt,4)}, v{vL16}, {WS}, s{sT1} offen offset:{1024*rt} sc1" for rt in range(2)]
    XST.append(f"buffer_store_dword v{vZ}, v{vFL}, {WS}, s{sT2} offen sc1")
    prof.stamp(5)
    TAIL = a.newlabel("or_tail")
    a(f"s_cmp_eq_u32 s{sS}, 63")
    a(f"s_cbranch_scc1 {TAIL}")
    late = XST + [f"buffer_store_dwordx4 {vr(vSEN,4)}, v{vPW}, {WS}, s{sD} offen sc1",
                  f"buffer_store_dword v{vSEN}, v{vTWo}, {WS}, s{sT5} offen {loc}"]
    ex = {Cfg.st_at + 2 * i: [l] for i, l in enumerate(late)}
    def mid(f):
        a(f"s_waitcnt vmcnt({sum(1 for k in ex if k < f)})")
        a("s_barrier")
    last = ux_all(UX, ex, mid)
    a.nop(8)
    for l in last:
        a(l)
    prof.stamp(7)
    a(f"s_add_u32 s{sS}, s{sS}, 1")
    a(f"s_branch {LOOP}")
    a.label(TAIL)
    for l in XST:
        a(l)
    a("s_waitcnt vmcnt(0)")
    a(f"s_add_u32 s{sT0}, s{sFL}, {63<<7}")
    a(f"buffer_store_dword v{vZ}, v{vFL}, {WS}, s{sT0} offen sc1")
    prof.stamp(7)
    dbg_time(a, 10)
    prof.mark(20)
    prof.dump()
    a("s_endpgm")
```

```python
from gen import *

def role_proj(a, mode):
    loc = "" if mode == 0 else "sc1"
    va = VAlloc()
    sB, sPM, sMEM, sXP, sTY, sSL, sSL2 = 72, 74, 75, 76, 77, 78, 79
    sXM = 80
    sCL = 82
    STAGE = 131072
    a(f"s_and_b32 s{sT1}, s{sSLOT}, 3")
    a(f"s_lshr_b32 s{sTY}, s{sSLOT}, 2")
    a(f"s_lshl_b32 s{sT2}, s{sX}, 2")
    a(f"s_add_u32 s{sT1}, s{sT1}, s{sT2}")
    a(f"s_cmp_eq_u32 s{sTY}, 0")
    a(f"s_cselect_b64 s[{S_W}:{S_W+1}], s[{P_WQ}:{P_WQ+1}], s[{P_WK}:{P_WK+1}]")
    a(f"s_cmp_eq_u32 s{sTY}, 2")
    a(f"s_cselect_b64 s[{S_W}:{S_W+1}], s[{P_WV}:{P_WV+1}], s[{S_W}:{S_W+1}]")
    a(f"s_lshl_b32 s{sT2}, s{sT1}, 8")
    a(f"s_add_u32 s{S_W}, s{S_W}, s{sT2}")
    a(f"s_addc_u32 s{S_W+1}, s{S_W+1}, 0")
    a(f"s_sub_u32 s{S_W+2}, {8*MB:#x}, s{sT2}")
    a(f"s_mov_b32 s{S_W+3}, 0x00020000")
    a(f"s_lshl_b32 s{sT2}, s{sTY}, 5")
    a(f"s_add_u32 s{sT2}, s{sT2}, s{sT1}")
    a(f"s_lshl_b32 s{sPM}, s{sT2}, 13")
    a(f"s_add_u32 s{sPM}, s{sPM}, {PM_OFF:#x}")
    a(f"s_lshl_b32 s{sXP}, s{sT2}, {XP_SH}")
    a(f"s_lshl_b32 s{sT3}, s{sWV}, 10")
    a(f"s_add_u32 s{sXP}, s{sXP}, s{sT3}")
    a(f"s_lshl_b32 s{sMEM}, s{sX}, 16")
    a(f"s_lshl_b32 s{sT3}, s{sWV}, 12")
    a(f"s_add_u32 s{sMEM}, s{sMEM}, s{sT3}")
    a(f"s_add_u32 s{sMEM}, s{sMEM}, {MEM_OFF:#x}")
    prof = Prof(a, va)
    vW, vTR, t0, t1 = weight_addr_setup(a, va, 8192, sB, False)
    t2 = va.get(); t3 = va.get()
    vL16 = va.get()
    a(f"v_lshlrev_b32 v{vL16}, 4, v0")
    vPMo = va.get()
    a(f"s_cmp_eq_u32 s{sTY}, 2")
    a("s_cselect_b64 vcc, -1, 0")
    a(f"v_and_b32 v{t0}, 15, v0")
    a(f"v_lshrrev_b32 v{t1}, 5, v0")
    a(f"v_lshl_add_u32 v{t0}, v{t1}, 4, v{t0}")
    a(f"v_lshlrev_b32 v{t0}, 4, v{t0}")
    a(f"v_bfe_u32 v{t1}, v0, 4, 1")
    a(f"v_lshl_add_u32 v{t2}, v{t1}, 3, v{t0}")
    a(f"v_lshrrev_b32 v{t0}, 4, v0")
    a(f"v_lshlrev_b32 v{t0}, 7, v{t0}")
    a(f"v_and_b32 v{t1}, 7, v0")
    a(f"v_lshl_add_u32 v{t0}, v{t1}, 4, v{t0}")
    a(f"v_bfe_u32 v{t1}, v0, 3, 1")
    a(f"v_lshl_add_u32 v{t3}, v{t1}, 3, v{t0}")
    a(f"v_cndmask_b32 v{t2}, v{t3}, v{t2}, vcc")
    a(f"s_lshl_b32 s{sT3}, s{sWV}, 9")
    a(f"v_add_u32 v{vPMo}, s{sT3}, v{t2}")
    vSEN = va.get(2)
    a(f"v_mov_b32 v{vSEN}, -1")
    a(f"v_mov_b32 v{vSEN+1}, -1")
    for sl in range(4):
        a(f"s_add_u32 s{sT0}, s{sPM}, {sl*2048}")
        a(f"buffer_store_dwordx2 {vr(vSEN,2)}, v{vPMo}, {WS}, s{sT0} offen {loc}")
    prof.mark(2)
    weight_dma(a, vW, 0, 0, 8192, sB)
    weight_dma(a, vW, 1, 1, 8192, sB)
    vXD = va.get()
    a(f"v_lshrrev_b32 v{t0}, 3, v0")
    a(f"v_lshrrev_b32 v{t1}, 4, v0")
    a(f"s_and_b32 s{sT3}, s{sWV}, 1")
    a(f"s_lshl_b32 s{sT3}, s{sT3}, 2")
    a(f"v_add_u32 v{t1}, s{sT3}, v{t1}")
    a(f"v_and_b32 v{t2}, 7, v0")
    a(f"v_xor_b32 v{t1}, v{t1}, v{t2}")
    a(f"v_lshlrev_b32 v{t1}, 4, v{t1}")
    a(f"s_lshl_b32 s{sT3}, s{sWV}, 3")
    a(f"v_add_u32 v{t0}, s{sT3}, v{t0}")
    a(f"v_lshl_add_u32 v{vXD}, v{t0}, 11, v{t1}")
    vXR = va.get(8); vST = va.get(4)
    a(f"v_bfe_u32 v{t0}, v0, 3, 1")
    a(f"v_lshlrev_b32 v{t0}, 10, v{t0}")
    a(f"v_and_b32 v{t1}, 7, v0")
    a(f"v_lshl_add_u32 v{t0}, v{t1}, 7, v{t0}")
    a(f"v_bfe_u32 v{t1}, v0, 1, 3")
    a(f"v_lshrrev_b32 v{t2}, 4, v0")
    a(f"v_xor_b32 v{t1}, v{t1}, v{t2}")
    a(f"v_lshl_add_u32 v{t0}, v{t1}, 4, v{t0}")
    for G in range(4):
        a(f"s_add_u32 s{sT3}, s{sWV}, {G}")
        a(f"s_and_b32 s{sT3}, s{sT3}, 3")
        a(f"s_lshl_b32 s{sT4}, s{sT3}, 14")
        a(f"v_add_u32 v{vXR+2*G}, s{sT4}, v{t0}")
        a(f"v_xor_b32 v{vXR+2*G+1}, 64, v{vXR+2*G}")
        a(f"s_lshl_b32 s{sT4}, s{sT3}, 12")
        a(f"s_add_u32 s{sT4}, s{sT4}, {STAGE}")
        a(f"v_add_u32 v{vST+G}, s{sT4}, v{vL16}")
    vIDX = va.get()
    idx_setup(a, vIDX, t0)
    SEL = va.get(4, 4)
    a(f"v_and_b32 v{t1}, 1, v0")
    a(f"v_lshlrev_b32 v{t1}, 4, v{t1}")
    a(f"v_mov_b32 v{t2}, 0x3f80")
    a(f"v_lshlrev_b32 v{t1}, v{t1}, v{t2}")
    a(f"v_bfe_u32 v{t0}, v0, 3, 1")
    a(f"v_bfe_u32 v{t2}, v0, 1, 1")
    a(f"v_lshl_add_u32 v{t0}, v{t0}, 1, v{t2}")
    a(f"v_bfe_u32 v{t2}, v0, 4, 1")
    a(f"v_bfe_u32 v{t3}, v0, 2, 1")
    a(f"v_xor_b32 v{t2}, v{t2}, v{t3}")
    a(f"v_lshl_add_u32 v{t0}, v{t2}, 2, v{t0}")
    for k in range(4):
        a(f"v_cmp_eq_u32 vcc, {k}, v{t0}")
        a("s_nop 1")
        a(f"v_cndmask_b32 v{SEL+k}, 0, v{t1}, vcc")

    def x_dma_one(kb):
        a(f"s_add_u32 m0, s{sXM}, {kb*(4096-128)}")
        a("s_nop 0")
        a(f"buffer_load_dwordx4 v{vXD}, {XS}, s{sXM+1} offen offset:{kb*128} lds")

    for c in range(4):
        a(f"s_waitcnt vmcnt({16})")
        a("s_barrier")
        prof.mark(3 + c)
        if c == 0:
            signal(a, DBG_H1, 1)
        a(f"s_sub_u32 s{sT3}, {c+4}, s{sWV}")
        a(f"s_and_b32 s{sT3}, s{sT3}, 3")
        done = a.newlabel("wl_done")
        for G in range(4):
            nxt = a.newlabel("wl_next")
            if G < 3:
                a(f"s_cmp_eq_u32 s{sT3}, {G}")
                a(f"s_cbranch_scc0 {nxt}")
            weight_tr(a, vTR[c & 1], G)
            if G < 3:
                a(f"s_branch {done}")
                a.label(nxt)
        a.label(done)
        a("s_barrier")
        if c < 2:
            weight_dma(a, vW, c + 2, c & 1, 8192, sB)
        elif c == 2:
            a(f"s_lshl_b32 s{sXM}, s{sWV}, 10")
            a(f"s_mov_b32 s{sXM+1}, 0")
            for kb in range(16):
                x_dma_one(kb)
    prof.mark(7)
    M = va.get(16, 4); M2 = va.get(48, 4)
    ACC = va.get(16, 4); FR = va.get(32, 4); OUTR = va.get(8, 4); PK = va.get(4, 4); vtmp = va.get()
    a(f"s_mov_b32 s{sS}, -2")
    LOOP = a.newlabel("proj_loop"); CRIT = a.newlabel("proj_crit"); XPASS = a.newlabel("proj_x"); END = a.newlabel("proj_end")
    a.label(LOOP)
    a(f"s_cmp_ge_i32 s{sS}, 0")
    a(f"s_cbranch_scc1 {CRIT}")
    a("s_waitcnt vmcnt(0)")
    a("s_barrier")
    a(f"s_cmp_eq_i32 s{sS}, -2")
    a(f"s_cbranch_scc1 {XPASS}")
    prof.mark(8)
    handshake_wait(a, mode, t0, t1, 8)
    prof.mark(9)
    a(f"v_mov_b32 v{PK}, 0")
    a(f"v_mov_b32 v{PK+1}, 0")
    a(f"s_add_u32 s{sT0}, s{sPM}, {3*2048}")
    a(f"buffer_store_dwordx2 {vr(PK,2)}, v{vPMo}, {WS}, s{sT0} offen {loc}")
    a(f"s_branch {XPASS}")
    a.label(CRIT)
    a(f"s_and_b32 s{sSL}, s{sS}, 3")
    a(f"s_lshl_b32 s{sT1}, s{sSL}, 14")
    a(f"s_add_u32 s{sT1}, s{sT1}, s{sMEM}")
    a(f"s_lshl_b32 s{sSL2}, s{sSL}, 11")
    a(f"s_xor_b32 s{sSL}, s{sSL2}, 4096")
    a(f"s_add_u32 s{sSL2}, s{sSL2}, s{sPM}")
    a(f"s_add_u32 s{sSL}, s{sSL}, s{sPM}")
    prof.stamp(0)
    def sm(frag, kbslot):
        for t in range(2):
            a(f"v_smfmac_f32_16x16x64_bf16 {vr(ACC+4*t,4)}, {vr(frag,4)}, {ar(kbslot*16+8*t,8)}, v{vIDX}")
    LD = [f"buffer_load_dwordx4 {vr(M+4*i,4)}, v{vL16}, {WS}, s{sT1} offen offset:{1024*i} sc1" for i in range(4)]
    for r in range(8):
        a(f"v_mov_b32 v{ACC+r}, 0")
    for l in LD:
        a(l)
    ST = [a.newlabel("proj_st") for i in range(4)]
    RT = [a.newlabel("proj_rt") for i in range(4)]
    a(f"s_branch {ST[0]}")
    for i in (3, 2, 1, 0):
        a.label(RT[i])
        for l in LD[i:]:
            a(l)
        a(f"s_sub_u32 s{sBUD}, s{sBUD}, 1")
        a(f"s_cbranch_scc1 {a.abort}")
        if i:
            a(f"s_branch {ST[i]}")
    for i in range(4):
        a.label(ST[i])
        a(f"s_waitcnt vmcnt({3-i})")
        a(f"v_max_u32 v{vtmp}, v{M+4*i}, v{M+4*i+2}")
        a(f"v_cmp_eq_u32 vcc, -1, v{vtmp}")
        a(f"ds_write_b128 v{vST}, {vr(M+4*i,4)} offset:{1024*i}")
        a(f"s_cbranch_vccnz {RT[i]}")
    prof.stamp(1)
    sm(M, 0)
    sm(M + 4, 1)
    a("s_waitcnt lgkmcnt(0)")
    a("s_barrier")
    for G in range(1, 4):
        for i in range(4):
            a(f"ds_read_b128 {vr(M2+16*(G-1)+4*i,4)}, v{vST+G} offset:{1024*i}")
        if G < 3:
            sm(M + 4 * (G + 1), G + 1)
    for n in range(12):
        a(f"s_waitcnt lgkmcnt({11-n})")
        sm(M2 + 4 * n, 4 + n)
    a.nop(7)
    for t in range(2):
        a(f"v_cvt_pk_bf16_f32 v{PK+2*t}, v{ACC+4*t}, v{ACC+4*t+1}")
        a(f"v_cvt_pk_bf16_f32 v{PK+2*t+1}, v{ACC+4*t+2}, v{ACC+4*t+3}")
    a.nop(2)
    a(f"v_mfma_f32_16x16x32_bf16 {vr(ACC+8,4)}, {vr(PK,4)}, {vr(SEL,4)}, 0")
    a.nop(8)
    a(f"v_cvt_pk_bf16_f32 v{PK}, v{ACC+8}, v{ACC+9}")
    a(f"v_cvt_pk_bf16_f32 v{PK+1}, v{ACC+10}, v{ACC+11}")
    a(f"v_min_u32 v{PK}, -2, v{PK}")
    a(f"buffer_store_dwordx2 {vr(PK,2)}, v{vPMo}, {WS}, s{sSL2} offen {loc}")
    a(f"buffer_store_dwordx2 {vr(vSEN,2)}, v{vPMo}, {WS}, s{sSL} offen {loc}")
    prof.stamp(2, lite=True)
    for G in range(4):
        a(f"v_xor_b32 v{vST+G}, 0x4000, v{vST+G}")
    prof.stamp(4, True)
    a(f"s_cmp_ge_i32 s{sS}, 62")
    a(f"s_cbranch_scc1 {END}")
    a.label(XPASS)
    a(f"s_add_u32 s{sT0}, s{sS}, 3")
    a(f"s_min_u32 s{sT1}, s{sT0}, 63")
    a(f"s_lshl_b32 s{sXM+1}, s{sT1}, 16")
    a(f"s_and_b32 s{sT0}, s{sT0}, 1")
    a(f"s_lshl_b32 s{sT0}, s{sT0}, 16")
    a(f"s_lshl_b32 s{sXM}, s{sWV}, 10")
    a(f"s_add_u32 s{sXM}, s{sXM}, s{sT0}")
    DEPTH = 6
    frs = [(ks, rt) for ks in range(32) for rt in range(2)]
    def rd(f):
        ks, rt = frs[f]
        G = ks >> 3
        a(f"ds_read_b128 {vr(FR+4*(f%8),4)}, v{vXR+2*G+(ks&1)} offset:{((ks>>1)&3)*4096 + rt*2048}")
    for f in range(DEPTH):
        rd(f)
    for f in range(64):
        ks, rt = frs[f]
        dm = (f % 3 == 1 and f // 3 < 16)
        a(f"s_waitcnt lgkmcnt({min(DEPTH-1, 63-f)})")
        if dm:
            a(f"s_add_u32 m0, s{sXM}, {(f//3)*(4096-128)}")
        for t in range(2):
            acc = ACC + 8 * rt + 4 * t
            c = "0" if ks == 0 else vr(acc, 4)
            a(f"v_mfma_f32_16x16x32_bf16 {vr(acc,4)}, {ar((ks>>1)*16+8*t+4*(ks&1),4)}, {vr(FR+4*(f%8),4)}, {c}")
            if t == 0 and f + DEPTH < 64:
                rd(f + DEPTH)
            if t == 1 and dm:
                a(f"buffer_load_dwordx4 v{vXD}, {XS}, s{sXM+1} offen offset:{(f//3)*128} lds")
    for k in range(8):
        a(f"v_xor_b32 v{vXR+k}, 0x10000, v{vXR+k}")
    a(f"s_add_u32 s{sT0}, s{sS}, 2")
    a(f"s_and_b32 s{sT0}, s{sT0}, {XP_MASK}")
    a(f"s_lshl_b32 s{sT0}, s{sT0}, 13")
    a(f"s_add_u32 s{sT0}, s{sT0}, s{sXP}")
    a(f"s_add_u32 s{sT1}, s{sT0}, 4096")
    for rt in range(2):
        for t in range(2):
            acc = ACC + 8 * rt + 4 * t
            a(f"v_cvt_pk_bf16_f32 v{OUTR+4*rt+2*t}, v{acc}, v{acc+1}")
            a(f"v_cvt_pk_bf16_f32 v{OUTR+4*rt+2*t+1}, v{acc+2}, v{acc+3}")
    NS = a.newlabel("proj_noswap")
    a(f"s_cmp_eq_u32 s{sTY}, 2")
    a(f"s_cbranch_scc0 {NS}")
    a(f"v_swap_b32 v{OUTR+1}, v{OUTR+2}")
    a(f"v_swap_b32 v{OUTR+5}, v{OUTR+6}")
    a.label(NS)
    for rt in range(2):
        a(f"buffer_store_dwordx4 {vr(OUTR+4*rt,4)}, v{vL16}, {WS}, s{sT0+rt} offen {loc}")
    prof.stamp(5, True)
    prof.stamp(3)
    a.label(END)
    a("s_waitcnt vmcnt(0)")
    a(f"s_add_u32 s{sS}, s{sS}, 1")
    a(f"s_cmp_lt_i32 s{sS}, 64")
    a(f"s_cbranch_scc1 {LOOP}")
    prof.mark(20)
    prof.dump()
    a("s_endpgm")
```

```python
from gen import *

class RDuty:
    def __init__(self, a, va, mode, sJW, sbase, prof):
        self.a, self.prof = a, prof
        self.loc = loc = "" if mode == 0 else "sc1"
        sPARTr, sMEMw, sPP, sR0, sR1, sMp, sMr, sTW = range(sbase, sbase + 8)
        self.s = (sPARTr, sMEMw, sPP, sR0, sR1, sMp, sMr, sTW)
        t0 = va.get(); t1 = va.get(); t2 = va.get()
        vPR = va.get(); vME = va.get(); vTW = va.get(); vONE = va.get()
        SEL = va.get(8, 4); PR = va.get(16, 4); ACC = va.get(4, 4); PK = va.get(2); vSEN = va.get(2)
        self.v = (t0, t1, vPR, vME, vTW, SEL, PR, ACC, PK, vSEN)
        srd(a, S_AUX, P_MEM0, 16384)
        a(f"s_and_b32 s{sT1}, s{sJW}, 15")
        a(f"s_lshl_b32 s{sT1}, s{sT1}, 9")
        a(f"s_lshr_b32 s{sT2}, s{sJW}, 4")
        a(f"s_lshl_b32 s{sT2}, s{sT2}, 14")
        a(f"s_add_u32 s{sT1}, s{sT1}, s{sT2}")
        a(f"s_add_u32 s{sPARTr}, s{sT1}, {PART_OFF:#x}")
        a(f"s_and_b32 s{sT1}, s{sX}, 4")
        a(f"s_lshl_b32 s{sT1}, s{sT1}, 15")
        a(f"s_add_u32 s{sPARTr}, s{sPARTr}, s{sT1}")
        a(f"s_lshl_b32 s{sT1}, s{sJW}, 9")
        a(f"s_lshl_b32 s{sT2}, s{sX}, 16")
        a(f"s_add_u32 s{sMEMw}, s{sT1}, s{sT2}")
        a(f"s_add_u32 s{sMEMw}, s{sMEMw}, {MEM_OFF:#x}")
        a(f"s_lshl_b32 s{sPP}, s{sX}, 12")
        a(f"s_add_u32 s{sPP}, s{sPP}, {TW_OFF:#x}")
        a(f"v_mov_b32 v{vSEN}, -1")
        a(f"v_mov_b32 v{vSEN+1}, -1")
        a(f"v_lshrrev_b32 v{t0}, 4, v0")
        a(f"v_lshlrev_b32 v{t0}, 15, v{t0}")
        a(f"v_and_b32 v{t1}, 15, v0")
        a(f"v_lshl_add_u32 v{vPR}, v{t1}, 4, v{t0}")
        a(f"v_and_b32 v{t0}, 31, v0")
        a(f"v_and_b32 v{vTW}, 7, v0")
        a(f"v_lshlrev_b32 v{vTW}, 7, v{vTW}")
        a(f"v_lshlrev_b32 v{t0}, 4, v{t0}")
        a(f"v_lshrrev_b32 v{t1}, 5, v0")
        a(f"v_lshl_add_u32 v{vME}, v{t1}, 3, v{t0}")
        for sl in range(1, 4):
            a(f"s_add_u32 s{sT0}, s{sMEMw}, {sl*16384}")
            a(f"buffer_store_dwordx2 {vr(vSEN,2)}, v{vME}, {WS}, s{sT0} offen {loc}")
        a(f"v_and_b32 v{t0}, 7, v0")
        a(f"v_lshlrev_b32 v{t0}, 11, v{t0}")
        a(f"v_bfe_u32 v{t1}, v0, 4, 1")
        a(f"v_lshl_add_u32 v{t0}, v{t1}, 5, v{t0}")
        a(f"v_lshrrev_b32 v{t1}, 5, v0")
        a(f"v_lshl_add_u32 v{t0}, v{t1}, 4, v{t0}")
        a(f"v_bfe_u32 v{t1}, v0, 3, 1")
        a(f"v_lshl_add_u32 v{t0}, v{t1}, 2, v{t0}")
        a(f"s_lshl_b32 s{sT0}, s{sJW}, 6")
        a(f"buffer_load_dword v{PK}, v{t0}, {sr(S_AUX,4)}, s{sT0} offen")
        a(f"buffer_load_dword v{PK+1}, v{t0}, {sr(S_AUX,4)}, s{sT0} offen offset:8")
        a(f"v_and_b32 v{t0}, 15, v0")
        a(f"v_and_b32 v{t1}, 1, v0")
        a(f"v_lshlrev_b32 v{t1}, 4, v{t1}")
        a(f"v_mov_b32 v{t2}, 0x3f80")
        a(f"v_lshlrev_b32 v{t1}, v{t1}, v{t2}")
        a(f"v_lshrrev_b32 v{t0}, 1, v{t0}")
        for k in range(8):
            a(f"v_cmp_eq_u32 vcc, {k}, v{t0}")
            a("s_nop 1")
            a(f"v_cndmask_b32 v{SEL+k}, 0, v{t1}, vcc")
        a("s_waitcnt vmcnt(0)")
        a(f"v_min_u32 v{PK}, -2, v{PK}")
        a(f"v_min_u32 v{PK+1}, -2, v{PK+1}")
        a(f"buffer_store_dwordx2 {vr(PK,2)}, v{vME}, {WS}, s{sMEMw} offen {loc}")
        a(f"v_min_u32 v{vONE}, 1, v0")
        a(f"v_lshlrev_b32 v{vONE}, 28, v{vONE}")
        self.sJW, self.vONE = sJW, vONE

    def probe(self):
        a = self.a
        sPARTr, sMEMw, sPP, sR0, sR1, sMp, sMr, sTW = self.s
        t0, t1, vPR, vME, vTW, SEL, PR, ACC, PK, vSEN = self.v
        a(f"s_lshl_b32 s{sT0}, s{sX}, 5")
        a(f"s_add_u32 s{sT0}, s{sT0}, s{self.sJW}")
        a(f"s_and_b32 s{sT1}, s{sT0}, 63")
        a(f"s_lshl_b32 s{sT1}, s{sT1}, 7")
        a(f"s_lshr_b32 s{sT0}, s{sT0}, 6")
        a(f"s_lshl_b32 s{sT0}, s{sT0}, 14")
        a(f"s_add_u32 s{sT0}, s{sT0}, s{sT1}")
        a(f"s_add_u32 s{sR0}, s{sT0}, {PART_OFF + MB:#x}")
        a(f"s_add_u32 s{sR1}, s{sR0}, 8192")
        a(f"s_mov_b32 s{sMp}, -1")
        a(f"s_mov_b32 s{sMr}, -1")
        for rep in range(4):
            for k in range(2):
                a(f"buffer_store_dword v{vSEN}, v{self.vONE}, {WS}, s{sR0+k} offen sc1")
                a("s_waitcnt vmcnt(0)")
                a("s_barrier")
                a("s_memtime s[94:95]")
                a("s_waitcnt lgkmcnt(0)")
                a(f"buffer_load_dword v{t0}, v{self.vONE}, {WS}, s{sR0+k} offen sc1")
                a("s_waitcnt vmcnt(0)")
                a("s_memtime s[96:97]")
                a("s_waitcnt lgkmcnt(0)")
                a("s_barrier")
                a("s_sub_u32 s96, s96, s94")
                a(f"s_min_u32 s{sMp+k}, s{sMp+k}, s96")
        a(f"s_cmp_lt_u32 s{sMr}, s{sMp}")
        a(f"s_cselect_b32 s{sT0}, 8192, 0")
        a(f"s_add_u32 s{sPARTr}, s{sPARTr}, s{sT0}")

    def setup(self):
        a = self.a
        sPARTr, sMEMw, sPP, sR0, sR1, sMp, sMr, sTW = self.s
        a(f"s_and_b32 s{sT0}, s{sS}, 3")
        a(f"s_lshl_b32 s{sTW}, s{sT0}, 10")
        a(f"s_add_u32 s{sTW}, s{sTW}, s{sPP}")
        a(f"s_lshl_b32 s{sR0}, s{sT0}, 18")
        a(f"s_add_u32 s{sR0}, s{sR0}, s{sPARTr}")
        a(f"s_xor_b32 s{sR1}, s{sR0}, 131072")
        a(f"s_add_u32 s{sMp}, s{sS}, 1")
        a(f"s_and_b32 s{sMp}, s{sMp}, 3")
        a(f"s_lshl_b32 s{sMp}, s{sMp}, 14")
        a(f"s_xor_b32 s{sMr}, s{sMp}, {2<<14:#x}")
        a(f"s_add_u32 s{sMp}, s{sMp}, s{sMEMw}")
        a(f"s_add_u32 s{sMr}, s{sMr}, s{sMEMw}")

    def watch(self):
        a, prof = self.a, self.prof
        sPARTr, sMEMw, sPP, sR0, sR1, sMp, sMr, sTW = self.s
        t0, t1, vPR, vME, vTW, SEL, PR, ACC, PK, vSEN = self.v
        a("s_waitcnt vmcnt(0)")
        a("s_mov_b64 exec, 0xff")
        poll2(a, [f"buffer_load_dword v{t1}, v{vTW}, {WS}, s{sTW} offen sc1"], [t1], t0, gap=2)
        a("s_mov_b64 exec, -1")
        prof.stamp(5)
        if Cfg.r_delay:
            a(f"s_sleep {Cfg.r_delay}")

    def step(self):
        a, prof, loc = self.a, self.prof, self.loc
        sPARTr, sMEMw, sPP, sR0, sR1, sMp, sMr, sTW = self.s
        t0, t1, vPR, vME, vTW, SEL, PR, ACC, PK, vSEN = self.v
        prof.stamp(3)
        L = a.newlabel("rpoll"); F = a.newlabel("rfirst")
        def ld(pg):
            for hf in range(2):
                a(f"buffer_load_dwordx4 {vr(PR+8*pg+4*hf,4)}, v{vPR}, {WS}, s{sR0+pg} offen offset:{256*hf} sc1")
        ld(0)
        if Cfg.r_split:
            a.nop(Cfg.r_split)
        a(f"s_branch {F}")
        a.label(L)
        a("s_mov_b64 exec, vcc")
        ld(0)
        a.label(F)
        ld(1)
        a("s_mov_b64 exec, -1")
        a(f"s_sub_u32 s{sBUD}, s{sBUD}, 1")
        a(f"s_cbranch_scc1 {a.abort}")
        for i in range(4):
            a(f"s_waitcnt vmcnt({3-i})")
            if i == 1:
                a(f"v_max_u32 v{t0}, v{PR}, v{PR+4}")
            if i == 3:
                a(f"v_max3_u32 v{t0}, v{t0}, v{PR+8}, v{PR+12}")
            c = "0" if i == 0 else vr(ACC, 4)
            a(f"v_mfma_f32_16x16x32_bf16 {vr(ACC,4)}, {vr(PR+4*i,4)}, {vr(SEL+4*(i&1),4)}, {c}")
        a(f"v_cmp_eq_u32 vcc, -1, v{t0}")
        a(f"s_cbranch_vccnz {L}")
        prof.stamp(4)
        a.nop(6)
        a(f"v_cvt_pk_bf16_f32 v{PK}, v{ACC}, v{ACC+1}")
        a(f"v_cvt_pk_bf16_f32 v{PK+1}, v{ACC+2}, v{ACC+3}")
        a(f"v_min_u32 v{PK}, -2, v{PK}")
        a(f"buffer_store_dwordx2 {vr(PK,2)}, v{vME}, {WS}, s{sMp} offen {loc}")
        prof.stamp(6, lite=True)
        a("s_barrier")
        a(f"buffer_store_dwordx2 {vr(vSEN,2)}, v{vME}, {WS}, s{sMr} offen {loc}")
```

```python
from gen import *
from gen_r import RDuty

SCL = 128 ** -0.5 * math.log2(math.e)

def role_t(a, mode):
    loc = "" if mode == 0 else "sc1"
    va = VAlloc()
    sQM, sKM, sQX, sKX, sPO, sHL, sA, sBq, sC, sD, sSC, sJW = 72, 73, 74, 75, 76, 77, 78, 79, 80, 81, 82, 84
    a(f"s_sub_u32 s{sJW}, s{sSLOT}, 20")
    a(f"s_and_b32 s{sHL}, s{sJW}, 3")
    a(f"s_lshl_b32 s{sJW}, s{sJW}, 2")
    a(f"s_add_u32 s{sJW}, s{sJW}, s{sWV}")
    a(f"s_lshl_b32 s{sT2}, s{sX}, 2")
    a(f"s_add_u32 s{sT1}, s{sHL}, s{sT2}")
    a(f"s_lshl_b32 s{sQM}, s{sT1}, 13")
    a(f"s_add_u32 s{sQM}, s{sQM}, {PM_OFF:#x}")
    a(f"s_add_u32 s{sKM}, s{sQM}, {32*8192}")
    a(f"s_lshl_b32 s{sQX}, s{sT1}, {XP_SH}")
    a(f"s_add_u32 s{sKX}, s{sQX}, {32<<XP_SH:#x}")
    a(f"s_mov_b32 s{sSC}, {f32bits(SCL):#x}")
    a(f"s_mov_b32 s{sSC+1}, {f32bits(SCL):#x}")
    prof = Prof(a, va)
    R = RDuty(a, va, mode, sJW, 85, prof)
    t0 = va.get(); t1 = va.get(); t2 = va.get(); vtmp = va.get()
    vL16 = va.get(); vMO = va.get(); vMX = va.get(); vO1 = va.get(); vO2 = va.get()
    vSEN = va.get(4, 4)
    KX = va.get(32, 4); Q = va.get(16, 4); KM = va.get(16, 4); D = va.get(12, 4); E = va.get(12, 4); PK = va.get(6, 4)
    CI = va.get(4, 4)
    vm = va.get(2); vs = va.get(2); vs2 = va.get(); vNEG = va.get(); vLIM = va.get()
    a(f"v_lshlrev_b32 v{vL16}, 4, v0")
    a(f"v_lshrrev_b32 v{t0}, 4, v0")
    a(f"v_lshlrev_b32 v{t0}, 7, v{t0}")
    a(f"v_and_b32 v{t1}, 7, v0")
    a(f"v_lshl_add_u32 v{vMO}, v{t1}, 4, v{t0}")
    a(f"v_bfe_u32 v{t0}, v0, 3, 1")
    a(f"v_lshl_add_u32 v{vMX}, v{t0}, 18, v{vMO}")
    for r in range(4):
        a(f"v_mov_b32 v{vSEN+r}, -1")
    XW = a.newlabel("t_xw"); JOIN = a.newlabel("t_join")
    a(f"s_cmp_lt_u32 s{sSLOT}, 24")
    a(f"s_cbranch_scc0 {XW}")
    a(f"v_and_b32 v{t0}, 15, v0")
    a(f"v_lshlrev_b32 v{t0}, 4, v{t0}")
    a(f"v_bfe_u32 v{t1}, v0, 4, 1")
    a(f"v_lshl_add_u32 v{t0}, v{t1}, 3, v{t0}")
    a(f"v_lshrrev_b32 v{t1}, 5, v0")
    a(f"v_lshl_add_u32 v{t2}, v{t1}, 8, v{t0}")
    a(f"s_lshl_b32 s{sT0}, s{sHL}, 9")
    a(f"v_add_u32 v{vO1}, s{sT0}, v{t2}")
    a(f"s_lshr_b32 s{sT0}, s{sHL}, 1")
    a(f"s_lshl_b32 s{sT0}, s{sT0}, 9")
    a(f"s_and_b32 s{sT1}, s{sHL}, 1")
    a(f"s_lshl_b32 s{sT1}, s{sT1}, 2")
    a(f"s_add_u32 s{sT0}, s{sT0}, s{sT1}")
    a(f"s_add_u32 s{sT0}, s{sT0}, 2048")
    a(f"v_add_u32 v{vO2}, s{sT0}, v{t0}")
    a(f"v_xor_b32 v{t1}, 1, v{t1}")
    a(f"v_lshl_add_u32 v{vO2}, v{t1}, 28, v{vO2}")
    a(f"v_mov_b32 v{t0}, 0xff800000")
    a(f"v_cmp_gt_u32 vcc, 32, v0")
    a("s_nop 1")
    for r in range(4):
        a(f"v_cndmask_b32 v{CI+r}, 0, v{t0}, vcc")
    a(f"s_lshl_b32 s{sPO}, s{sX}, 14")
    a(f"s_add_u32 s{sPO}, s{sPO}, {PP_OFF:#x}")
    def pp_store(r2, r1, so):
        a(f"buffer_store_dwordx2 {vr(r2,2)}, v{vO1}, {WS}, s{so} offen {loc}")
        a(f"buffer_store_dword v{r1}, v{vO2}, {WS}, s{so} offen {loc}")
        a(f"buffer_store_dword v{r1}, v{vO2}, {WS}, s{so} offen offset:256 {loc}")
    a(f"s_cmp_eq_u32 s{sWV}, 0")
    a(f"s_cbranch_scc0 {JOIN}")
    for sl in range(4):
        a(f"s_add_u32 s{sT0}, s{sPO}, {sl*4096}")
        pp_store(vSEN, vSEN, sT0)
    a(f"s_branch {JOIN}")
    a.label(XW)
    a(f"s_and_b32 s{sT2}, s{sWV}, 1")
    a(f"s_mul_i32 s{sT3}, s{sT2}, 6144")
    a(f"s_lshl_b32 s{sT0}, s{sHL}, 10")
    a(f"s_add_u32 s{sT0}, s{sT0}, s{sT3}")
    a(f"v_add_u32 v{vO1}, s{sT0}, v{vL16}")
    a(f"s_lshr_b32 s{sT0}, s{sHL}, 1")
    a(f"s_lshl_b32 s{sT0}, s{sT0}, 10")
    a(f"s_and_b32 s{sT1}, s{sHL}, 1")
    a(f"s_lshl_b32 s{sT1}, s{sT1}, 3")
    a(f"s_add_u32 s{sT0}, s{sT0}, s{sT1}")
    a(f"s_add_u32 s{sT0}, s{sT0}, s{sT3}")
    a(f"s_add_u32 s{sT0}, s{sT0}, 4096")
    a(f"v_add_u32 v{vO2}, s{sT0}, v{vL16}")
    a(f"s_lshl_b32 s{sT0}, s{sT2}, 4")
    a(f"v_and_b32 v{t0}, 15, v0")
    a(f"v_add_u32 v{t0}, s{sT0}, v{t0}")
    a(f"v_lshrrev_b32 v{t1}, 4, v0")
    a(f"v_lshlrev_b32 v{t1}, 2, v{t1}")
    a(f"v_sub_u32 v{vLIM}, v{t0}, v{t1}")
    a(f"v_mov_b32 v{vNEG}, {f32bits(-1e9 / (128 ** -0.5)):#x}")
    a(f"s_lshl_b32 s{sT2}, s{sT2}, 12")
    a(f"s_add_u32 s{sQX}, s{sQX}, s{sT2}")
    a(f"s_lshl_b32 s{sPO}, s{sX}, 16")
    a(f"s_add_u32 s{sPO}, s{sPO}, {PX_OFF:#x}")
    a(f"s_cmp_lt_u32 s{sWV}, 2")
    a(f"s_cbranch_scc0 {JOIN}")
    for sl in range(4):
        a(f"s_add_u32 s{sT0}, s{sPO}, {sl*16384}")
        a(f"buffer_store_dwordx4 {vr(vSEN,4)}, v{vO1}, {WS}, s{sT0} offen {loc}")
        a(f"buffer_store_dwordx2 {vr(vSEN,2)}, v{vO2}, {WS}, s{sT0} offen {loc}")
    a.label(JOIN)
    a("s_waitcnt vmcnt(0)")
    a("s_barrier")
    signal(a, DBG_H1, 1)
    prof.mark(2)
    R.probe()
    prof.mark(8)
    handshake_wait(a, mode, t0, t1, 40)
    prof.mark(9)

    def ld_m(dst, voff, sbase, ks):
        return f"buffer_load_dwordx4 {vr(dst+4*ks,4)}, v{voff}, {WS}, s{sbase} offen offset:{512*ks} sc1"
    def chk(base):
        return [base + 4 * ks + d for ks in range(4) for d in (0, 2)]
    def prefetch(seg_add, with_q):
        a(f"s_add_u32 s{sT0}, s{sS}, {seg_add}")
        a(f"s_and_b32 s{sT0}, s{sT0}, {XP_MASK}")
        a(f"s_lshl_b32 s{sT0}, s{sT0}, 13")
        a(f"s_add_u32 s{sT1}, s{sT0}, s{sKX}")
        a(f"s_add_u32 s{sT2}, s{sT1}, 4096")
        for t in range(2):
            for ks in range(4):
                a(f"buffer_load_dwordx4 {vr(KX+16*t+4*ks,4)}, v{vL16}, {WS}, s{sT1+t} offen offset:{1024*ks} sc1")
        if with_q:
            a(f"s_add_u32 s{sT0}, s{sT0}, s{sQX}")
            for ks in range(4):
                a(f"buffer_load_dwordx4 {vr(Q+4*ks,4)}, v{vL16}, {WS}, s{sT0} offen offset:{1024*ks} sc1")
    def slots(stride_log):
        a(f"s_and_b32 s{sT0}, s{sS}, 3")
        a(f"s_lshl_b32 s{sT1}, s{sT0}, 11")
        a(f"s_add_u32 s{sA}, s{sT1}, s{sQM}")
        a(f"s_add_u32 s{sBq}, s{sT1}, s{sKM}")
        a(f"s_lshl_b32 s{sC}, s{sT0}, {stride_log}")
        a(f"s_xor_b32 s{sD}, s{sC}, {2 << stride_log}")
        a(f"s_add_u32 s{sC}, s{sC}, s{sPO}")
        a(f"s_add_u32 s{sD}, s{sD}, s{sPO}")
    def softmax(vals, nx):
        n = len(vals)
        a(f"v_max3_f32 v{vm}, v{vals[0]}, v{vals[1]}, v{vals[2]}")
        i = 3
        while i < n:
            if i + 1 < n:
                a(f"v_max3_f32 v{vm}, v{vm}, v{vals[i]}, v{vals[i+1]}"); i += 2
            else:
                a(f"v_max_f32 v{vm}, v{vm}, v{vals[i]}"); i += 1
        if n == 6:
            a("s_nop 1")
            a(f"v_max_f32_dpp v{vm}, v{vm}, v{vm} row_ror:8 row_mask:0xf bank_mask:0xf")
        xlane_gg(a, "v_max_f32", vm, t0)
        a(f"v_mul_f32 v{vm}, s{sSC}, v{vm}")
        for i in range(0, n, 2):
            a(f"v_pk_fma_f32 {vr(E+i,2)}, {vr(vals[i],2)}, s[{sSC}:{sSC+1}], {vr(vm,2)} op_sel_hi:[1,1,0] neg_lo:[0,0,1] neg_hi:[0,0,1]")
        for i in range(n):
            a(f"v_exp_f32 v{E+i}, v{E+i}")
        a(f"v_add_f32 v{vs}, v{E}, v{E+1}")
        for i in range(2, nx):
            a(f"v_add_f32 v{vs}, v{vs}, v{E+i}")
        if nx < n:
            a(f"v_add_f32 v{vs2}, v{E+nx}, v{E+nx+1}")
            for i in range(nx + 2, n):
                a(f"v_add_f32 v{vs2}, v{vs2}, v{E+i}")
            a(f"v_fma_f32 v{vs}, v{vs2}, 0.5, v{vs}")
        if n == 6:
            a("s_nop 1")
            a(f"v_add_f32_dpp v{vs}, v{vs}, v{vs} row_ror:8 row_mask:0xf bank_mask:0xf")
        xlane_gg(a, "v_add_f32", vs, t0)
        a(f"v_rcp_f32 v{vs}, v{vs}")
        a("s_nop 0")
        for i in range(0, n, 2):
            a(f"v_pk_mul_f32 {vr(E+i,2)}, {vr(E+i,2)}, {vr(vs,2)} op_sel_hi:[1,0]")
        for i in range(n // 2):
            a(f"v_cvt_pk_bf16_f32 v{PK+i}, v{E+2*i}, abs(v{E+2*i+1})")
    def loop_end(L, last):
        a(f"s_add_u32 s{sS}, s{sS}, 1")
        a(f"s_cmp_lt_i32 s{sS}, {last}")
        a(f"s_cbranch_scc1 {L}")
        prof.dump()
        a("s_endpgm")

    W0 = a.newlabel("t_w0"); WX = a.newlabel("t_wx"); WR = a.newlabel("t_wr"); WP = a.newlabel("t_wp"); TXD = a.newlabel("t_txd")
    a(f"s_mov_b32 s{sS}, 0")
    a(f"s_cmp_eq_u32 s{sWV}, 3")
    a(f"s_cbranch_scc0 {TXD}")
    L = a.newlabel("t3_loop")
    a.label(L)
    R.setup()
    R.watch()
    a("s_barrier")
    R.step()
    a(f"s_sleep {Cfg.r_idle}")
    loop_end(L, 63)
    a.label(TXD)
    a(f"s_cmp_lt_u32 s{sSLOT}, 24")
    a(f"s_cselect_b32 s{sT0}, 1, 2")
    a(f"s_cmp_lt_u32 s{sWV}, s{sT0}")
    a(f"s_cbranch_scc0 {WR}")
    a(f"s_cmp_lt_u32 s{sSLOT}, 24")
    a(f"s_cbranch_scc1 {W0}")
    a(f"s_branch {WX}")
    a.label(WR)
    XA = 5
    def xpf(add):
        a(f"s_add_u32 s{sT0}, s{sS}, {add}")
        a(f"s_min_u32 s{sT0}, s{sT0}, 63")
        a(f"s_lshl_b32 s{sT0}, s{sT0}, 16")
        a(f"s_lshl_b32 s{sT1}, s{sHL}, 14")
        a(f"s_add_u32 s{sT0}, s{sT0}, s{sT1}")
        for k in range(2):
            a(f"buffer_load_dword v{KX+k}, v{t2}, {XS}, s{sT0} offen")
            a(f"s_add_u32 s{sT0}, s{sT0}, 8192")
    a(f"v_lshlrev_b32 v{t2}, 7, v0")
    for k in range(2, XA):
        xpf(k)
    L = a.newlabel("tr_loop")
    a.label(L)
    R.setup()
    a("s_barrier")
    R.step()
    NP = a.newlabel("tr_nopf")
    a(f"s_cmp_lt_u32 s{sSLOT}, 24")
    a(f"s_cbranch_scc1 {NP}")
    if not Cfg.no_xpf:
        xpf(XA)
    a.label(NP)
    loop_end(L, 63)
    a.label(W0)
    a(f"s_mov_b32 s{sS}, -1")
    a(f"s_add_u32 s{sA}, s{sQM}, {3*2048}")
    poll(a, [ld_m(Q, vMX, sA, ks) for ks in range(4)], chk(Q), vtmp, sleep=4)
    prefetch(1, False)
    a(f"s_mov_b32 s{sS}, 0")
    L0 = a.newlabel("t0_loop")
    a.label(L0)
    slots(12)
    R.setup()
    prof.stamp(0)
    a("s_waitcnt vmcnt(0)")
    for ks in range(4):
        a(ld_m(Q, vMX, sA, ks))
    ST = [a.newlabel("t0_st") for i in range(4)]
    RT = [a.newlabel("t0_rt") for i in range(4)]
    def check(ks):
        a(f"s_waitcnt vmcnt({7-ks})")
        a(f"v_max_u32 v{vtmp}, v{Q+4*ks}, v{Q+4*ks+2}")
        a(f"v_cmp_eq_u32 vcc, -1, v{vtmp}")
    a("s_sleep 2")
    a(f"s_branch {RT[0]}")
    for i in (3, 2, 1, 0):
        a.label(RT[i])
        for ks in range(4):
            a(ld_m(Q, vMX, sA, ks))
        a(f"s_sub_u32 s{sBUD}, s{sBUD}, 1")
        a(f"s_cbranch_scc1 {a.abort}")
        check(i)
        if i:
            a(f"s_cbranch_vccnz {RT[i]}")
            a(f"s_branch {ST[i]}")
    for ks in range(4):
        a(f"s_cbranch_vccnz {RT[ks]}")
        a.label(ST[ks])
        for t in range(3):
            src = KX + 16 * t + 4 * ks if t < 2 else Q + 4 * ks
            c = (vr(CI, 4) if t == 2 else "0") if ks == 0 else vr(D + 4 * t, 4)
            a(f"v_mfma_f32_16x16x32_bf16 {vr(D+4*t,4)}, {vr(src,4)}, {vr(Q+4*ks,4)}, {c}")
            if t == 0 and ks < 3:
                check(ks + 1)
    prof.stamp(1)
    a.nop(6)
    for t in range(3):
        for r in range(2):
            a(f"v_mov_b32_dpp v{D+4*t+r}, v{D+4*t+2+r} row_ror:8 row_mask:0xf bank_mask:0xc")
    softmax([D, D + 1, D + 4, D + 5, D + 8, D + 9], 6)
    pp_store(PK, PK + 2, sC)
    prof.stamp(2)
    pp_store(vSEN, vSEN, sD)
    a("s_barrier")
    R.step()
    prefetch(1, False)
    loop_end(L0, 63)
    a.label(WX)
    QM = E
    a(f"v_lshrrev_b32 v{t2}, 4, v0")
    a(f"v_lshlrev_b32 v{t2}, 9, v{t2}")
    def xpoll(sl):
        poll(a, [ld_m(KM, vMO, sBq, ks) for ks in range(4)] + [f"buffer_load_dword v{QM}, v{t2}, {WS}, s{sA} offen sc1"],
             chk(KM) + [QM], vtmp, sleep=sl)
    a(f"s_mov_b32 s{sS}, -1")
    slots(14)
    xpoll(4)
    prefetch(1, True)
    a(f"s_mov_b32 s{sS}, 0")
    L1 = a.newlabel("tx_loop")
    a.label(L1)
    slots(14)
    R.setup()
    prof.stamp(0)
    a("s_waitcnt vmcnt(0)")
    for ks in range(4):
        for t in range(2):
            c = "0" if ks == 0 else vr(D + 4 * t, 4)
            a(f"v_mfma_f32_16x16x32_bf16 {vr(D+4*t,4)}, {vr(KX+16*t+4*ks,4)}, {vr(Q+4*ks,4)}, {c}")
    a.nop(6)
    for t in range(2):
        for r in range(4):
            a(f"v_cmp_le_i32 vcc, {16*t+r}, v{vLIM}")
            a("s_nop 1")
            a(f"v_cndmask_b32 v{D+4*t+r}, v{vNEG}, v{D+4*t+r}, vcc")
    xpoll(0)
    prof.stamp(1)
    for ks in range(4):
        c = "0" if ks == 0 else vr(D + 8, 4)
        a(f"v_mfma_f32_16x16x32_bf16 {vr(D+8,4)}, {vr(KM+4*ks,4)}, {vr(Q+4*ks,4)}, {c}")
    SK = a.newlabel("tx_skip")
    prefetch(1, True)
    softmax(list(range(D, D + 12)), 8)
    a(f"buffer_store_dwordx4 {vr(PK,4)}, v{vO1}, {WS}, s{sC} offen {loc}")
    a(f"buffer_store_dwordx2 {vr(PK+4,2)}, v{vO2}, {WS}, s{sC} offen {loc}")
    prof.stamp(2)
    a(f"buffer_store_dwordx4 {vr(vSEN,4)}, v{vO1}, {WS}, s{sD} offen {loc}")
    a(f"buffer_store_dwordx2 {vr(vSEN,2)}, v{vO2}, {WS}, s{sD} offen {loc}")
    a(f"s_cmp_ge_i32 s{sS}, 63")
    a(f"s_cbranch_scc1 {SK}")
    a("s_barrier")
    R.step()
    a.label(SK)
    loop_end(L1, 64)
```

```python
import sys, os, struct, math

KNAME = "gated_mix__memory_aug_recurrent_mem_tr__spectral_gfnet__prompt_kernel"
MB = 1 << 20

XP_OFF    = 0
XP_SH, XP_MASK = 15, 3
XPART_OFF = 48 * MB
FLG_OFF   = 80 * MB
RT_OFF    = 84 * MB
HT_OFF    = 88 * MB
Z_OFF     = 92 * MB
GATE_OFF  = 96 * MB
PM_OFF    = 98 * MB
PP_OFF    = 99 * MB
PX_OFF    = 100 * MB
PART_OFF  = 102 * MB
MEM_OFF   = 97 * MB
TW_OFF    = 101 * MB
PROF_OFF  = 104 * MB
WS_HALF   = 128 * MB

LDS_BYTES = 163840

def f32bits(x):
    return struct.unpack("<I", struct.pack("<f", x))[0]

class Asm:
    def __init__(self):
        self.lines = []
        self.uid = 0
    def __call__(self, s):
        for ln in s.split("\n"):
            ln = ln.strip()
            if ln:
                self.lines.append(" " + ln)
    def label(self, n):
        self.lines.append(n + ":")
    def newlabel(self, p):
        self.uid += 1
        return f"L_{p}_{self.uid}"
    def nop(self, n):
        while n > 0:
            k = min(n, 16)
            self(f"s_nop {k-1}")
            n -= k
    def text(self):
        return "\n".join(self.lines) + "\n"

def vr(b, n=1):
    return f"v{b}" if n == 1 else f"v[{b}:{b+n-1}]"
def ar(b, n=1):
    return f"a{b}" if n == 1 else f"a[{b}:{b+n-1}]"
def sr(b, n=1):
    return f"s{b}" if n == 1 else f"s[{b}:{b+n-1}]"

S_WS, S_X, S_W, S_DBG, S_OUT, S_WR, S_WI, S_AUX = 4, 8, 12, 16, 20, 24, 28, 32
P_X, P_MEM0, P_WQ, P_WK, P_WV, P_WO, P_WR, P_WI, P_GATE, P_OUT, P_DBG, P_WS = range(36, 60, 2)
sX, sSLOT, sWV, sBUD, sS = 60, 61, 62, 63, 64
sMODE = 101
sT0, sT1, sT2, sT3, sT4, sT5 = 65, 66, 67, 68, 69, 70
WS, XS, WW, DBG = sr(S_WS, 4), sr(S_X, 4), sr(S_W, 4), sr(S_DBG, 4)

DBG_H1 = 4
DBG_FB = 8

class Cfg:
    profile = False
    force_fallback = False
    no_f = False
    realtime = False
    lite = False
    r_at = 14
    r2_at = 26
    r_sp = 2
    xpf_sleep = 6
    pp_prime = 3
    warm1 = 3
    warm2 = 2
    no_xpf = False
    no_wpf = False
    r_split = 30
    st_at = 12
    px_at = 20
    r_delay = 3
    r_gap = 2
    t0_idle = 30
    r_idle = 20
    t3_sleep = 24
    f_sleep = 20
    pp_lds = True
    pipe_mem = False
    pipe_pp = False
    pipe_part = False
    budget = 400000

class VAlloc:
    def __init__(self, start=1):
        self.n = start
    def get(self, cnt=1, align=1):
        if cnt > 1 and align == 1:
            align = 2
        self.n = (self.n + align - 1) // align * align
        b = self.n
        self.n += cnt
        assert self.n <= 252, "out of VGPRs"
        return b

def srd(a, s, ptr, nbytes):
    a(f"s_mov_b32 s{s}, s{ptr}")
    a(f"s_mov_b32 s{s+1}, s{ptr+1}")
    a(f"s_mov_b32 s{s+2}, {nbytes:#x}")
    a(f"s_mov_b32 s{s+3}, 0x00020000")

def maxtree(a, regs, tmp):
    regs = list(regs)
    if len(regs) == 1:
        a(f"v_mov_b32 v{tmp}, v{regs[0]}")
        return
    if len(regs) == 2:
        a(f"v_max_u32 v{tmp}, v{regs[0]}, v{regs[1]}")
        return
    a(f"v_max3_u32 v{tmp}, v{regs[0]}, v{regs[1]}, v{regs[2]}")
    i = 3
    while i < len(regs):
        if i + 1 < len(regs):
            a(f"v_max3_u32 v{tmp}, v{tmp}, v{regs[i]}, v{regs[i+1]}")
            i += 2
        else:
            a(f"v_max_u32 v{tmp}, v{tmp}, v{regs[i]}")
            i += 1

def poll(a, loads, regs, tmp, sleep=0):
    L = a.newlabel("poll")
    F = a.newlabel("pfirst")
    a(f"s_branch {F}")
    a.label(L)
    if sleep:
        a(f"s_sleep {sleep}")
    a(f"s_sub_u32 s{sBUD}, s{sBUD}, 1")
    a(f"s_cbranch_scc1 {a.abort}")
    a.label(F)
    for l in loads:
        a(l)
    a("s_waitcnt vmcnt(0)")
    maxtree(a, regs, tmp)
    a(f"v_cmp_eq_u32 vcc, -1, v{tmp}")
    a(f"s_cbranch_vccnz {L}")

def poll2(a, loads, regs, tmp, gap=0, primed=False, extra=None, nextra=0):
    L = a.newlabel("poll")
    F = a.newlabel("pchk")
    if not primed:
        for l in loads:
            a(l)
        if gap:
            a(f"s_sleep {gap}")
    if extra:
        for l in loads:
            a(l)
        extra()
        a(f"s_waitcnt vmcnt({len(loads) + nextra})")
        a(f"s_branch {F}")
    a.label(L)
    a(f"s_sub_u32 s{sBUD}, s{sBUD}, 1")
    a(f"s_cbranch_scc1 {a.abort}")
    for l in loads:
        a(l)
    a(f"s_waitcnt vmcnt({len(loads)})")
    a.label(F)
    maxtree(a, regs, tmp)
    a(f"v_cmp_eq_u32 vcc, -1, v{tmp}")
    a(f"s_cbranch_vccnz {L}")

def signal(a, byte_off, val):
    L = a.newlabel("nosig")
    a(f"s_cmp_eq_u32 s{sWV}, 0")
    a(f"s_cbranch_scc0 {L}")
    a(f"s_add_u32 s{sT0}, s{sMODE}, {byte_off}")
    a(f"s_mov_b32 s{sT1}, {val:#x}")
    a(f"s_atomic_add s{sT1}, s[{P_DBG}:{P_DBG+1}], s{sT0}")
    a("s_waitcnt lgkmcnt(0)")
    a.label(L)

def wait_counter(a, byte_off, target, vt0, vt1, sleep, split16=False):
    L = a.newlabel("wc")
    D = a.newlabel("wcok")
    a(f"v_mov_b32 v{vt0}, {byte_off}")
    a.label(L)
    a(f"buffer_load_dword v{vt1}, v{vt0}, {DBG}, s{sMODE} offen sc1")
    a("s_waitcnt vmcnt(0)")
    a(f"v_readfirstlane_b32 s{sT0}, v{vt1}")
    a("s_nop 3")
    if split16:
        a(f"s_lshr_b32 s{sT1}, s{sT0}, 16")
        a(f"s_and_b32 s{sT2}, s{sT0}, 0xffff")
        a(f"s_add_u32 s{sT2}, s{sT2}, s{sT1}")
        a(f"s_cmp_ge_u32 s{sT2}, {target}")
    else:
        a(f"s_cmp_ge_u32 s{sT0}, {target}")
    a(f"s_cbranch_scc1 {D}")
    a(f"s_sleep {sleep}")
    a(f"s_sub_u32 s{sBUD}, s{sBUD}, 1")
    a(f"s_cbranch_scc0 {L}")
    a("s_endpgm")
    a.label(D)

def handshake_wait(a, mode, vt0, vt1, sleep):
    wait_counter(a, DBG_H1, 256, vt0, vt1, sleep, split16=True)
    if Cfg.force_fallback:
        a(f"s_cmp_eq_u32 s{sMODE}, 0")
    else:
        a(f"s_cmp_lg_u32 s{sT1}, 0")
    a("s_cbranch_scc1 L_fallback")

class Prof:
    def __init__(self, a, va):
        self.a = a
        if Cfg.profile:
            self.vo = va.get()
            self.vd = va.get(8)
            a(f"s_lshl_b32 s{sT0}, s{sX}, 5")
            a(f"s_add_u32 s{sT0}, s{sT0}, s{sSLOT}")
            a(f"s_lshl_b32 s{sT0}, s{sT0}, 2")
            a(f"s_add_u32 s{sT0}, s{sT0}, s{sWV}")
            a(f"s_lshl_b32 s{sT0}, s{sT0}, 11")
            a(f"s_add_u32 s{sT0}, s{sT0}, {PROF_OFF:#x}")
            a(f"v_lshlrev_b32 v{self.vo}, 2, v0")
            a(f"v_add_u32 v{self.vo}, s{sT0}, v{self.vo}")
            for k in range(8):
                a(f"v_mov_b32 v{self.vd+k}, 0")
            a(f"v_writelane_b32 v{self.vd+7}, s3, 0")
            self.mark(1)
    def stamp(self, k, cyc=False, keep_m0=False, lite=False):
        if not Cfg.profile or (Cfg.lite and not lite):
            return
        a = self.a
        if keep_m0:
            a("s_mov_b32 s100, m0")
            a("s_cselect_b32 s97, 1, 0")
            self.stamp(k, cyc)
            a("s_mov_b32 m0, s100")
            a("s_cmp_eq_u32 s97, 1")
            return
        a("s_memrealtime s[98:99]" if (Cfg.realtime and not cyc) else "s_memtime s[98:99]")
        a(f"s_and_b32 m0, s{sS}, 63")
        a("s_waitcnt lgkmcnt(0)")
        a(f"v_writelane_b32 v{self.vd+k}, s98, m0")
    def mark(self, lane):
        if not (Cfg.profile and Cfg.lite):
            return
        a = self.a
        a("s_memrealtime s[98:99]")
        a("s_waitcnt lgkmcnt(0)")
        a(f"v_writelane_b32 v{self.vd+7}, s98, {lane}")
    def dump(self):
        if not Cfg.profile:
            return
        a = self.a
        for k in range(8):
            a(f"buffer_store_dword v{self.vd+k}, v{self.vo}, {WS}, 0 offen offset:{256*k}")

def weight_dma(a, vW, chunk, buf, stride, sB):
    for i in range(16):
        a(f"s_add_u32 m0, s{sB+1}, {buf*65536 + i*1024}")
        a(f"s_add_u32 s{sT0}, s{sB}, {(chunk*256 + 4*i)*stride}")
        a(f"buffer_load_dwordx4 v{vW}, {WW}, s{sT0} offen lds")

def weight_tr(a, vTR, group):
    for ks in range(8):
        for t in range(2):
            for q in range(2):
                d = group * 64 + (ks >> 1) * 16 + t * 8 + (ks & 1) * 4 + 2 * q
                a(f"ds_read_b64_tr_b16 {ar(d,2)}, v{vTR[q]} offset:{ks*8192 + 8*t}")
    a("s_waitcnt lgkmcnt(0)")

def weight_addr_setup(a, va, stride, sB, swap):
    vW = va.get(); vTR = va.get(4); t0 = va.get(); t1 = va.get()
    a(f"v_lshrrev_b32 v{t0}, 4, v0")
    a(f"v_lshlrev_b32 v{t1}, 2, v{t0}")
    a(f"v_and_b32 v{vW}, 15, v0")
    a(f"v_xor_b32 v{vW}, v{vW}, v{t1}")
    a(f"v_lshlrev_b32 v{vW}, 4, v{vW}")
    a(f"v_mul_u32_u24 v{t0}, {stride}, v{t0}")
    a(f"v_add_u32 v{vW}, v{vW}, v{t0}")
    if swap:
        a(f"v_bfe_u32 v{t0}, v0, 3, 1")
        a(f"v_bfe_u32 v{t1}, v0, 2, 1")
        a(f"v_lshl_add_u32 v{t0}, v{t0}, 2, v{t1}")
    else:
        a(f"v_bfe_u32 v{t0}, v0, 2, 2")
    if swap:
        a(f"v_bfe_u32 v{t1}, v0, 1, 1")
        a(f"v_and_b32 v{vTR}, 1, v0")
        a(f"v_lshl_add_u32 v{t1}, v{vTR}, 1, v{t1}")
    else:
        a(f"v_and_b32 v{t1}, 3, v0")
    a(f"s_lshl_b32 s{sT0}, s{sWV}, 2")
    a(f"v_add_u32 v{t1}, s{sT0}, v{t1}")
    a(f"v_and_b32 v{vTR}, 3, v{t0}")
    a(f"v_lshlrev_b32 v{vTR}, 2, v{vTR}")
    a(f"v_xor_b32 v{t1}, v{t1}, v{vTR}")
    a(f"v_lshlrev_b32 v{t1}, 4, v{t1}")
    a(f"v_lshrrev_b32 v{vTR}, 4, v0")
    a(f"v_lshlrev_b32 v{vTR}, 3, v{vTR}")
    a(f"v_add_u32 v{vTR}, v{vTR}, v{t0}")
    a(f"v_lshlrev_b32 v{vTR}, 8, v{vTR}")
    a(f"v_add_u32 v{vTR}, v{vTR}, v{t1}")
    if swap:
        a(f"v_xor_b32 v{vTR+1}, 128, v{vTR}")
        a(f"v_add_u32 v{vTR+1}, 512, v{vTR+1}")
    else:
        a(f"v_add_u32 v{vTR+1}, 1024, v{vTR}")
    a(f"v_add_u32 v{vTR+2}, 0x10000, v{vTR}")
    a(f"v_add_u32 v{vTR+3}, 0x10000, v{vTR+1}")
    a(f"s_mul_i32 s{sB}, s{sWV}, {64*stride}")
    a(f"s_lshl_b32 s{sB+1}, s{sWV}, 14")
    return vW, ((vTR, vTR + 1), (vTR + 2, vTR + 3)), t0, t1

def idx_setup(a, vIDX, t0):
    a(f"v_and_b32 v{t0}, 8, v0")
    a(f"v_cmp_ne_u32 vcc, 0, v{t0}")
    a(f"v_mov_b32 v{vIDX}, 0x44444444")
    a(f"v_mov_b32 v{t0}, 0xeeeeeeee")
    a("s_nop 1")
    a(f"v_cndmask_b32 v{vIDX}, v{vIDX}, v{t0}, vcc")

def halfsum(a, acc0, acc1, out):
    for r in range(4):
        a(f"v_permlane32_swap_b32 v{acc0+r}, v{acc1+r}")
    for r in range(4):
        a(f"v_add_f32 v{acc0+r}, v{acc0+r}, v{acc1+r}")
    a(f"v_cvt_pk_bf16_f32 v{out}, v{acc0}, v{acc0+1}")
    a(f"v_cvt_pk_bf16_f32 v{out+1}, v{acc0+2}, v{acc0+3}")

def xlane_gg(a, op, v, t):
    for sw in ("v_permlane16_swap_b32", "v_permlane32_swap_b32"):
        a(f"v_mov_b32 v{t}, v{v}")
        a("s_nop 1")
        a(f"{sw} v{v}, v{t}")
        a(f"{op} v{v}, v{v}, v{t}")

def dispatch(a, mode):
    from gen_f import role_f
    from gen_proj import role_proj
    from gen_t import role_t
    from gen_or import role_or
    LP, LO, LT, LF = (f"L_role_{n}_{mode}" for n in "potf")
    LF = "L_role_f"
    a(f"s_mov_b32 s{sMODE}, {128*mode}")
    a(f"s_cmp_lt_u32 s{sSLOT}, 12")
    a(f"s_cbranch_scc1 {LP}")
    a(f"s_cmp_lt_u32 s{sSLOT}, 20")
    a(f"s_cbranch_scc1 {LO}")
    a(f"s_cmp_lt_u32 s{sSLOT}, 28")
    a(f"s_cbranch_scc1 {LT}")
    a(f"s_branch {LF}")
    for lab, fn in ((LP, role_proj), (LO, role_or), (LT, role_t), (LF, role_f)):
        if fn is role_f and mode == 0:
            continue
        a.abort = lab + "_abort"
        a.label(a.abort)
        a("s_endpgm")
        a.lines.append(".p2align 6")
        a.label(lab)
        fn(a, mode)

def build():
    a = Asm()
    a("s_cmp_ge_u32 s2, 256")
    a("s_cbranch_scc0 L_start")
    a("s_endpgm")
    a.label("L_start")
    for i, off in enumerate((0, 16, 32, 64, 80, 96)):
        a(f"s_load_dwordx4 s[{36+4*i}:{39+4*i}], s[0:1], {off}")
    if Cfg.profile:
        a("s_memrealtime s[98:99]")
        a("s_waitcnt lgkmcnt(0)")
        a("s_mov_b32 s3, s98")
    a(f"s_getreg_b32 s{sX}, hwreg(HW_REG_XCC_ID)")
    a(f"s_and_b32 s{sX}, s{sX}, 15")
    a("v_lshrrev_b32 v1, 6, v0")
    a("v_and_b32 v0, 63, v0")
    a(f"v_readfirstlane_b32 s{sWV}, v1")
    a(f"s_mov_b32 s{sBUD}, {Cfg.budget}")
    a(f"s_mov_b32 s{sS}, -2")
    a(f"s_mov_b32 s{sMODE}, 0")
    a("s_waitcnt lgkmcnt(0)")
    srd(a, S_WS, P_WS, WS_HALF)
    srd(a, S_X, P_X, 4 * MB)
    srd(a, S_DBG, P_DBG, 256)
    a(f"s_and_b32 s{sT2}, s{sX}, 7")
    a("v_mov_b32 v3, 0")
    a(f"s_cmp_eq_u32 s{sWV}, 0")
    a("s_cbranch_scc0 L_notk0")
    a(f"s_lshl_b32 s{sT0}, s{sT2}, 5")
    a(f"s_lshr_b32 s{sSLOT}, s{sX}, 3")
    a(f"s_xor_b32 s{sSLOT}, s{sSLOT}, 1")
    a(f"s_atomic_add s{sSLOT}, s[{P_DBG}:{P_DBG+1}], s{sT0} glc")
    a.label("L_notk0")
    if not Cfg.no_wpf:
        a("s_lshr_b32 s72, s2, 3")
        a("s_lshl_b32 s72, s72, 2")
        a(f"s_add_u32 s72, s72, s{sWV}")
        a("v_lshrrev_b32 v4, 3, v0")
        a("v_lshlrev_b32 v4, 13, v4")
        a("v_and_b32 v5, 7, v0")
        a("v_lshl_add_u32 v4, v5, 7, v4")
        a("s_lshl_b32 s73, s72, 16")
        a(f"s_lshl_b32 s74, s{sT2}, 10")
        a("s_add_u32 s73, s73, s74")
        a("v_add_u32 v4, s73, v4")
        a("s_lshl_b32 s73, s72, 13")
        a(f"s_lshl_b32 s74, s{sT2}, 20")
        a("s_add_u32 s73, s73, s74")
        a("v_lshlrev_b32 v5, 7, v0")
        a("v_add_u32 v5, s73, v5")
        for k, ptr in enumerate((P_WQ, P_WK, P_WV)):
            a(f"global_load_dword v{252+k}, v4, s[{ptr}:{ptr+1}]")
        a(f"global_load_dword v255, v5, s[{P_WO}:{P_WO+1}]")
    a(f"s_cmp_eq_u32 s{sWV}, 0")
    a("s_cbranch_scc0 L_noticket")
    a("s_waitcnt lgkmcnt(0)")
    a(f"v_mov_b32 v2, s{sSLOT}")
    a("ds_write_b32 v3, v2")
    a("s_waitcnt lgkmcnt(0)")
    a.label("L_noticket")
    a("s_barrier")
    a("ds_read_b32 v2, v3")
    a("s_waitcnt lgkmcnt(0)")
    a(f"v_readfirstlane_b32 s{sSLOT}, v2")
    a("s_barrier")
    a(f"s_cmp_ge_u32 s{sX}, 8")
    a("s_cbranch_scc1 L_overflow")
    a(f"s_cmp_ge_u32 s{sSLOT}, 32")
    a("s_cbranch_scc1 L_overflow")
    a("s_branch L_mode0")
    a.label("L_overflow")
    signal(a, DBG_H1, 0x10000)
    a.label("L_fallback")
    a("s_mov_b64 exec, -1")
    a("s_waitcnt vmcnt(0) lgkmcnt(0)")
    a("s_barrier")
    a(f"s_lshr_b32 s{sX}, s2, 5")
    a(f"s_and_b32 s{sSLOT}, s2, 31")
    a(f"s_add_u32 s{S_WS}, s{P_WS}, {WS_HALF:#x}")
    a(f"s_addc_u32 s{S_WS+1}, s{P_WS+1}, 0")
    a(f"s_mov_b32 s{sS}, -2")
    dispatch(a, 1)
    a.lines.append(".p2align 6")
    a.label("L_mode0")
    dispatch(a, 0)
    return a.text()

HEADER = open(os.path.join(os.path.dirname(os.path.abspath(__file__)), "header.txt")).read()

def full_text():
    body = build()
    return (HEADER + f"; @launch grid=(256,1,1) block=(256,1,1) lds={LDS_BYTES}\n"
            + '.amdgcn_target "amdgcn-amd-amdhsa--gfx950"\n.text\n'
            + f".globl {KNAME}\n.p2align 8\n.type {KNAME},@function\n{KNAME}:\n"
            + body
            + '.section .rodata,"a"\n.p2align 6\n'
            + f".amdhsa_kernel {KNAME}\n"
            + "  .amdhsa_next_free_vgpr 512\n  .amdhsa_next_free_sgpr 102\n  .amdhsa_accum_offset 256\n"
            + "  .amdhsa_group_segment_fixed_size 0\n  .amdhsa_kernarg_size 112\n  .amdhsa_user_sgpr_count 2\n"
            + "  .amdhsa_user_sgpr_kernarg_segment_ptr 1\n  .amdhsa_system_sgpr_workgroup_id_x 1\n"
            + "  .amdhsa_float_denorm_mode_32 3\n"
            + ".end_amdhsa_kernel\n")

if __name__ == "__main__":
    import gen as G
    out = sys.argv[1]
    for o in sys.argv[2:]:
        if "=" in o:
            k, v = o.split("="); setattr(G.Cfg, k, int(v))
        else:
            setattr(G.Cfg, o, True)
    open(out, "w").write(G.full_text())
```

```python
import sys, os, struct, math

KNAME = "gated_mix__memory_aug_recurrent_mem_tr__spectral_gfnet__prompt_kernel"
MB = 1 << 20

XP_OFF    = 0
XP_SH, XP_MASK = 15, 3
XPART_OFF = 48 * MB
FLG_OFF   = 80 * MB
RT_OFF    = 84 * MB
HT_OFF    = 88 * MB
Z_OFF     = 92 * MB
GATE_OFF  = 96 * MB
PM_OFF    = 98 * MB
PP_OFF    = 99 * MB
PX_OFF    = 100 * MB
PART_OFF  = 102 * MB
MEM_OFF   = 97 * MB
TW_OFF    = 101 * MB
PROF_OFF  = 104 * MB
WS_HALF   = 128 * MB

LDS_BYTES = 163840

def f32bits(x):
    return struct.unpack("<I", struct.pack("<f", x))[0]

class Asm:
    def __init__(self):
        self.lines = []
        self.uid = 0
    def __call__(self, s):
        for ln in s.split("\n"):
            ln = ln.strip()
            if ln:
                self.lines.append(" " + ln)
    def label(self, n):
        self.lines.append(n + ":")
    def newlabel(self, p):
        self.uid += 1
        return f"L_{p}_{self.uid}"
    def nop(self, n):
        while n > 0:
            k = min(n, 16)
            self(f"s_nop {k-1}")
            n -= k
    def text(self):
        return "\n".join(self.lines) + "\n"

def vr(b, n=1):
    return f"v{b}" if n == 1 else f"v[{b}:{b+n-1}]"
def ar(b, n=1):
    return f"a{b}" if n == 1 else f"a[{b}:{b+n-1}]"
def sr(b, n=1):
    return f"s{b}" if n == 1 else f"s[{b}:{b+n-1}]"

S_WS, S_X, S_W, S_DBG, S_OUT, S_WR, S_WI, S_AUX = 4, 8, 12, 16, 20, 24, 28, 32
P_X, P_MEM0, P_WQ, P_WK, P_WV, P_WO, P_WR, P_WI, P_GATE, P_OUT, P_DBG, P_WS = range(36, 60, 2)
sX, sSLOT, sWV, sBUD, sS = 60, 61, 62, 63, 64
sMODE = 101
sT0, sT1, sT2, sT3, sT4, sT5 = 65, 66, 67, 68, 69, 70
WS, XS, WW, DBG = sr(S_WS, 4), sr(S_X, 4), sr(S_W, 4), sr(S_DBG, 4)

DBG_H1 = 4
DBG_FB = 8

class Cfg:
    profile = False
    force_fallback = False
    no_f = False
    realtime = False
    lite = False
    r_at = 14
    r2_at = 26
    r_sp = 2
    xpf_sleep = 6
    pp_prime = 3
    warm1 = 3
    warm2 = 2
    no_xpf = False
    no_wpf = False
    dbgtime = False
    r_split = 30
    st_at = 12
    px_at = 20
    r_delay = 3
    r_gap = 2
    t0_idle = 30
    r_idle = 20
    t3_sleep = 24
    f_sleep = 20
    pp_lds = True
    pipe_mem = False
    pipe_pp = False
    pipe_part = False
    budget = 400000

class VAlloc:
    def __init__(self, start=1):
        self.n = start
    def get(self, cnt=1, align=1):
        if cnt > 1 and align == 1:
            align = 2
        self.n = (self.n + align - 1) // align * align
        b = self.n
        self.n += cnt
        assert self.n <= 252, "out of VGPRs"
        return b

def srd(a, s, ptr, nbytes):
    a(f"s_mov_b32 s{s}, s{ptr}")
    a(f"s_mov_b32 s{s+1}, s{ptr+1}")
    a(f"s_mov_b32 s{s+2}, {nbytes:#x}")
    a(f"s_mov_b32 s{s+3}, 0x00020000")

def maxtree(a, regs, tmp):
    regs = list(regs)
    if len(regs) == 1:
        a(f"v_mov_b32 v{tmp}, v{regs[0]}")
        return
    if len(regs) == 2:
        a(f"v_max_u32 v{tmp}, v{regs[0]}, v{regs[1]}")
        return
    a(f"v_max3_u32 v{tmp}, v{regs[0]}, v{regs[1]}, v{regs[2]}")
    i = 3
    while i < len(regs):
        if i + 1 < len(regs):
            a(f"v_max3_u32 v{tmp}, v{tmp}, v{regs[i]}, v{regs[i+1]}")
            i += 2
        else:
            a(f"v_max_u32 v{tmp}, v{tmp}, v{regs[i]}")
            i += 1

def poll(a, loads, regs, tmp, sleep=0):
    L = a.newlabel("poll")
    F = a.newlabel("pfirst")
    a(f"s_branch {F}")
    a.label(L)
    if sleep:
        a(f"s_sleep {sleep}")
    a(f"s_sub_u32 s{sBUD}, s{sBUD}, 1")
    a(f"s_cbranch_scc1 {a.abort}")
    a.label(F)
    for l in loads:
        a(l)
    a("s_waitcnt vmcnt(0)")
    maxtree(a, regs, tmp)
    a(f"v_cmp_eq_u32 vcc, -1, v{tmp}")
    a(f"s_cbranch_vccnz {L}")

def poll2(a, loads, regs, tmp, gap=0, primed=False, extra=None, nextra=0):
    L = a.newlabel("poll")
    F = a.newlabel("pchk")
    if not primed:
        for l in loads:
            a(l)
        if gap:
            a(f"s_sleep {gap}")
    if extra:
        for l in loads:
            a(l)
        extra()
        a(f"s_waitcnt vmcnt({len(loads) + nextra})")
        a(f"s_branch {F}")
    a.label(L)
    a(f"s_sub_u32 s{sBUD}, s{sBUD}, 1")
    a(f"s_cbranch_scc1 {a.abort}")
    for l in loads:
        a(l)
    a(f"s_waitcnt vmcnt({len(loads)})")
    a.label(F)
    maxtree(a, regs, tmp)
    a(f"v_cmp_eq_u32 vcc, -1, v{tmp}")
    a(f"s_cbranch_vccnz {L}")

def signal(a, byte_off, val):
    L = a.newlabel("nosig")
    a(f"s_cmp_eq_u32 s{sWV}, 0")
    a(f"s_cbranch_scc0 {L}")
    a(f"s_add_u32 s{sT0}, s{sMODE}, {byte_off}")
    a(f"s_mov_b32 s{sT1}, {val:#x}")
    a(f"s_atomic_add s{sT1}, s[{P_DBG}:{P_DBG+1}], s{sT0}")
    a("s_waitcnt lgkmcnt(0)")
    a.label(L)

def dbg_time(a, word, inv=False):
    if not Cfg.dbgtime:
        return
    a("s_memrealtime s[98:99]")
    a("s_waitcnt lgkmcnt(0)")
    if inv:
        a("s_not_b32 s98, s98")
    a(f"s_atomic_umax s98, s[{P_DBG}:{P_DBG+1}], {4*word}")
    a("s_waitcnt lgkmcnt(0)")

def wait_counter(a, byte_off, target, vt0, vt1, sleep, split16=False):
    L = a.newlabel("wc")
    D = a.newlabel("wcok")
    a(f"v_mov_b32 v{vt0}, {byte_off}")
    a.label(L)
    a(f"buffer_load_dword v{vt1}, v{vt0}, {DBG}, s{sMODE} offen sc1")
    a("s_waitcnt vmcnt(0)")
    a(f"v_readfirstlane_b32 s{sT0}, v{vt1}")
    a("s_nop 3")
    if split16:
        a(f"s_lshr_b32 s{sT1}, s{sT0}, 16")
        a(f"s_and_b32 s{sT2}, s{sT0}, 0xffff")
        a(f"s_add_u32 s{sT2}, s{sT2}, s{sT1}")
        a(f"s_cmp_ge_u32 s{sT2}, {target}")
    else:
        a(f"s_cmp_ge_u32 s{sT0}, {target}")
    a(f"s_cbranch_scc1 {D}")
    a(f"s_sleep {sleep}")
    a(f"s_sub_u32 s{sBUD}, s{sBUD}, 1")
    a(f"s_cbranch_scc0 {L}")
    a("s_endpgm")
    a.label(D)

def handshake_wait(a, mode, vt0, vt1, sleep):
    wait_counter(a, DBG_H1, 256, vt0, vt1, sleep, split16=True)
    if Cfg.force_fallback:
        a(f"s_cmp_eq_u32 s{sMODE}, 0")
    else:
        a(f"s_cmp_lg_u32 s{sT1}, 0")
    a("s_cbranch_scc1 L_fallback")

class Prof:
    def __init__(self, a, va):
        self.a = a
        if Cfg.profile:
            self.vo = va.get()
            self.vd = va.get(8)
            a(f"s_lshl_b32 s{sT0}, s{sX}, 5")
            a(f"s_add_u32 s{sT0}, s{sT0}, s{sSLOT}")
            a(f"s_lshl_b32 s{sT0}, s{sT0}, 2")
            a(f"s_add_u32 s{sT0}, s{sT0}, s{sWV}")
            a(f"s_lshl_b32 s{sT0}, s{sT0}, 11")
            a(f"s_add_u32 s{sT0}, s{sT0}, {PROF_OFF:#x}")
            a(f"v_lshlrev_b32 v{self.vo}, 2, v0")
            a(f"v_add_u32 v{self.vo}, s{sT0}, v{self.vo}")
            for k in range(8):
                a(f"v_mov_b32 v{self.vd+k}, 0")
            a(f"v_writelane_b32 v{self.vd+7}, s3, 0")
            self.mark(1)
    def stamp(self, k, cyc=False, keep_m0=False, lite=False):
        if not Cfg.profile or (Cfg.lite and not lite):
            return
        a = self.a
        if keep_m0:
            a("s_mov_b32 s100, m0")
            a("s_cselect_b32 s97, 1, 0")
            self.stamp(k, cyc)
            a("s_mov_b32 m0, s100")
            a("s_cmp_eq_u32 s97, 1")
            return
        a("s_memrealtime s[98:99]" if (Cfg.realtime and not cyc) else "s_memtime s[98:99]")
        a(f"s_and_b32 m0, s{sS}, 63")
        a("s_waitcnt lgkmcnt(0)")
        a(f"v_writelane_b32 v{self.vd+k}, s98, m0")
    def mark(self, lane):
        if not (Cfg.profile and Cfg.lite):
            return
        a = self.a
        a("s_memrealtime s[98:99]")
        a("s_waitcnt lgkmcnt(0)")
        a(f"v_writelane_b32 v{self.vd+7}, s98, {lane}")
    def dump(self):
        if not Cfg.profile:
            return
        a = self.a
        for k in range(8):
            a(f"buffer_store_dword v{self.vd+k}, v{self.vo}, {WS}, 0 offen offset:{256*k}")

def weight_dma(a, vW, chunk, buf, stride, sB):
    for i in range(16):
        a(f"s_add_u32 m0, s{sB+1}, {buf*65536 + i*1024}")
        a(f"s_add_u32 s{sT0}, s{sB}, {(chunk*256 + 4*i)*stride}")
        a(f"buffer_load_dwordx4 v{vW}, {WW}, s{sT0} offen lds")

def weight_tr(a, vTR, group):
    for ks in range(8):
        for t in range(2):
            for q in range(2):
                d = group * 64 + (ks >> 1) * 16 + t * 8 + (ks & 1) * 4 + 2 * q
                a(f"ds_read_b64_tr_b16 {ar(d,2)}, v{vTR[q]} offset:{ks*8192 + 8*t}")
    a("s_waitcnt lgkmcnt(0)")

def weight_addr_setup(a, va, stride, sB, swap):
    vW = va.get(); vTR = va.get(4); t0 = va.get(); t1 = va.get()
    a(f"v_lshrrev_b32 v{t0}, 4, v0")
    a(f"v_lshlrev_b32 v{t1}, 2, v{t0}")
    a(f"v_and_b32 v{vW}, 15, v0")
    a(f"v_xor_b32 v{vW}, v{vW}, v{t1}")
    a(f"v_lshlrev_b32 v{vW}, 4, v{vW}")
    a(f"v_mul_u32_u24 v{t0}, {stride}, v{t0}")
    a(f"v_add_u32 v{vW}, v{vW}, v{t0}")
    if swap:
        a(f"v_bfe_u32 v{t0}, v0, 3, 1")
        a(f"v_bfe_u32 v{t1}, v0, 2, 1")
        a(f"v_lshl_add_u32 v{t0}, v{t0}, 2, v{t1}")
    else:
        a(f"v_bfe_u32 v{t0}, v0, 2, 2")
    if swap:
        a(f"v_bfe_u32 v{t1}, v0, 1, 1")
        a(f"v_and_b32 v{vTR}, 1, v0")
        a(f"v_lshl_add_u32 v{t1}, v{vTR}, 1, v{t1}")
    else:
        a(f"v_and_b32 v{t1}, 3, v0")
    a(f"s_lshl_b32 s{sT0}, s{sWV}, 2")
    a(f"v_add_u32 v{t1}, s{sT0}, v{t1}")
    a(f"v_and_b32 v{vTR}, 3, v{t0}")
    a(f"v_lshlrev_b32 v{vTR}, 2, v{vTR}")
    a(f"v_xor_b32 v{t1}, v{t1}, v{vTR}")
    a(f"v_lshlrev_b32 v{t1}, 4, v{t1}")
    a(f"v_lshrrev_b32 v{vTR}, 4, v0")
    a(f"v_lshlrev_b32 v{vTR}, 3, v{vTR}")
    a(f"v_add_u32 v{vTR}, v{vTR}, v{t0}")
    a(f"v_lshlrev_b32 v{vTR}, 8, v{vTR}")
    a(f"v_add_u32 v{vTR}, v{vTR}, v{t1}")
    if swap:
        a(f"v_xor_b32 v{vTR+1}, 128, v{vTR}")
        a(f"v_add_u32 v{vTR+1}, 512, v{vTR+1}")
    else:
        a(f"v_add_u32 v{vTR+1}, 1024, v{vTR}")
    a(f"v_add_u32 v{vTR+2}, 0x10000, v{vTR}")
    a(f"v_add_u32 v{vTR+3}, 0x10000, v{vTR+1}")
    a(f"s_mul_i32 s{sB}, s{sWV}, {64*stride}")
    a(f"s_lshl_b32 s{sB+1}, s{sWV}, 14")
    return vW, ((vTR, vTR + 1), (vTR + 2, vTR + 3)), t0, t1

def idx_setup(a, vIDX, t0):
    a(f"v_and_b32 v{t0}, 8, v0")
    a(f"v_cmp_ne_u32 vcc, 0, v{t0}")
    a(f"v_mov_b32 v{vIDX}, 0x44444444")
    a(f"v_mov_b32 v{t0}, 0xeeeeeeee")
    a("s_nop 1")
    a(f"v_cndmask_b32 v{vIDX}, v{vIDX}, v{t0}, vcc")

def halfsum(a, acc0, acc1, out):
    for r in range(4):
        a(f"v_permlane32_swap_b32 v{acc0+r}, v{acc1+r}")
    for r in range(4):
        a(f"v_add_f32 v{acc0+r}, v{acc0+r}, v{acc1+r}")
    a(f"v_cvt_pk_bf16_f32 v{out}, v{acc0}, v{acc0+1}")
    a(f"v_cvt_pk_bf16_f32 v{out+1}, v{acc0+2}, v{acc0+3}")

def xlane_gg(a, op, v, t):
    for sw in ("v_permlane16_swap_b32", "v_permlane32_swap_b32"):
        a(f"v_mov_b32 v{t}, v{v}")
        a("s_nop 1")
        a(f"{sw} v{v}, v{t}")
        a(f"{op} v{v}, v{v}, v{t}")

def dispatch(a, mode):
    from gen_f import role_f
    from gen_proj import role_proj
    from gen_t import role_t
    from gen_or import role_or
    LP, LO, LT, LF = (f"L_role_{n}_{mode}" for n in "potf")
    LF = "L_role_f"
    a(f"s_mov_b32 s{sMODE}, {128*mode}")
    a(f"s_cmp_lt_u32 s{sSLOT}, 12")
    a(f"s_cbranch_scc1 {LP}")
    a(f"s_cmp_lt_u32 s{sSLOT}, 20")
    a(f"s_cbranch_scc1 {LO}")
    a(f"s_cmp_lt_u32 s{sSLOT}, 28")
    a(f"s_cbranch_scc1 {LT}")
    a(f"s_branch {LF}")
    for lab, fn in ((LP, role_proj), (LO, role_or), (LT, role_t), (LF, role_f)):
        if fn is role_f and mode == 0:
            continue
        a.abort = lab + "_abort"
        a.label(a.abort)
        a("s_endpgm")
        a.lines.append(".p2align 6")
        a.label(lab)
        fn(a, mode)

def build():
    a = Asm()
    a("s_cmp_ge_u32 s2, 256")
    a("s_cbranch_scc0 L_start")
    a("s_endpgm")
    a.label("L_start")
    for i, off in enumerate((0, 16, 32, 64, 80, 96)):
        a(f"s_load_dwordx4 s[{36+4*i}:{39+4*i}], s[0:1], {off}")
    if Cfg.profile:
        a("s_memrealtime s[98:99]")
        a("s_waitcnt lgkmcnt(0)")
        a("s_mov_b32 s3, s98")
    a(f"s_getreg_b32 s{sX}, hwreg(HW_REG_XCC_ID)")
    a(f"s_and_b32 s{sX}, s{sX}, 15")
    a("v_lshrrev_b32 v1, 6, v0")
    a("v_and_b32 v0, 63, v0")
    a(f"v_readfirstlane_b32 s{sWV}, v1")
    a(f"s_mov_b32 s{sBUD}, {Cfg.budget}")
    a(f"s_mov_b32 s{sS}, -2")
    a(f"s_mov_b32 s{sMODE}, 0")
    a("s_waitcnt lgkmcnt(0)")
    srd(a, S_WS, P_WS, WS_HALF)
    srd(a, S_X, P_X, 4 * MB)
    srd(a, S_DBG, P_DBG, 256)
    a(f"s_and_b32 s{sT2}, s{sX}, 7")
    a("v_mov_b32 v3, 0")
    a(f"s_cmp_eq_u32 s{sWV}, 0")
    a("s_cbranch_scc0 L_notk0")
    a(f"s_lshl_b32 s{sT0}, s{sT2}, 5")
    a(f"s_lshr_b32 s{sSLOT}, s{sX}, 3")
    a(f"s_xor_b32 s{sSLOT}, s{sSLOT}, 1")
    a(f"s_atomic_add s{sSLOT}, s[{P_DBG}:{P_DBG+1}], s{sT0} glc")
    a.label("L_notk0")
    if not Cfg.no_wpf:
        a("s_lshr_b32 s72, s2, 3")
        a("s_lshl_b32 s72, s72, 2")
        a(f"s_add_u32 s72, s72, s{sWV}")
        a("v_lshrrev_b32 v4, 3, v0")
        a("v_lshlrev_b32 v4, 13, v4")
        a("v_and_b32 v5, 7, v0")
        a("v_lshl_add_u32 v4, v5, 7, v4")
        a("s_lshl_b32 s73, s72, 16")
        a(f"s_lshl_b32 s74, s{sT2}, 10")
        a("s_add_u32 s73, s73, s74")
        a("v_add_u32 v4, s73, v4")
        a("s_lshl_b32 s73, s72, 13")
        a(f"s_lshl_b32 s74, s{sT2}, 20")
        a("s_add_u32 s73, s73, s74")
        a("v_lshlrev_b32 v5, 7, v0")
        a("v_add_u32 v5, s73, v5")
        for k, ptr in enumerate((P_WQ, P_WK, P_WV)):
            a(f"global_load_dword v{252+k}, v4, s[{ptr}:{ptr+1}]")
        a(f"global_load_dword v255, v5, s[{P_WO}:{P_WO+1}]")
    a(f"s_cmp_eq_u32 s{sWV}, 0")
    a("s_cbranch_scc0 L_noticket")
    a("s_waitcnt lgkmcnt(0)")
    a(f"v_mov_b32 v2, s{sSLOT}")
    a("ds_write_b32 v3, v2")
    a("s_waitcnt lgkmcnt(0)")
    a.label("L_noticket")
    a("s_barrier")
    a("ds_read_b32 v2, v3")
    a("s_waitcnt lgkmcnt(0)")
    a(f"v_readfirstlane_b32 s{sSLOT}, v2")
    a("s_barrier")
    a(f"s_cmp_ge_u32 s{sX}, 8")
    a("s_cbranch_scc1 L_overflow")
    a(f"s_cmp_ge_u32 s{sSLOT}, 32")
    a("s_cbranch_scc1 L_overflow")
    a("s_branch L_mode0")
    a.label("L_overflow")
    signal(a, DBG_H1, 0x10000)
    a.label("L_fallback")
    a("s_mov_b64 exec, -1")
    a("s_waitcnt vmcnt(0) lgkmcnt(0)")
    a("s_barrier")
    a(f"s_lshr_b32 s{sX}, s2, 5")
    a(f"s_and_b32 s{sSLOT}, s2, 31")
    a(f"s_add_u32 s{S_WS}, s{P_WS}, {WS_HALF:#x}")
    a(f"s_addc_u32 s{S_WS+1}, s{P_WS+1}, 0")
    a(f"s_mov_b32 s{sS}, -2")
    dispatch(a, 1)
    a.lines.append(".p2align 6")
    a.label("L_mode0")
    dispatch(a, 0)
    return a.text()

HEADER = open(os.path.join(os.path.dirname(os.path.abspath(__file__)), "header.txt")).read()

def full_text():
    body = build()
    return (HEADER + f"; @launch grid=(256,1,1) block=(256,1,1) lds={LDS_BYTES}\n"
            + '.amdgcn_target "amdgcn-amd-amdhsa--gfx950"\n.text\n'
            + f".globl {KNAME}\n.p2align 8\n.type {KNAME},@function\n{KNAME}:\n"
            + body
            + '.section .rodata,"a"\n.p2align 6\n'
            + f".amdhsa_kernel {KNAME}\n"
            + "  .amdhsa_next_free_vgpr 512\n  .amdhsa_next_free_sgpr 102\n  .amdhsa_accum_offset 256\n"
            + "  .amdhsa_group_segment_fixed_size 0\n  .amdhsa_kernarg_size 112\n  .amdhsa_user_sgpr_count 2\n"
            + "  .amdhsa_user_sgpr_kernarg_segment_ptr 1\n  .amdhsa_system_sgpr_workgroup_id_x 1\n"
            + "  .amdhsa_float_denorm_mode_32 3\n"
            + ".end_amdhsa_kernel\n")

if __name__ == "__main__":
    import gen as G
    out = sys.argv[1]
    for o in sys.argv[2:]:
        if "=" in o:
            k, v = o.split("="); setattr(G.Cfg, k, int(v))
        else:
            setattr(G.Cfg, o, True)
    open(out, "w").write(G.full_text())
```

```python
from gen import *

LOG2E = math.log2(math.e)

def role_f(a, mode):
    va = VAlloc()
    t0 = va.get(); t1 = va.get(); t2 = va.get(); t3 = va.get()
    sFI, sE, sDB, sK, sLB = 72, 73, 74, 75, 76
    sROW = 78
    sO0, sO1, sO2, sO3 = 86, 87, 88, 89
    sMA, sMB = 90, 92
    a(f"s_sub_u32 s{sFI}, s{sSLOT}, 28")
    prof = Prof(a, va)
    NOP = a.newlabel("f_noprobe"); PRD = a.newlabel("f_probed")
    a(f"v_min_u32 v{t2}, 1, v0")
    a(f"v_lshlrev_b32 v{t2}, 28, v{t2}")
    a(f"s_cmp_eq_u32 s{sFI}, 0")
    a(f"s_cbranch_scc0 {NOP}")
    a(f"s_cmp_eq_u32 s{sWV}, 0")
    a(f"s_cbranch_scc0 {PRD}")
    a(f"s_lshl_b32 s{sT0}, s{sX}, 7")
    a(f"s_add_u32 s{sO0}, s{sT0}, {PART_OFF + MB:#x}")
    a(f"s_add_u32 s{sO1}, s{sO0}, 8192")
    a(f"s_mov_b32 s{sO2}, -1")
    a(f"s_mov_b32 s{sO3}, -1")
    a(f"s_mov_b32 s{sK}, 5")
    PL = a.newlabel("f_probe")
    a.label(PL)
    for k in range(2):
        a(f"buffer_store_dword v{t2}, v{t2}, {WS}, s{sO0+k} offen sc1")
    a("s_waitcnt vmcnt(0)")
    for k in range(2):
        a("s_memtime s[94:95]")
        a("s_waitcnt lgkmcnt(0)")
        a(f"buffer_load_dword v{t0}, v{t2}, {WS}, s{sO0+k} offen sc1")
        a("s_waitcnt vmcnt(0)")
        a("s_memtime s[96:97]")
        a("s_waitcnt lgkmcnt(0)")
        a("s_sub_u32 s96, s96, s94")
        a(f"s_min_u32 s{sO2+k}, s{sO2+k}, s96")
    a(f"s_sub_u32 s{sK}, s{sK}, 1")
    a(f"s_cmp_lg_u32 s{sK}, 0")
    a(f"s_cbranch_scc1 {PL}")
    a(f"s_cmp_lt_u32 s{sO3}, s{sO2}")
    a(f"s_cselect_b32 s{sT1}, 2, 1")
    a(f"s_lshl_b32 s{sT0}, s{sX}, 5")
    a(f"s_lshr_b32 s{sT2}, s{sMODE}, 5")
    a(f"s_add_u32 s{sT0}, s{sT0}, s{sT2}")
    a(f"s_add_u32 s{sT0}, s{sT0}, {DBG_CL}")
    a(f"s_atomic_add s{sT1}, s[{P_DBG}:{P_DBG+1}], s{sT0}")
    a("s_waitcnt lgkmcnt(0)")
    a.label(PRD)
    a("s_barrier")
    a.label(NOP)
    a(f"s_sub_u32 s{sT3}, s{sSLOT}, 20")
    helper_prefetch(a, sT3, t0, t1)
    dbg_time(a, 5, True)
    if Cfg.no_f:
        a("s_sleep 100")
        handshake_wait(a, mode, t0, t1, 40)
        a("s_endpgm")
        return
    OUTS, WRS, WIS, AUX = sr(S_OUT, 4), sr(S_WR, 4), sr(S_WI, 4), sr(S_AUX, 4)
    srd(a, S_OUT, P_OUT, 4 * MB)
    srd(a, S_WR, P_WR, 2048 * 1026)
    srd(a, S_WI, P_WI, 2048 * 1026)
    srd(a, S_AUX, P_GATE, 2048)
    vC = va.get(); vHH = va.get(); vPERM = va.get()
    vDM = va.get(2); vRB = va.get(4); vINC = va.get(2); vOA = va.get(); vLW = va.get(); vLR = va.get()
    vW1 = va.get(); vW2 = va.get(); vW20 = va.get(); Y = va.get(4)
    TH = va.get(16, 4); CS = va.get(16, 4); GN = va.get(16, 4); FR = va.get(32, 4)
    BIG = va.get(128, 4)
    EX = TH
    a(f"v_and_b32 v{vC}, 31, v0")
    a(f"v_lshrrev_b32 v{vHH}, 5, v0")
    a(f"v_bfe_u32 v{t0}, v0, 2, 1")
    a(f"v_bfe_u32 v{t1}, v0, 3, 2")
    a(f"v_lshlrev_b32 v{t0}, 4, v{t0}")
    a(f"v_lshl_add_u32 v{t0}, v{t1}, 2, v{t0}")
    a(f"v_and_b32 v{t1}, 3, v0")
    a(f"v_add_u32 v{vPERM}, v{t0}, v{t1}")

    for i in range(Cfg.f_wait):
        a("s_sleep 32")
    a(f"s_lshl_b32 s{sT0}, s{sX}, 2")
    a(f"s_add_u32 s{sT0}, s{sT0}, s{sFI}")
    a(f"s_lshl_b32 s{sT0}, s{sT0}, 2")
    a(f"s_add_u32 s{sT0}, s{sT0}, s{sWV}")
    a(f"s_lshl_b32 s{sT1}, s{sT0}, 15")
    a(f"v_lshlrev_b32 v{t0}, 4, v0")
    for k in range(2):
        a(f"buffer_load_dwordx4 {vr(EX+4*k,4)}, v{t0}, {AUX}, 0 offen offset:{1024*k}")
    for r in range(16):
        for k in range(2):
            a(f"buffer_load_dwordx4 {vr(BIG+8*r+4*k,4)}, v{t0}, {XS}, s{sT1} offen offset:{1024*k} {WFL[Cfg.ffl]}")
        a(f"s_add_u32 s{sT1}, s{sT1}, 2048")
    a("s_waitcnt vmcnt(0)")
    G = EX + 8
    for r in range(16):
        a(f"v_mov_b32 v{G+r}, 0")
    for k in range(8):
        for r in range(16):
            a(f"v_dot2_f32_bf16 v{G+r}, v{BIG+8*r+k}, v{EX+k}, v{G+r}")
    a.nop(3)
    for sh in (8, 4, 2, 1):
        for r in range(16):
            a(f"v_add_f32_dpp v{G+r}, v{G+r}, v{G+r} row_ror:{sh} row_mask:0xf bank_mask:0xf")
    a(f"v_mov_b32 v{t2}, v{G}")
    a(f"v_and_b32 v{t0}, 15, v0")
    for r in range(1, 16):
        a(f"v_cmp_eq_u32 vcc, {r}, v{t0}")
        a("s_nop 1")
        a(f"v_cndmask_b32 v{t2}, v{t2}, v{G+r}, vcc")
    xlane_gg(a, "v_add_f32", t2, t1)
    a(f"v_mul_f32 v{t2}, {f32bits(-LOG2E):#x}, v{t2}")
    a(f"v_exp_f32 v{t2}, v{t2}")
    a("s_nop 0")
    a(f"v_add_f32 v{t2}, 1.0, v{t2}")
    a(f"v_rcp_f32 v{t2}, v{t2}")
    a(f"v_lshrrev_b32 v{t1}, 4, v0")
    a(f"v_min_u32 v{t1}, 1, v{t1}")
    a(f"v_lshlrev_b32 v{t1}, 28, v{t1}")
    a(f"v_lshl_add_u32 v{t1}, v0, 2, v{t1}")
    a(f"s_lshl_b32 s{sT0}, s{sT0}, 6")
    a(f"s_add_u32 s{sT0}, s{sT0}, {GATE_OFF:#x}")
    a(f"buffer_store_dword v{t2}, v{t1}, {WS}, s{sT0} offen sc1")

    DEPTH = 6
    NFR = 8

    def gemm(stage, half=0):
        fwd = stage in (1, 2)
        gen_is_a = stage in (2, 4)
        N = 1024 if stage in (1, 4) else 2048
        K = 512 if stage == 4 else 1024
        NG = 1 if stage == 4 else 2
        accb = 128 * half
        stride = {1: 2048, 2: 4096, 3: 4096, 4: 2048}[stage]
        src = XS if stage == 1 else WS
        src_off = {1: 0, 2: RT_OFF, 3: HT_OFF, 4: Z_OFF + 1024 * half}[stage]
        fl = WFL[Cfg.ffl] if stage == 1 else "sc1"
        if stage == 1:
            a(f"s_lshr_b32 s{sE}, s{sFI}, 1")
        elif stage == 4:
            a(f"s_mov_b32 s{sE}, {half}")
        else:
            a(f"s_and_b32 s{sE}, s{sX}, 1")
        if stage == 4:
            a(f"s_lshl_b32 s{sT0}, s{sWV}, 7")
            a(f"s_add_u32 s{sT0}, s{sT0}, s{sX}")
            a(f"s_mul_i32 s{sT0}, s{sT0}, {4*stride}")
        elif stage == 1:
            a(f"s_lshl_b32 s{sT0}, s{sX}, 1")
            a(f"s_and_b32 s{sT1}, s{sWV}, 1")
            a(f"s_add_u32 s{sT0}, s{sT0}, s{sT1}")
            a(f"s_lshr_b32 s{sT1}, s{sWV}, 1")
            a(f"s_lshl_b32 s{sT1}, s{sT1}, 4")
            a(f"s_add_u32 s{sT0}, s{sT0}, s{sT1}")
            a(f"s_mul_i32 s{sT0}, s{sT0}, {64*stride}")
        else:
            a(f"s_lshr_b32 s{sDB}, s{sX}, 1")
            a(f"s_lshl_b32 s{sT0}, s{sDB}, 2")
            a(f"s_add_u32 s{sT0}, s{sT0}, s{sWV}")
            a(f"s_mul_i32 s{sT0}, s{sT0}, {64*stride}")
            a(f"s_lshl_b32 s{sT1}, s{sE}, 11")
            a(f"s_add_u32 s{sT0}, s{sT0}, s{sT1}")
        a(f"v_lshrrev_b32 v{t0}, 3, v0")
        if stage in (1, 3):
            a(f"v_lshrrev_b32 v{t1}, 2, v{t0}")
            a(f"v_and_b32 v{t2}, 3, v{t0}")
            a(f"v_lshl_add_u32 v{t1}, v{t1}, 4, v{t2}")
            rows = [32 * (m >> 2) + 4 * (m & 3) for m in range(8)]
        elif stage == 2:
            a(f"v_lshlrev_b32 v{t1}, 1, v{t0}")
            rows = [16 * (m & 3) + (m >> 2) for m in range(8)]
        else:
            a(f"v_lshrrev_b32 v{t1}, 2, v{t0}")
            a(f"v_and_b32 v{t2}, 3, v{t0}")
            a(f"v_lshl_add_u32 v{t1}, v{t1}, 5, v{t2}")
            rows = [256 * (m >> 2) + 64 * (m & 3) for m in range(8)]
        a(f"v_mul_u32_u24 v{t1}, {stride}, v{t1}")
        a(f"v_lshrrev_b32 v{t0}, 1, v{t0}")
        a(f"v_and_b32 v{t2}, 7, v0")
        a(f"v_xor_b32 v{t0}, v{t0}, v{t2}")
        a(f"v_lshl_add_u32 v{vDM}, v{t0}, 4, v{t1}")
        a(f"v_xor_b32 v{vDM+1}, 64, v{vDM}")
        for m in range(8):
            a(f"s_add_u32 s{sROW+m}, s{sT0}, {src_off + rows[m]*stride:#x}")
        a(f"s_lshl_b32 s{sLB}, s{sWV}, 13")
        def dma_pre(m):
            a(f"s_add_u32 m0, s{sLB}, {1024*m}")
        def dma(m):
            a(f"buffer_load_dwordx4 v{vDM+(m&1)}, {src}, s{sROW+m} offen {fl} lds")
        def dma_adv():
            a(f"v_add_u32 v{vDM}, 128, v{vDM}")
            a(f"v_add_u32 v{vDM+1}, 128, v{vDM+1}")
            a(f"s_add_u32 s{sLB}, s{sLB}, 32768")
            a(f"s_and_b32 s{sLB}, s{sLB}, 0x1ffff")
        for st in range(2):
            for m in range(8):
                dma_pre(m)
                a("s_nop 0")
                dma(m)
            dma_adv()
        a(f"v_bfe_u32 v{t0}, v0, 1, 3")
        a(f"v_xor_b32 v{t0}, v{t0}, v{vHH}")
        a(f"v_lshlrev_b32 v{t0}, 4, v{t0}")
        a(f"v_lshl_add_u32 v{vRB}, v{vC}, 7, v{t0}")
        for ks in range(1, 4):
            a(f"v_xor_b32 v{vRB+ks}, {ks<<5}, v{vRB}")
        a(f"s_mov_b32 s{sT1}, {f32bits(1.0 / N):#x}")
        for u in range(NG):
            if stage == 1:
                a(f"s_and_b32 s{sT0}, s{sFI}, 1")
            else:
                a(f"s_mov_b32 s{sT0}, s{sFI}")
            a(f"s_lshl_b32 s{sT0}, s{sT0}, 2")
            a(f"s_add_u32 s{sT0}, s{sT0}, s{sWV}")
            a(f"s_lshl_b32 s{sT0}, s{sT0}, {4 + NG}")
            a(f"s_add_u32 s{sT0}, s{sT0}, {32*u}")
            a(f"v_add_u32 v{t0}, s{sT0}, v{vPERM if gen_is_a else vC}")
            T = TH + 8 * u; C = CS + 8 * u
            if fwd:
                a(f"v_and_b32 v{t1}, -2, v{t0}")
                a(f"v_add_u32 v{t1}, s{sE}, v{t1}")
                a(f"v_and_b32 v{t2}, 1, v{t0}")
                a(f"v_lshl_add_u32 v{t3}, v{t1}, 1, v{t2}")
                a(f"v_cmp_eq_u32 vcc, 1, v{t3}")
                a(f"v_cvt_f32_u32 v{t2}, v{t2}")
                a(f"v_mul_f32 v{t2}, {f32bits(-0.25):#x}, v{t2}")
                a(f"v_mov_b32 v{t3}, {N//2}")
                a(f"v_cndmask_b32 v{t1}, v{t1}, v{t3}, vcc")
                a(f"v_cndmask_b32 v{t2}, v{t2}, 0, vcc")
                for j in range(8):
                    a(f"v_lshl_add_u32 v{t3}, v{vHH}, 3, {j}")
                    a(f"v_mul_u32_u24 v{t3}, v{t3}, v{t1}")
                    a(f"v_and_b32 v{t3}, {N-1}, v{t3}")
                    a(f"v_cvt_f32_u32 v{t3}, v{t3}")
                    a(f"v_fma_f32 v{T+j}, v{t3}, s{sT1}, v{t2}")
                a(f"v_lshlrev_b32 v{t3}, 4, v{t1}")
            else:
                for j in range(0, 8, 2):
                    a(f"v_lshl_add_u32 v{t3}, v{vHH}, 3, {j}")
                    a(f"v_add_u32 v{t3}, s{sE}, v{t3}")
                    a(f"v_mul_u32_u24 v{t3}, v{t3}, v{t0}")
                    a(f"v_and_b32 v{t3}, {N-1}, v{t3}")
                    a(f"v_cvt_f32_u32 v{t3}, v{t3}")
                    a(f"v_mul_f32 v{T+j}, s{sT1}, v{t3}")
                    a(f"v_add_f32 v{T+j+1}, {f32bits(-0.25):#x}, v{T+j}")
                a(f"v_lshlrev_b32 v{t3}, 4, v{t0}")
            a(f"v_and_b32 v{t3}, {N-1}, v{t3}")
            a(f"v_cvt_f32_u32 v{t3}, v{t3}")
            a(f"v_mul_f32 v{vINC+u}, s{sT1}, v{t3}")
            for j in range(8):
                a(f"v_cos_f32 v{C+j}, v{T+j}")
            if not fwd:
                a(f"v_and_b32 v{t1}, 1, v{t0}")
                a(f"v_cvt_f32_u32 v{t1}, v{t1}")
                a(f"v_fma_f32 v{t1}, v{t1}, -2.0, 1.0")
                a(f"v_add_u32 v{t2}, s{sE}, v{vHH}")
                a(f"v_cmp_eq_u32 vcc, 0, v{t2}")
                a("s_nop 1")
                a(f"v_cndmask_b32 v{C+1}, v{C+1}, v{t1}, vcc")
            for j in range(8):
                a(f"v_add_f32 v{T+j}, v{T+j}, v{vINC+u}")
            for j in range(4):
                a(f"v_cvt_pk_bf16_f32 v{GN+4*u+j}, v{C+2*j}, v{C+2*j+1}")
        for r in range(4):
            a(f"v_mov_b32 v{FR+28+r}, 0")
        a("s_nop 1")
        for tl in range(8 * NG):
            a(f"v_mfma_f32_32x32x16_bf16 {ar(accb+16*tl,16)}, {vr(FR+28,4)}, {vr(FR+28,4)}, 0")
        a("s_waitcnt vmcnt(8)")
        a("s_barrier")
        def rd(f):
            f64 = f % 64
            st, ks, tl = f64 >> 5, (f64 >> 3) & 3, f64 & 7
            a(f"ds_read_b128 {vr(FR+4*(f%NFR),4)}, v{vRB+ks} offset:{st*32768 + tl*4096}")
            if st == 1 and tl == 7:
                a(f"v_xor_b32 v{vRB+ks}, 0x10000, v{vRB+ks}")
        for f in range(DEPTH):
            rd(f)
        a(f"s_mov_b32 s{sK}, {K // 128}")
        L = a.newlabel("f_loop")
        a.label(L)
        for f in range(64):
            ksg, tl = f >> 3, f & 7
            cur = GN + 8 * (ksg & 1); nxt = GN + 8 * ((ksg + 1) & 1)
            fs = f & 31
            dm = fs // 3 if (fs % 3 == 2 and fs // 3 < 8) else None
            if fs == 32 - DEPTH:
                a("s_waitcnt vmcnt(8)")
                a("s_barrier")
            a(f"s_waitcnt lgkmcnt({DEPTH-1})")
            if dm is not None:
                dma_pre(dm)
            d = vr(FR + 4 * (f % NFR), 4)
            for u in range(NG):
                g = vr(cur + 4 * u, 4)
                A, B = (g, d) if gen_is_a else (d, g)
                acc = ar(accb + 128 * u + 16 * tl, 16)
                a(f"v_mfma_f32_32x32x16_bf16 {acc}, {A}, {B}, {acc}")
                if u == 0:
                    rd(f + DEPTH)
                if u == NG - 1 and dm is not None:
                    dma(dm)
                if NG == 2:
                    gap = 2 * tl + u
                    ops = []
                    for uu, start in ((0, 0), (1, 6)):
                        j = gap - start
                        if 0 <= j < 8:
                            ops.append(f"v_cos_f32 v{CS+8*uu+j}, v{TH+8*uu+j}")
                        if 1 <= j < 9:
                            ops.append(f"v_add_f32 v{TH+8*uu+j-1}, v{TH+8*uu+j-1}, v{vINC+uu}")
                        if j in (2, 4, 6, 8):
                            m = j // 2 - 1
                            ops.append(f"v_cvt_pk_bf16_f32 v{nxt+4*uu+m}, v{CS+8*uu+2*m}, v{CS+8*uu+2*m+1}")
                    for o in ops:
                        a(o)
                else:
                    if tl < 4:
                        for j in (2 * tl, 2 * tl + 1):
                            a(f"v_cos_f32 v{CS+j}, v{TH+j}")
                    else:
                        for j in (2 * (tl - 4), 2 * (tl - 4) + 1):
                            a(f"v_add_f32 v{TH+j}, v{TH+j}, v{vINC}")
                        if tl < 6:
                            for j in (2 * (tl - 4), 2 * (tl - 4) + 1):
                                a(f"v_cvt_pk_bf16_f32 v{nxt+j}, v{CS+2*j}, v{CS+2*j+1}")
            if fs == 24:
                dma_adv()
        a(f"s_sub_u32 s{sK}, s{sK}, 1")
        a(f"s_cmp_lg_u32 s{sK}, 0")
        a(f"s_cbranch_scc1 {L}")
        a("s_waitcnt vmcnt(0) lgkmcnt(0)")
        a("s_barrier")
        a.nop(12)

    def image_out(swz_shift, seg_stride, row_stride, sbase):
        a("s_waitcnt lgkmcnt(0)")
        a("s_barrier")
        a(f"v_lshrrev_b32 v{t0}, 4, v{vC}")
        a(f"v_mul_u32_u24 v{t0}, {seg_stride}, v{t0}")
        a(f"v_and_b32 v{t1}, 15, v0")
        a(f"v_lshl_add_u32 v{t0}, v{t1}, 4, v{t0}")
        a(f"v_mul_u32_u24 v{t1}, {row_stride}, v{vHH}")
        a(f"v_add_u32 v{vOA}, v{t0}, v{t1}")
        a(f"s_mul_i32 s{sT0}, s{sWV}, {64*row_stride}")
        a(f"s_add_u32 s{sT0}, s{sT0}, s{sbase}")
        a(f"s_lshl_b32 s{sT1}, s{sWV}, 15")
        if swz_shift == 0:
            a(f"v_xor_b32 v{t0}, v{vC}, v{vHH}")
        else:
            a(f"v_mov_b32 v{t0}, v{vC}")
        a(f"v_lshlrev_b32 v{t0}, 4, v{t0}")
        a(f"v_lshl_add_u32 v{t0}, v{vHH}, 9, v{t0}")
        a(f"v_add_u32 v{vLR}, s{sT1}, v{t0}")
        nvar = 4 if swz_shift == 0 else 8
        for k in range(nvar):
            x = (2 * k if swz_shift == 0 else k) << 4
            a(f"v_xor_b32 v{EX+k}, {x}, v{vLR}")
        for m in range(32):
            a(f"ds_read_b128 {vr(BIG+4*m,4)}, v{EX + m % nvar} offset:{1024*m}")
        for m in range(32):
            if m < 32 - 15:
                if m == 0:
                    a("s_waitcnt lgkmcnt(15)")
            else:
                a(f"s_waitcnt lgkmcnt({31-m})")
            a(f"buffer_store_dwordx4 {vr(BIG+4*m,4)}, v{vOA}, {WS}, s{sT0} offen sc1")
            a(f"s_add_u32 s{sT0}, s{sT0}, {2*row_stride}")

    def epi_rows(fold):
        a(f"v_and_b32 v{t0}, 7, v0")
        a(f"v_lshlrev_b32 v{t1}, 1, v{vHH}")
        a(f"v_xor_b32 v{t0}, v{t0}, v{t1}")
        a(f"v_lshlrev_b32 v{t0}, 4, v{t0}")
        a(f"v_lshl_add_u32 v{t0}, v{vC}, 9, v{t0}")
        a(f"s_lshl_b32 s{sT1}, s{sWV}, 15")
        a(f"v_add_u32 v{EX}, s{sT1}, v{t0}")
        for k, x in enumerate((16, 64, 80)):
            a(f"v_xor_b32 v{EX+1+k}, {x}, v{EX}")
        def put(src, u, tl):
            for r in range(8):
                a(f"v_cvt_pk_bf16_f32 v{src+r}, v{src+2*r}, v{src+2*r+1}")
            for q in range(2):
                a(f"ds_write_b128 v{EX + 2*(tl&1) + q}, {vr(src+4*q,4)} offset:{u*16384 + (tl>>1)*128}")
        for u in range(2):
            for i in range(4):
                b = BIG + 48 * (i & 1)
                ta, tb = (i, i + 4) if fold else (2 * i, 2 * i + 1)
                for r in range(16):
                    a(f"v_accvgpr_read_b32 v{b+r}, a{128*u+16*ta+r}")
                    a(f"v_accvgpr_read_b32 v{b+16+r}, a{128*u+16*tb+r}")
                if fold:
                    for r in range(0, 16, 2):
                        a(f"v_pk_add_f32 {vr(b+32+r,2)}, {vr(b+r,2)}, {vr(b+16+r,2)}")
                        a(f"v_pk_add_f32 {vr(b+16+r,2)}, {vr(b+r,2)}, {vr(b+16+r,2)} neg_lo:[0,1] neg_hi:[0,1]")
                    put(b + 32, u, ta)
                else:
                    put(b, u, ta)
                put(b + 16, u, tb)

    def fbarrier(k):
        a("s_waitcnt vmcnt(0)")
        a("s_barrier")
        signal(a, DBG_FB + 4 * k, 1)
        SK = a.newlabel("fb_skip")
        a(f"s_cmp_eq_u32 s{sWV}, 0")
        a(f"s_cbranch_scc0 {SK}")
        wait_counter(a, DBG_FB + 4 * k, 32, t0, t1, 10)
        a.label(SK)
        a("s_barrier")

    prof.mark(2)
    gemm(1)
    prof.mark(3)
    epi_rows(True)
    a(f"s_lshl_b32 s{sO0}, s{sFI}, 20")
    a(f"s_lshl_b32 s{sT1}, s{sX}, 8")
    a(f"s_add_u32 s{sO0}, s{sO0}, s{sT1}")
    a(f"s_add_u32 s{sO0}, s{sO0}, {RT_OFF:#x}")
    image_out(0, 2048, 4096, sO0)
    handshake_wait(a, mode, t0, t1, 8)
    prof.mark(4)
    a(f"s_and_b32 s{sE}, s{sX}, 1")
    a(f"s_lshr_b32 s{sDB}, s{sX}, 1")
    a(f"s_lshl_b32 s{sT0}, s{sFI}, 2")
    a(f"s_add_u32 s{sT0}, s{sT0}, s{sWV}")
    a(f"s_lshl_b32 s{sT0}, s{sT0}, 6")
    a(f"s_add_u32 s{sT0}, s{sT0}, s{sE}")
    a(f"v_lshl_add_u32 v{t0}, v{vHH}, 4, s{sT0}")
    a(f"s_and_b32 s{sT1}, s{sDB}, 1")
    a(f"s_lshl_b32 s{sT1}, s{sT1}, 9")
    a(f"s_and_b32 s{sT2}, s{sDB}, 2")
    a(f"s_add_u32 s{sT1}, s{sT1}, s{sT2}")
    a(f"v_lshl_add_u32 v{vLW}, v{vC}, 2, s{sT1}")
    a(f"v_mul_u32_u24 v{vW1}, 1026, v{t0}")
    a(f"v_sub_u32 v{t2}, {2048-46}, v{t0}")
    a(f"v_mul_u32_u24 v{vW2}, 1026, v{t2}")
    a(f"v_sub_u32 v{t2}, 2048, v{t0}")
    a(f"v_cmp_eq_u32 s[{sMA}:{sMA+1}], 0, v{t0}")
    a(f"v_mov_b32 v{t3}, 1024")
    a("s_nop 0")
    a(f"v_cndmask_b32 v{t2}, v{t2}, v{t3}, s[{sMA}:{sMA+1}]")
    a(f"v_mul_u32_u24 v{vW20}, 1026, v{t2}")
    a(f"v_cmp_eq_u32 s[{sMB}:{sMB+1}], 0, v{vLW}")
    for r in (vW1, vW2, vW20):
        a(f"v_add_u32 v{r}, v{r}, v{vLW}")
    wreg = lambda u, i, q: BIG + 64 * u + 16 * i + 2 * q
    a(f"v_and_b32 v{t1}, 8, v0")
    a(f"v_and_b32 v{t2}, 7, v0")
    a(f"v_lshl_add_u32 v{t1}, v{t1}, 1, v{t2}")
    a(f"v_lshl_add_u32 v{t1}, v{t1}, 1, v{t0}")
    a(f"v_sub_u32 v{t2}, 2048, v{t1}")
    a(f"v_cmp_eq_u32 vcc, 0, v{t1}")
    a(f"v_mul_u32_u24 v{t1}, 1026, v{t1}")
    a("s_nop 0")
    a(f"v_cndmask_b32 v{t2}, v{t2}, v{t3}, vcc")
    a(f"v_mul_u32_u24 v{t2}, 1026, v{t2}")
    a(f"buffer_load_ushort v{Y}, v{t1}, {WRS}, 0 offen offset:1024")
    a(f"buffer_load_ushort v{Y+1}, v{t1}, {WIS}, 0 offen offset:1024")
    a(f"buffer_load_ushort v{Y+2}, v{t2}, {WRS}, 0 offen offset:1024")
    a(f"buffer_load_ushort v{Y+3}, v{t2}, {WIS}, 0 offen offset:1024")
    def w_pack(n):
        u, q = n >> 3, n & 7
        for i in range(4):
            for k in range(2):
                a(f"v_lshl_or_b32 v{wreg(u,i,q)+k}, v{EX+8*(n%4)+2*i+k}, 16, v{wreg(u,i,q)+k}")
    for n in range(16):
        u, q = n >> 3, n & 7
        dk = 2 * q + 32 * u
        a(f"s_mov_b32 s{sT2}, {dk*1026}")
        a(f"s_mov_b32 s{sT3}, {0 if dk == 0 else (46-dk)*1026}")
        v2 = vW20 if dk == 0 else vW2
        for i in range(4):
            dst = wreg(u, i, q); tmp = EX + 8 * (n % 4) + 2 * i
            a(f"buffer_load_ushort v{dst}, v{vW1}, {WRS}, s{sT2} offen offset:{128*i} {WFL[Cfg.ffl]}")
            a(f"buffer_load_ushort v{dst+1}, v{v2}, {WRS}, s{sT3} offen offset:{128*i} {WFL[Cfg.ffl]}")
            a(f"buffer_load_ushort v{tmp}, v{vW1}, {WIS}, s{sT2} offen offset:{128*i} {WFL[Cfg.ffl]}")
            a(f"buffer_load_ushort v{tmp+1}, v{v2}, {WIS}, s{sT3} offen offset:{128*i} {WFL[Cfg.ffl]}")
        if n >= 2:
            a("s_waitcnt vmcnt(32)")
            w_pack(n - 2)
    a("s_waitcnt vmcnt(0)")
    w_pack(14)
    w_pack(15)
    for k in range(4):
        a(f"v_lshlrev_b32 v{Y+k}, 16, v{Y+k}")
    fbarrier(0)
    prof.mark(5)
    gemm(2)
    prof.mark(6)
    SC = 2.0 / (2048 * 1024)
    a(f"s_mov_b32 s{sO0}, {f32bits(SC):#x}")
    a(f"v_and_b32 v{t0}, 7, v0")
    a(f"v_lshlrev_b32 v{t1}, 1, v{vHH}")
    a(f"v_xor_b32 v{t0}, v{t0}, v{t1}")
    a(f"v_lshlrev_b32 v{t0}, 4, v{t0}")
    a(f"v_lshl_add_u32 v{t0}, v{vC}, 10, v{t0}")
    a(f"s_lshl_b32 s{sT1}, s{sWV}, 7")
    IW = EX + 32
    a(f"v_add_u32 v{IW}, s{sT1}, v{t0}")
    for k, x in enumerate((16, 64, 80)):
        a(f"v_xor_b32 v{IW+1+k}, {x}, v{IW}")
    for k in range(4):
        a(f"v_add_u32 v{IW+4+k}, 0x10000, v{IW+k}")
    A_, B_, C_, E_, P_, M_, Pi, Mi = range(FR, FR + 8)
    U0, U1, V0, V1 = range(FR + 8, FR + 12)
    w1r, w1i, w2r, w2i = range(FR + 12, FR + 16)
    OU = FR + 16; OV = FR + 24
    K0, K1 = EX + 40, EX + 41
    def unpack(w):
        a(f"v_lshlrev_b32 v{w1r}, 16, v{w}")
        a(f"v_and_b32 v{w1i}, 0xffff0000, v{w}")
        a(f"v_lshlrev_b32 v{w2r}, 16, v{w+1}")
        a(f"v_and_b32 v{w2i}, 0xffff0000, v{w+1}")
    for i in range(4):
        for u in range(2):
            for q in range(8):
                ab = 128 * u + 32 * i + 2 * q
                a(f"v_accvgpr_read_b32 v{A_}, a{ab}")
                a(f"v_accvgpr_read_b32 v{B_}, a{ab+1}")
                a(f"v_accvgpr_read_b32 v{C_}, a{ab+16}")
                a(f"v_accvgpr_read_b32 v{E_}, a{ab+17}")
                unpack(wreg(u, i, q))
                a(f"v_add_f32 v{P_}, v{w1r}, v{w2r}")
                a(f"v_sub_f32 v{M_}, v{w1r}, v{w2r}")
                a(f"v_add_f32 v{Pi}, v{w1i}, v{w2i}")
                a(f"v_sub_f32 v{Mi}, v{w1i}, v{w2i}")
                a(f"v_pk_mul_f32 {vr(U0,2)}, {vr(A_,2)}, {vr(P_,2)} op_sel_hi:[1,0]")
                a(f"v_pk_mul_f32 {vr(V0,2)}, {vr(C_,2)}, {vr(P_,2)} op_sel_hi:[1,0]")
                a(f"v_pk_fma_f32 {vr(U0,2)}, {vr(A_,2)}, {vr(Pi,2)}, {vr(U0,2)} op_sel:[1,1,0] op_sel_hi:[0,1,1] neg_hi:[1,0,0]")
                a(f"v_pk_fma_f32 {vr(V0,2)}, {vr(C_,2)}, {vr(Pi,2)}, {vr(V0,2)} op_sel:[1,1,0] op_sel_hi:[0,1,1] neg_hi:[1,0,0]")
                if i == 0:
                    a(f"v_mul_f32 v{K0}, 0.5, v{U0}")
                    a(f"v_mul_f32 v{K1}, 0.5, v{U1}")
                a(f"v_pk_fma_f32 {vr(U0,2)}, {vr(C_,2)}, {vr(P_,2)}, {vr(U0,2)} op_sel:[1,1,0] op_sel_hi:[0,1,1] neg_lo:[1,0,0]")
                a(f"v_pk_fma_f32 {vr(V0,2)}, {vr(A_,2)}, {vr(P_,2)}, {vr(V0,2)} op_sel:[1,1,0] op_sel_hi:[0,1,1] neg_hi:[1,0,0]")
                a(f"v_pk_fma_f32 {vr(U0,2)}, {vr(C_,2)}, {vr(Pi,2)}, {vr(U0,2)} op_sel_hi:[1,0,1]")
                a(f"v_pk_fma_f32 {vr(V0,2)}, {vr(A_,2)}, {vr(Pi,2)}, {vr(V0,2)} op_sel_hi:[1,0,1] neg_lo:[1,0,0] neg_hi:[1,0,0]")
                first = (u == 0 and q == 0)
                if first:
                    a(f"s_mov_b64 exec, s[{sMA}:{sMA+1}]")
                    a(f"v_mul_f32 v{U0}, v{A_}, v{w1r}")
                    a(f"v_mul_f32 v{U1}, v{B_}, v{w2r}")
                    if i == 0:
                        a(f"v_mul_f32 v{K0}, 0.5, v{U0}")
                        a(f"v_mul_f32 v{K1}, 0.5, v{U1}")
                    a(f"v_fma_f32 v{U0}, v{C_}, v{w1i}, v{U0}")
                    a(f"v_fma_f32 v{U1}, v{E_}, v{w2i}, v{U1}")
                    a(f"v_mul_f32 v{V0}, v{C_}, v{w1r}")
                    a(f"v_fma_f32 v{V0}, -v{A_}, v{w1i}, v{V0}")
                    a(f"v_mul_f32 v{V1}, v{E_}, v{w2r}")
                    a(f"v_fma_f32 v{V1}, -v{B_}, v{w2i}, v{V1}")
                    a("s_mov_b64 exec, -1")
                if i == 0:
                    for k in range(4):
                        if first:
                            a(f"v_mov_b32 v{w1r+k}, v{Y+k}")
                        else:
                            a(f"v_mov_b32_dpp v{w1r+k}, v{Y+k} row_shl:{8*u+q} row_mask:0xf bank_mask:0xf")
                    a(f"s_mov_b64 exec, s[{sMB}:{sMB+1}]")
                    a(f"v_mov_b32 v{U0}, v{K0}")
                    a(f"v_mov_b32 v{U1}, v{K1}")
                    a(f"v_add_f32 v{P_}, v{w1r}, v{w2r}")
                    a(f"v_sub_f32 v{Mi}, v{w1i}, v{w2i}")
                    a(f"v_mul_f32 v{V0}, v{C_}, v{P_}")
                    a(f"v_mul_f32 v{V1}, v{E_}, v{P_}")
                    a(f"v_fma_f32 v{V0}, v{E_}, v{Mi}, v{V0}")
                    a(f"v_fma_f32 v{V1}, -v{C_}, v{Mi}, v{V1}")
                    if first:
                        a(f"s_and_b64 exec, s[{sMB}:{sMB+1}], s[{sMA}:{sMA+1}]")
                        a(f"v_mul_f32 v{V0}, v{C_}, v{w1r}")
                        a(f"v_mul_f32 v{V1}, v{E_}, v{w2r}")
                        a(f"s_mov_b64 exec, s[{sMB}:{sMB+1}]")
                    a(f"v_mul_f32 v{V0}, 0.5, v{V0}")
                    a(f"v_mul_f32 v{V1}, 0.5, v{V1}")
                    a("s_mov_b64 exec, -1")
                for r in (U0, U1, V0, V1):
                    a(f"v_mul_f32 v{r}, s{sO0}, v{r}")
                a(f"v_cvt_pk_bf16_f32 v{OU+q}, v{U0}, v{U1}")
                a(f"v_cvt_pk_bf16_f32 v{OV+q}, v{V0}, v{V1}")
            for q in range(2):
                ad = IW + 4 * (i >> 1) + 2 * u + q
                a(f"ds_write_b128 v{ad}, {vr(OU+4*q,4)} offset:{(i&1)*32768}")
                a(f"ds_write_b128 v{ad}, {vr(OV+4*q,4)} offset:{(i&1)*32768 + 512}")
    a(f"s_lshl_b32 s{sO0}, s{sDB}, 20")
    a(f"s_lshl_b32 s{sT1}, s{sE}, 2")
    a(f"s_add_u32 s{sT1}, s{sT1}, s{sFI}")
    a(f"s_lshl_b32 s{sT1}, s{sT1}, 9")
    a(f"s_add_u32 s{sO0}, s{sO0}, s{sT1}")
    a(f"s_add_u32 s{sO0}, s{sO0}, {HT_OFF:#x}")
    image_out(1, 256, 4096, sO0)
    fbarrier(1)
    prof.mark(7)
    gemm(3)
    prof.mark(8)
    epi_rows(False)
    a(f"s_lshl_b32 s{sT1}, s{sE}, 2")
    a(f"s_add_u32 s{sT1}, s{sT1}, s{sFI}")
    a(f"s_lshl_b32 s{sO0}, s{sT1}, 19")
    a(f"s_lshl_b32 s{sT1}, s{sDB}, 9")
    a(f"s_add_u32 s{sO0}, s{sO0}, s{sT1}")
    a(f"s_add_u32 s{sO0}, s{sO0}, {Z_OFF:#x}")
    image_out(0, 256, 2048, sO0)
    fbarrier(2)
    prof.mark(9)
    gemm(4, 0)
    gemm(4, 1)
    dbg_time(a, 7)
    prof.mark(10)
    a(f"s_lshl_b32 s{sT1}, s{sWV}, 15")
    a(f"v_lshlrev_b32 v{t0}, 4, v0")
    a(f"v_add_u32 v{vLR}, s{sT1}, v{t0}")
    for i in range(4):
        AE, AO, BE, BO, S0, S1 = (BIG + 16 * k for k in range(6))
        for r in range(16):
            a(f"v_accvgpr_read_b32 v{AE+r}, a{16*i+r}")
            a(f"v_accvgpr_read_b32 v{AO+r}, a{64+16*i+r}")
            a(f"v_accvgpr_read_b32 v{BE+r}, a{128+16*i+r}")
            a(f"v_accvgpr_read_b32 v{BO+r}, a{192+16*i+r}")
        NEG = "neg_lo:[0,1] neg_hi:[0,1]"
        for r in range(0, 16, 2):
            a(f"v_pk_add_f32 {vr(S0+r,2)}, {vr(AE+r,2)}, {vr(AO+r,2)}")
            a(f"v_pk_add_f32 {vr(AE+r,2)}, {vr(AE+r,2)}, {vr(AO+r,2)} {NEG}")
            a(f"v_pk_add_f32 {vr(S1+r,2)}, {vr(BE+r,2)}, {vr(BO+r,2)}")
            a(f"v_pk_add_f32 {vr(BE+r,2)}, {vr(BE+r,2)}, {vr(BO+r,2)} {NEG}")
        for hn, (x, y) in enumerate(((S0, S1), (AE, BE))):
            for hd in range(2):
                o = FR + 8 * (2 * hn + hd)
                for r in range(0, 16, 2):
                    a(f"v_pk_add_f32 {vr(AO,2)}, {vr(x+r,2)}, {vr(y+r,2)} {NEG if hd else ''}")
                    a(f"v_cvt_pk_bf16_f32 v{o+r//2}, v{AO}, v{AO+1}")
                for q in range(2):
                    a(f"ds_write_b128 v{vLR}, {vr(o+4*q,4)} offset:{((hn*4+i)*2+hd)*2048 + 1024*q}")
    vXA = vW1; vFA = vW2; vGA = vW20
    a(f"v_bfe_u32 v{t0}, v0, 3, 2")
    a(f"v_bfe_u32 v{t1}, v0, 1, 2")
    a(f"v_and_b32 v{t2}, 1, v0")
    a(f"v_bfe_u32 v{t3}, v0, 3, 1")
    a(f"v_lshlrev_b32 v{vXA}, 9, v{t3}")
    a(f"v_bfe_u32 v{t3}, v0, 4, 1")
    a(f"v_lshl_add_u32 v{vXA}, v{t3}, 8, v{vXA}")
    a(f"v_lshl_add_u32 v{vXA}, v{vHH}, 21, v{vXA}")
    a(f"v_and_b32 v{t3}, 7, v0")
    a(f"v_lshl_add_u32 v{vXA}, v{t3}, 3, v{vXA}")
    a(f"v_bfe_u32 v{vLW}, v0, 3, 1")
    a(f"v_lshlrev_b32 v{vLW}, 10, v{vLW}")
    a(f"v_lshl_add_u32 v{vLW}, v{t3}, 3, v{vLW}")
    a(f"v_bfe_u32 v{t3}, v0, 4, 1")
    a(f"v_lshl_add_u32 v{vLW}, v{t3}, 9, v{vLW}")
    a(f"v_lshl_add_u32 v{vLW}, v{vHH}, 11, v{vLW}")
    a(f"s_lshl_b32 s{sT1}, s{sWV}, 15")
    a(f"v_add_u32 v{vLW}, s{sT1}, v{vLW}")
    a(f"v_lshlrev_b32 v{vGA}, 2, v{t1}")
    a(f"v_lshlrev_b32 v{vOA}, 11, v{t1}")
    a(f"v_lshl_add_u32 v{vOA}, v{vHH}, 10, v{vOA}")
    a(f"v_lshl_add_u32 v{vOA}, v{t0}, 4, v{vOA}")
    a(f"v_lshl_add_u32 v{vOA}, v{t2}, 3, v{vOA}")
    a(f"v_and_b32 v{t0}, 7, v0")
    a(f"v_lshlrev_b32 v{t0}, 2, v{t0}")
    a(f"v_bfe_u32 v{t1}, v0, 3, 1")
    a(f"v_lshl_add_u32 v{vFA}, v{t1}, 17, v{t0}")
    a(f"s_lshl_b32 s{sO3}, s{sFI}, 2")
    a(f"s_add_u32 s{sO3}, s{sO3}, s{sWV}")
    a(f"s_lshl_b32 s{sO0}, s{sO3}, 17")
    a(f"s_lshr_b32 s{sT0}, s{sX}, 2")
    a(f"s_lshl_b32 s{sT0}, s{sT0}, 10")
    a(f"s_and_b32 s{sT1}, s{sX}, 3")
    a(f"s_lshl_b32 s{sT1}, s{sT1}, 6")
    a(f"s_add_u32 s{sT0}, s{sT0}, s{sT1}")
    a(f"s_add_u32 s{sO0}, s{sO0}, s{sT0}")
    a(f"s_add_u32 s{sO0}, s{sO0}, {XPART_OFF:#x}")
    a(f"s_lshl_b32 s{sO1}, s{sO3}, 13")
    a(f"s_add_u32 s{sO1}, s{sO1}, {FLG_OFF:#x}")
    a(f"s_lshl_b32 s{sO2}, s{sO3}, 6")
    a(f"s_lshl_b32 s{sT0}, s{sX}, 13")
    a(f"s_add_u32 s{sO2}, s{sO2}, s{sT0}")
    a(f"s_lshl_b32 s{sLB}, s{sX}, 4")
    a(f"s_add_u32 s{sLB}, s{sLB}, {GATE_OFF:#x}")
    a(f"s_mov_b32 s{sK}, 0")
    SUM = FR; BV = FR + 4; TMP = FR + 8; GV = EX; BP = EX + 8; OP = EX + 16
    def mix(NS, last, sleep):
        L = a.newlabel("f_mix")
        a.label(L)
        a(f"s_lshr_b32 s{sT0}, s{sK}, 3")
        a(f"s_lshl_b32 s{sT0}, s{sT0}, 12")
        a(f"s_and_b32 s{sT1}, s{sK}, 7")
        a(f"s_lshl_b32 s{sT1}, s{sT1}, 6")
        a(f"s_add_u32 s{sT0}, s{sT0}, s{sT1}")
        a(f"v_add_u32 v{t0}, s{sT0}, v{vLW}")
        for g in range(NS):
            a(f"buffer_load_dword v{GV+2*g}, v{vGA}, {WS}, s{sLB} offen offset:{128*g} sc1")
            a(f"ds_read_b64 {vr(BP+2*g,2)}, v{t0} offset:{64*g}")
        poll(a, [f"buffer_load_dword v{t2}, v{vFA}, {WS}, s{sO1} offen offset:{(NS-1)*128} sc1"], [t2], t3, sleep=sleep)
        prof.mark(13)
        for g in range(NS):
            a(f"s_add_u32 s{sT0}, s{sO0}, {2048*g}")
            for p in range(8):
                a(f"buffer_load_dwordx2 {vr(BIG+16*g+2*p,2)}, v{vXA}, {WS}, s{sT0} offen sc1")
                if p < 7:
                    a(f"s_add_u32 s{sT0}, s{sT0}, {4*MB:#x}")
        a("s_waitcnt lgkmcnt(0)")
        for g in range(NS):
            for r in range(2):
                a(f"v_lshlrev_b32 v{BV+2*r}, 16, v{BP+2*g+r}")
                a(f"v_and_b32 v{BV+2*r+1}, 0xffff0000, v{BP+2*g+r}")
            for p in range(8):
                a(f"s_waitcnt vmcnt({8*(NS-g) - 1 - p + g})")
                for r in range(2):
                    src = BIG + 16 * g + 2 * p + r
                    d = (SUM if p == 0 else TMP) + 2 * r
                    a(f"v_lshlrev_b32 v{d}, 16, v{src}")
                    a(f"v_and_b32 v{d+1}, 0xffff0000, v{src}")
                if p:
                    for r in range(2):
                        a(f"v_pk_add_f32 {vr(SUM+2*r,2)}, {vr(SUM+2*r,2)}, {vr(TMP+2*r,2)}")
            for r in range(0, 4, 2):
                a(f"v_pk_add_f32 {vr(SUM+r,2)}, {vr(SUM+r,2)}, {vr(BV+r,2)} neg_lo:[0,1] neg_hi:[0,1]")
                a(f"v_pk_fma_f32 {vr(SUM+r,2)}, {vr(SUM+r,2)}, {vr(GV+2*g,2)}, {vr(BV+r,2)} op_sel_hi:[1,0,1]")
                a(f"v_cvt_pk_bf16_f32 v{OP+2*g+r//2}, v{SUM+r}, v{SUM+r+1}")
            a(f"buffer_store_dwordx2 {vr(OP+2*g,2)}, v{vOA}, {OUTS}, s{sO2} offen")
            a(f"s_add_u32 s{sO2}, s{sO2}, 65536")
        a(f"s_add_u32 s{sO0}, s{sO0}, {2048*NS}")
        a(f"s_add_u32 s{sO1}, s{sO1}, {128*NS}")
        a(f"s_add_u32 s{sLB}, s{sLB}, {128*NS}")
        a(f"s_add_u32 s{sK}, s{sK}, {NS}")
        a(f"s_cmp_lt_u32 s{sK}, {last}")
        a(f"s_cbranch_scc1 {L}")
    mix(4, 60, Cfg.f_sleep)
    prof.mark(12)
    mix(2, 62, Cfg.f_sleep // 2)
    mix(2, 64, 2)
    dbg_time(a, 6)
    prof.mark(20)
    prof.dump()
    a("s_endpgm")
```

```python
from gen import *
import itertools

STAGE = 131072

class MemPass:
    def __init__(self, a, va, mode, sIDX, prof, helper):
        self.a, self.prof, self.helper = a, prof, helper
        self.loc = "" if mode == 0 else "sc1"
        sB, sPM, sMEM, sTY, sSL, sSL2, sTH = 20, 22, 23, 24, 25, 26, 27
        self.sB, self.sPM, self.sMEM, self.sTY, self.sSL, self.sSL2, self.sTH = sB, sPM, sMEM, sTY, sSL, sSL2, sTH
        a(f"s_and_b32 s{sT1}, s{sIDX}, 3")
        a(f"s_lshr_b32 s{sTY}, s{sIDX}, 2")
        a(f"s_lshl_b32 s{sT2}, s{sX}, 2")
        a(f"s_add_u32 s{sT1}, s{sT1}, s{sT2}")
        a(f"s_cmp_eq_u32 s{sTY}, 0")
        a(f"s_cselect_b64 s[{S_W}:{S_W+1}], s[{P_WQ}:{P_WQ+1}], s[{P_WK}:{P_WK+1}]")
        a(f"s_cmp_eq_u32 s{sTY}, 2")
        a(f"s_cselect_b64 s[{S_W}:{S_W+1}], s[{P_WV}:{P_WV+1}], s[{S_W}:{S_W+1}]")
        a(f"s_lshl_b32 s{sT2}, s{sT1}, 8")
        a(f"s_add_u32 s{S_W}, s{S_W}, s{sT2}")
        a(f"s_addc_u32 s{S_W+1}, s{S_W+1}, 0")
        a(f"s_sub_u32 s{S_W+2}, {8*MB:#x}, s{sT2}")
        a(f"s_mov_b32 s{S_W+3}, 0x00020000")
        a(f"s_lshl_b32 s{sTH}, s{sTY}, 5")
        a(f"s_add_u32 s{sTH}, s{sTH}, s{sT1}")
        a(f"s_lshl_b32 s{sPM}, s{sTH}, 13")
        a(f"s_add_u32 s{sPM}, s{sPM}, {PM_OFF:#x}")
        a(f"s_lshl_b32 s{sMEM}, s{sX}, 16")
        a(f"s_lshl_b32 s{sT3}, s{sWV}, 12")
        a(f"s_add_u32 s{sMEM}, s{sMEM}, s{sT3}")
        a(f"s_add_u32 s{sMEM}, s{sMEM}, {MEM_OFF:#x}")
        self.vW, self.vTR, self.t0, self.t1 = weight_addr_setup(a, va, 8192, sB, False)
        self.order = (2, 3, 0, 1) if helper else (0, 1, 2, 3)
        self.va = va

    def start_weights(self):
        for k in range(2):
            weight_dma(self.a, self.vW, self.order[k], k, 8192, self.sB)

    def setup(self):
        a, va = self.a, self.va
        t0, t1 = self.t0, self.t1
        t2 = va.get(); t3 = va.get()
        self.t2, self.t3 = t2, t3
        sTY = self.sTY
        self.vL16 = vL16 = va.get()
        a(f"v_lshlrev_b32 v{vL16}, 4, v0")
        self.vPMa = vPMa = va.get(); self.vPMo = vPMo = va.get()
        a(f"s_cmp_eq_u32 s{sTY}, 2")
        a("s_cselect_b64 vcc, -1, 0")
        a(f"v_and_b32 v{t0}, 15, v0")
        a(f"v_lshrrev_b32 v{t1}, 5, v0")
        a(f"v_lshl_add_u32 v{t0}, v{t1}, 4, v{t0}")
        a(f"v_lshlrev_b32 v{t0}, 4, v{t0}")
        a(f"v_bfe_u32 v{t1}, v0, 4, 1")
        a(f"v_lshl_add_u32 v{t2}, v{t1}, 3, v{t0}")
        a(f"v_lshrrev_b32 v{t0}, 4, v0")
        a(f"v_lshlrev_b32 v{t0}, 7, v{t0}")
        a(f"v_and_b32 v{t1}, 7, v0")
        a(f"v_lshl_add_u32 v{t0}, v{t1}, 4, v{t0}")
        a(f"v_bfe_u32 v{t1}, v0, 3, 1")
        a(f"v_lshl_add_u32 v{t3}, v{t1}, 3, v{t0}")
        a(f"v_cndmask_b32 v{t2}, v{t3}, v{t2}, vcc")
        a(f"s_lshl_b32 s{sT3}, s{sWV}, 9")
        a(f"v_add_u32 v{vPMa}, s{sT3}, v{t2}")
        if self.helper:
            a(f"v_xor_b32 v{t1}, 1, v{t1}")
        elif not Cfg.qk_split:
            a(f"v_mov_b32 v{t1}, 0")
        a(f"v_cndmask_b32 v{t1}, v{t1}, 0, vcc")
        a(f"v_lshl_add_u32 v{vPMo}, v{t1}, 28, v{vPMa}")
        self.vSEN = vSEN = va.get(4, 4)
        for r in range(4):
            a(f"v_mov_b32 v{vSEN+r}, -1")
        self.vST = vST = va.get(4)
        for G in range(4):
            a(f"s_add_u32 s{sT3}, s{sWV}, {G}")
            a(f"s_and_b32 s{sT3}, s{sT3}, 3")
            a(f"s_lshl_b32 s{sT4}, s{sT3}, 12")
            a(f"s_add_u32 s{sT4}, s{sT4}, {STAGE}")
            a(f"v_add_u32 v{vST+G}, s{sT4}, v{vL16}")
        self.vIDX = va.get()
        idx_setup(a, self.vIDX, t0)
        self.SEL = SEL = va.get(4, 4)
        a(f"v_and_b32 v{t1}, 1, v0")
        a(f"v_lshlrev_b32 v{t1}, 4, v{t1}")
        a(f"v_mov_b32 v{t2}, 0x3f80")
        a(f"v_lshlrev_b32 v{t1}, v{t1}, v{t2}")
        a(f"v_bfe_u32 v{t0}, v0, 3, 1")
        a(f"v_bfe_u32 v{t2}, v0, 1, 1")
        a(f"v_lshl_add_u32 v{t0}, v{t0}, 1, v{t2}")
        a(f"v_bfe_u32 v{t2}, v0, 4, 1")
        a(f"v_bfe_u32 v{t3}, v0, 2, 1")
        a(f"v_xor_b32 v{t2}, v{t2}, v{t3}")
        a(f"v_lshl_add_u32 v{t0}, v{t2}, 2, v{t0}")
        for k in range(4):
            a(f"v_cmp_eq_u32 vcc, {k}, v{t0}")
            a("s_nop 1")
            a(f"v_cndmask_b32 v{SEL+k}, 0, v{t1}, vcc")
        self.M = va.get(16, 4); self.PK = va.get(4, 4); self.PO = va.get(2); self.vtmp = va.get()
        for r in range(4):
            a(f"v_mov_b32 v{self.PK+r}, 0")

    def load_weights(self, after2=None):
        a = self.a
        tiles = (1,) if self.helper else (0, 1)
        for c in range(4):
            a(f"s_waitcnt vmcnt({16 if (c < 3 or after2) else 0})")
            a("s_barrier")
            self.prof.mark(3 + c)
            a(f"s_sub_u32 s{sT3}, {self.order[c]+4}, s{sWV}")
            a(f"s_and_b32 s{sT3}, s{sT3}, 3")
            done = a.newlabel("wl_done")
            for G in range(4):
                nxt = a.newlabel("wl_next")
                if G < 3:
                    a(f"s_cmp_eq_u32 s{sT3}, {G}")
                    a(f"s_cbranch_scc0 {nxt}")
                weight_tr(a, self.vTR[c & 1], G, tiles)
                if G < 3:
                    a(f"s_branch {done}")
                    a.label(nxt)
            a.label(done)
            a("s_barrier")
            if c < 2:
                weight_dma(a, self.vW, self.order[c + 2], c & 1, 8192, self.sB)
            elif c == 2 and after2:
                after2()

    def gather(self, ACC, shadow=None):
        a, M, vST, vtmp = self.a, self.M, self.vST, self.vtmp
        sSL, sSL2 = self.sSL, self.sSL2
        sMA = self.sB
        a(f"s_and_b32 s{sSL}, s{sS}, 3")
        a(f"s_lshl_b32 s{sMA}, s{sSL}, 14")
        a(f"s_add_u32 s{sMA}, s{sMA}, s{self.sMEM}")
        LD = [f"buffer_load_dwordx4 {vr(M+4*i,4)}, v{self.vL16}, {WS}, s{sMA} offen offset:{1024*i} sc1" for i in range(4)]
        for l in LD:
            a(l)
        if shadow:
            shadow()
        a(f"s_lshl_b32 s{sSL2}, s{sSL}, 11")
        a(f"s_xor_b32 s{sSL}, s{sSL2}, 4096")
        a(f"s_add_u32 s{sSL2}, s{sSL2}, s{self.sPM}")
        a(f"s_add_u32 s{sSL}, s{sSL}, s{self.sPM}")
        for r in range(8):
            a(f"v_mov_b32 v{ACC+r}, 0")
        base = a.newlabel("pq")
        lab = lambda q: base + "_" + "".join(map(str, q))
        DONE = base + "_done"
        emitted = set()
        keep = set()
        def emit(q, fall):
            while True:
                emitted.add(q)
                h = q[0]
                a.label(lab(q))
                if len(q) == 1:
                    if Cfg.fsm_depth == 3:
                        a(LD[h])
                        a.label(lab(q) + "r")
                    a(LD[h])
                    a(f"s_sub_u32 s{sBUD}, s{sBUD}, 1")
                    a(f"s_cbranch_scc1 {a.abort}")
                    a(f"s_waitcnt vmcnt({Cfg.fsm_depth - 1})")
                    fail = lab(q) + ("r" if Cfg.fsm_depth == 3 else "")
                else:
                    a(f"s_waitcnt vmcnt({len(q)-1})")
                    fail = lab(q) + "f"
                a(f"v_max_u32 v{vtmp}, v{M+4*h}, v{M+4*h+2}")
                a(f"v_cmp_eq_u32 vcc, -1, v{vtmp}")
                a(f"ds_write_b128 v{vST}, {vr(M+4*h,4)} offset:{1024*h}")
                a(f"s_cbranch_vccnz {fail}")
                nq = q[1:]
                if not nq:
                    if not fall:
                        a(f"s_branch {DONE}")
                    return
                if nq in emitted or nq in keep:
                    a(f"s_branch {lab(nq)}")
                    return
                q = nq
        states = []
        for n in (4, 3, 2, 1):
            for sub in itertools.combinations(range(4), n):
                for r in range(n):
                    states.append(sub[r:] + sub[:r])
        main = [(0, 1, 2, 3), (1, 2, 3), (2, 3), (3,)]
        keep.update(main)
        a(f"s_branch {lab(main[0])}")
        for q in states:
            if len(q) > 1:
                a.label(lab(q) + "f")
                a(LD[q[0]])
                if q[0] == min(q):
                    a(f"s_sub_u32 s{sBUD}, s{sBUD}, 1")
                    a(f"s_cbranch_scc1 {a.abort}")
                nq = q[1:] + q[:1]
                if nq in emitted or nq in keep:
                    a(f"s_branch {lab(nq)}")
                else:
                    emit(nq, False)
        for q in states:
            if q not in emitted and q not in keep:
                emit(q, False)
        keep.clear()
        emit(main[0], True)
        a.label(DONE)

    def compute(self, ACC, M2, tiles):
        a, M, vST, PK, PO = self.a, self.M, self.vST, self.PK, self.PO
        def sm(frag, kbslot):
            for t in tiles:
                a(f"v_smfmac_f32_16x16x64_bf16 {vr(ACC+4*t,4)}, {vr(frag,4)}, {ar(kbslot*16+8*t,8)}, v{self.vIDX}")
        pre = 2 if len(tiles) == 2 else Cfg.p_pre1
        for i in range(pre):
            sm(M + 4 * i, i)
        a("s_waitcnt lgkmcnt(0)")
        a("s_barrier")
        own = list(range(pre, 4))
        for G in range(1, 4):
            for i in range(4):
                a(f"ds_read_b128 {vr(M2+16*(G-1)+4*i,4)}, v{vST+G} offset:{1024*i}")
            if own:
                i = own.pop(0)
                sm(M + 4 * i, i)
        for i in own:
            sm(M + 4 * i, i)
        for n in range(12):
            a(f"s_waitcnt lgkmcnt({11-n})")
            sm(M2 + 4 * n, 4 + n)
        a.nop(9 - len(tiles))
        for t in tiles:
            a(f"v_cvt_pk_bf16_f32 v{PK+2*t}, v{ACC+4*t}, v{ACC+4*t+1}")
            a(f"v_cvt_pk_bf16_f32 v{PK+2*t+1}, v{ACC+4*t+2}, v{ACC+4*t+3}")
        a.nop(2)
        a(f"v_mfma_f32_16x16x32_bf16 {vr(ACC+8,4)}, {vr(PK,4)}, {vr(self.SEL,4)}, 0")
        a.nop(8)
        a(f"v_cvt_pk_bf16_f32 v{PO}, v{ACC+8}, v{ACC+9}")
        a(f"v_cvt_pk_bf16_f32 v{PO+1}, v{ACC+10}, v{ACC+11}")
        a(f"v_min_u32 v{PO}, -2, v{PO}")
        a(f"buffer_store_dwordx2 {vr(PO,2)}, v{self.vPMo}, {WS}, s{self.sSL2} offen {self.loc}")

    def finish(self):
        a = self.a
        a(f"buffer_store_dwordx2 {vr(self.vSEN,2)}, v{self.vPMo}, {WS}, s{self.sSL} offen {self.loc}")
        for G in range(4):
            a(f"v_xor_b32 v{self.vST+G}, 0x4000, v{self.vST+G}")
```

```python
from gen import *

def role_or(a, mode):
    loc = "" if mode == 0 else "sc1"
    va = VAlloc()
    sB, sJ, sVM, sVX, sPP, sPX, sPARTw, sPARTr, sTW, sXPW, sFL = 72, 74, 75, 76, 77, 78, 79, 80, 81, 82, 83
    sA, sBb, sC, sD, sE, sF, sG = 85, 86, 87, 88, 89, 90, 91
    sR0, sR1, sMp, sMr = 84, 71, sT4, sT5
    sM0 = 92
    PXL = 32768
    VML = 49152
    PPL_ = 57344
    a(f"s_sub_u32 s{sJ}, s{sSLOT}, 12")
    a(f"s_lshl_b32 s{sT2}, s{sX}, 20")
    a(f"s_lshl_b32 s{sT1}, s{sJ}, 8")
    a(f"s_add_u32 s{sT2}, s{sT2}, s{sT1}")
    a(f"s_add_u32 s{S_W}, s{P_WO}, s{sT2}")
    a(f"s_addc_u32 s{S_W+1}, s{P_WO+1}, 0")
    a(f"s_sub_u32 s{S_W+2}, {8*MB:#x}, s{sT2}")
    a(f"s_mov_b32 s{S_W+3}, 0x00020000")
    a(f"s_lshl_b32 s{sVM}, s{sX}, 2")
    a(f"s_add_u32 s{sVM}, s{sVM}, s{sWV}")
    a(f"s_lshl_b32 s{sVM}, s{sVM}, 13")
    a(f"s_add_u32 s{sVM}, s{sVM}, {PM_OFF + 64*8192:#x}")
    a(f"s_lshl_b32 s{sT0}, s{sX}, 2")
    a(f"s_lshr_b32 s{sT1}, s{sWV}, 1")
    a(f"s_add_u32 s{sT0}, s{sT0}, s{sT1}")
    a(f"s_lshl_b32 s{sVX}, s{sT0}, {XP_SH}")
    a(f"s_and_b32 s{sT1}, s{sWV}, 1")
    a(f"s_lshl_b32 s{sT1}, s{sT1}, 12")
    a(f"s_add_u32 s{sVX}, s{sVX}, s{sT1}")
    a(f"s_add_u32 s{sVX}, s{sVX}, {64<<XP_SH:#x}")
    a(f"s_lshl_b32 s{sPP}, s{sX}, 14")
    a(f"s_add_u32 s{sPP}, s{sPP}, {PP_OFF:#x}")
    a(f"s_min_u32 s{sT1}, s{sWV}, 2")
    a(f"s_lshl_b32 s{sT1}, s{sT1}, 10")
    a(f"s_add_u32 s{sPP}, s{sPP}, s{sT1}")
    a(f"s_lshl_b32 s{sTW}, s{sX}, 12")
    a(f"s_lshl_b32 s{sT1}, s{sJ}, 7")
    a(f"s_add_u32 s{sTW}, s{sTW}, s{sT1}")
    a(f"s_add_u32 s{sTW}, s{sTW}, {TW_OFF:#x}")
    a(f"s_lshl_b32 s{sPX}, s{sX}, 16")
    a(f"s_mul_i32 s{sT1}, s{sWV}, 3072")
    a(f"s_add_u32 s{sPX}, s{sPX}, s{sT1}")
    a(f"s_add_u32 s{sPX}, s{sPX}, {PX_OFF:#x}")
    a(f"s_lshl_b32 s{sT0}, s{sJ}, 2")
    a(f"s_add_u32 s{sT0}, s{sT0}, s{sWV}")
    a(f"s_and_b32 s{sT1}, s{sT0}, 15")
    a(f"s_lshl_b32 s{sT1}, s{sT1}, 9")
    a(f"s_lshr_b32 s{sT2}, s{sT0}, 4")
    a(f"s_lshl_b32 s{sT2}, s{sT2}, 14")
    a(f"s_add_u32 s{sT1}, s{sT1}, s{sT2}")
    a(f"s_add_u32 s{sPARTr}, s{sT1}, {PART_OFF:#x}")
    a(f"s_lshl_b32 s{sT2}, s{sX}, 15")
    a(f"s_add_u32 s{sPARTw}, s{sPARTr}, s{sT2}")
    a(f"s_lshl_b32 s{sT1}, s{sT0}, 17")
    a(f"s_add_u32 s{sXPW}, s{sT1}, {XPART_OFF:#x}")
    a(f"s_lshl_b32 s{sT2}, s{sX}, 22")
    a(f"s_add_u32 s{sXPW}, s{sXPW}, s{sT2}")
    a(f"s_lshl_b32 s{sFL}, s{sT0}, 13")
    a(f"s_lshl_b32 s{sT1}, s{sX}, 2")
    a(f"s_add_u32 s{sFL}, s{sFL}, s{sT1}")
    a(f"s_add_u32 s{sFL}, s{sFL}, {FLG_OFF:#x}")
    prof = Prof(a, va)
    vW, vTR, t0, t1 = weight_addr_setup(a, va, 2048, sB, True)
    for i in range(Cfg.o_wait):
        a("s_sleep 32")
    prof.mark(2)
    weight_dma(a, vW, 0, 0, 2048, sB)
    weight_dma(a, vW, 1, 1, 2048, sB)
    t2 = va.get(); vtmp = va.get()
    vL16 = va.get(); vPW = va.get(); vPF = va.get(); vMW = va.get(); vFL = va.get(); vZ = va.get()
    vSEN = va.get(4, 4)
    a(f"v_lshlrev_b32 v{vL16}, 4, v0")
    a(f"v_lshrrev_b32 v{t0}, 5, v0")
    a(f"v_and_b32 v{t1}, 15, v0")
    a(f"v_lshl_add_u32 v{t0}, v{t0}, 4, v{t1}")
    a(f"v_lshlrev_b32 v{t0}, 4, v{t0}")
    a(f"v_bfe_u32 v{t1}, v0, 4, 1")
    a(f"v_lshl_add_u32 v{vPW}, v{t1}, 13, v{t0}")
    a(f"s_lshl_b32 s{sT0}, s{sWV}, 10")
    a(f"s_add_u32 s{sT0}, s{sT0}, {PPL_}")
    a(f"v_add_u32 v{vPF}, s{sT0}, v{vL16}")
    a(f"s_lshl_b32 s{sT0}, s{sWV}, 11")
    a(f"s_add_u32 s{sT0}, s{sT0}, {VML}")
    a(f"v_add_u32 v{vMW}, s{sT0}, v{vL16}")
    for r in range(4):
        a(f"v_mov_b32 v{vSEN+r}, -1")
    a(f"v_mov_b32 v{vZ}, 0")
    a(f"v_min_u32 v{t0}, 1, v0")
    a(f"v_lshlrev_b32 v{vFL}, 28, v{t0}")
    vTWo = va.get()
    a(f"s_cmp_eq_u32 s{sWV}, 3")
    a(f"s_cselect_b32 s{sT0}, 0, 0x10000000")
    a(f"v_or_b32 v{vTWo}, s{sT0}, v{vFL}")
    PK = va.get(4, 4)
    vXP = va.get(); vXQ = va.get(); sXA = 84
    a(f"v_lshrrev_b32 v{t0}, 4, v0")
    a(f"v_min_u32 v{t0}, 1, v{t0}")
    a(f"v_lshlrev_b32 v{t0}, 28, v{t0}")
    a(f"v_lshl_add_u32 v{t0}, v0, 7, v{t0}")
    a(f"s_lshl_b32 s{sT0}, s{sJ}, 2")
    a(f"s_add_u32 s{sT0}, s{sT0}, s{sWV}")
    a(f"s_lshl_b32 s{sT0}, s{sT0}, 11")
    a(f"v_add_u32 v{vXP}, s{sT0}, v{t0}")
    XPF = f"buffer_load_dword v{vXQ}, v{vXP}, {XS}, s{sXA} offen"
    vIDX = va.get()
    idx_setup(a, vIDX, t0)

    PXR = va.get(48, 4)
    VM = PXR
    UA = va.get(32, 4)
    UX = va.get(32, 8); UM = va.get(16, 8)
    FR = PXR
    VO = va.get(8, 4); PPR = FR; XO = va.get(8, 4)
    ACC = UA
    WT = PXR
    assert UA == PXR + 48
    a(f"v_and_b32 v{t0}, 2, v0")
    a(f"v_cmp_eq_u32 s[92:93], 0, v{t0}")
    a(f"v_cmp_ne_u32 s[94:95], 0, v{t0}")
    for c in range(2):
        a(f"s_waitcnt vmcnt({16 if c == 0 else 0})")
        a("s_barrier")
        for ks in range(8):
            for t in range(2):
                for q in range(2):
                    d = (ks >> 1) * 16 + t * 8 + (ks & 1) * 4 + 2 * q
                    a(f"ds_read_b64_tr_b16 {vr(WT+d,2)}, v{vTR[c][q]} offset:{ks*8192 + 8*t}")
        a("s_waitcnt lgkmcnt(0)")
        for t in range(2):
            a(f"s_mov_b64 vcc, s[{92+2*t}:{93+2*t}]")
            for kb in range(4):
                for r in range(8):
                    A = WT + kb * 16 + r; B = A + 8
                    if t == 0:
                        a(f"v_cndmask_b32_dpp v{vtmp}, v{B}, v{A}, vcc quad_perm:[0,1,0,1] row_mask:0xf bank_mask:0xf")
                    else:
                        a(f"v_cndmask_b32_dpp v{vtmp}, v{A}, v{B}, vcc quad_perm:[2,3,2,3] row_mask:0xf bank_mask:0xf")
                    a(f"v_accvgpr_write_b32 a{c*64 + kb*16 + 8*t + r}, v{vtmp}")
                    a("s_nop 0")
    a("s_barrier")
    for k in range(1, 3):
        a(f"s_mov_b32 s{sXA}, {k << 16}")
        a(XPF)
    prof.mark(8)
    handshake_wait(a, mode, t0, t1, 8)
    prof.mark(9)

    def vm_loads():
        return [f"buffer_load_dwordx4 {vr(VO+4*b,4)}, v{vL16}, {WS}, s{sA} offen offset:{1024*b} sc1" for b in range(2)]
    def vm_slots():
        a(f"s_and_b32 s{sT0}, s{sS}, 3")
        a(f"s_lshl_b32 s{sT0}, s{sT0}, 11")
        a(f"s_add_u32 s{sA}, s{sT0}, s{sVM}")
    def vx_setup():
        a(f"s_add_u32 s{sT0}, s{sS}, 1")
        a(f"s_and_b32 s{sT0}, s{sT0}, {XP_MASK}")
        a(f"s_lshl_b32 s{sT0}, s{sT0}, 13")
        a(f"s_add_u32 s{sE}, s{sT0}, s{sVX}")
        a(f"s_add_u32 s{sF}, s{sE}, {2<<XP_SH:#x}")
    def vx_dma(pair):
        a(f"s_lshl_b32 m0, s{sWV}, 12")
        if pair:
            a("s_add_u32 m0, m0, 16384")
        a("s_nop 0")
        for i in range(4):
            a(f"buffer_load_dwordx4 v{vL16}, {WS}, s{sE+pair} offen offset:{1024*i} sc1 lds")
    def px_dma():
        a(f"s_mul_i32 m0, s{sWV}, 3072")
        a(f"s_add_u32 m0, m0, {PXL}")
        a("s_nop 0")
        for i in range(3):
            a(f"buffer_load_dwordx4 v{vL16}, {WS}, s{sG} offen offset:{1024*i} sc1 lds")
    def ux_all(dst, extra={}, mid=None):
        frs = [(hl, ks, rt) for hl in range(4) for ks in range(4) for rt in range(2)]
        DEPTH = 5; NR = 8
        def rd(f):
            hl, ks, rt = frs[f]
            a(f"ds_read_b128 {vr(FR+4*(f%NR),4)}, v{vL16} offset:{hl*8192 + rt*4096 + ks*1024}")
        def cvts(hl):
            base = UA + 16 * (hl & 1)
            out = []
            for t in range(2):
                for rt in range(2):
                    acc = base + 8 * rt + 4 * t
                    d = dst + 16 * t + 4 * hl + 2 * rt
                    out.append(f"v_cvt_pk_bf16_f32 v{d}, v{acc}, v{acc+1}")
                    out.append(f"v_cvt_pk_bf16_f32 v{d+1}, v{acc+2}, v{acc+3}")
            return out
        for f in range(DEPTH):
            rd(f)
        pend = []
        for f in range(32):
            hl, ks, rt = frs[f]
            if mid and f + DEPTH == 16:
                mid(f)
            a(f"s_waitcnt lgkmcnt({min(DEPTH-1, 31-f)})")
            if hl > 0 and f % 8 == 3:
                pend = cvts(hl - 1)
            for t in range(2):
                acc = UA + 16 * (hl & 1) + 8 * rt + 4 * t
                c = "0" if ks == 0 else vr(acc, 4)
                a(f"v_mfma_f32_16x16x32_bf16 {vr(acc,4)}, {vr(FR+4*(f%NR),4)}, {ar((2*hl+(ks>>1))*16+8*t+4*(ks&1),4)}, {c}")
                if t == 0 and f + DEPTH < 32:
                    rd(f + DEPTH)
                if t == 1:
                    for l in extra.get(f, []):
                        a(l)
                if pend:
                    a(pend.pop(0))
        return cvts(3)

    a(f"s_mov_b32 s{sS}, -1")
    vm_slots()
    poll(a, vm_loads(), range(VO, VO + 8, 2), vtmp, sleep=4)
    a("s_barrier")
    prof.mark(10)
    vx_setup()
    vx_dma(0)
    vx_dma(1)
    a("s_waitcnt vmcnt(0)")
    a("s_barrier")
    last = ux_all(UX)
    a.nop(8)
    for l in last:
        a(l)
    a(f"s_mov_b32 s{sS}, 0")
    dbg_time(a, 9)
    prof.mark(11)
    PQ = va.get(4, 4)
    PA = va.get(8, 4)
    LOOP = a.newlabel("or_loop")
    a.label(LOOP)
    for r in range(32):
        a(f"v_mov_b32 v{UA+r}, 0")
    for r in range(8):
        a(f"v_mov_b32 v{PA+r}, 0")
    vm_slots()
    vx_setup()
    a(f"s_and_b32 s{sT0}, s{sS}, 3")
    a(f"s_lshl_b32 s{sBb}, s{sT0}, 12")
    a(f"s_add_u32 s{sBb}, s{sBb}, s{sPP}")
    a(f"s_lshl_b32 s{sG}, s{sT0}, 14")
    a(f"s_add_u32 s{sG}, s{sG}, s{sPX}")
    a(f"s_lshl_b32 s{sC}, s{sT0}, 18")
    a(f"s_xor_b32 s{sD}, s{sC}, {2<<18:#x}")
    a(f"s_add_u32 s{sC}, s{sC}, s{sPARTw}")
    a(f"s_add_u32 s{sD}, s{sD}, s{sPARTw}")
    a(f"s_lshl_b32 s{sT4}, s{sT0}, 10")
    a(f"s_xor_b32 s{sT5}, s{sT4}, 2048")
    a(f"s_add_u32 s{sT4}, s{sT4}, s{sTW}")
    a(f"s_add_u32 s{sT5}, s{sT5}, s{sTW}")
    if Cfg.o_idle:
        a(f"s_sleep {Cfg.o_idle}")
    prof.stamp(0, lite=True)
    a("s_waitcnt vmcnt(0)")
    poll2(a, vm_loads(), list(range(VO, VO + 8, 2)), vtmp, gap=56 // Cfg.vm_depth, depth=Cfg.vm_depth)
    prof.stamp(1)
    for b in range(2):
        a(f"ds_write_b128 v{vMW}, {vr(VO+4*b,4)} offset:{1024*b}")
    a(f"s_lshl_b32 m0, s{sWV}, 12")
    a("s_waitcnt lgkmcnt(0)")
    a("s_barrier")
    for k in range(8):
        a(f"ds_read_b128 {vr(VM+4*k,4)}, v{vL16} offset:{VML + 1024*k}")
    PP1 = f"buffer_load_dwordx4 {vr(PQ,4)}, v{vL16}, {WS}, s{sBb} offen sc1"
    def um_cvt(hl):
        for t in range(2):
            acc = UA + 8 * hl + 4 * t
            a(f"v_cvt_pk_bf16_f32 v{UM+8*t+2*hl}, v{acc}, v{acc+1}")
            a(f"v_cvt_pk_bf16_f32 v{UM+8*t+2*hl+1}, v{acc+2}, v{acc+3}")
    for hl in range(4):
        for b in range(2):
            a(f"s_waitcnt lgkmcnt({7-2*hl-b})")
            for t in range(2):
                a(f"v_smfmac_f32_16x16x64_bf16 {vr(UA+8*hl+4*t,4)}, {vr(VM+8*hl+4*b,4)}, {ar((2*hl+b)*16+8*t,8)}, v{vIDX}")
                if hl < 2 and t == 1:
                    a(f"buffer_load_dwordx4 v{vL16}, {WS}, s{sE} offen offset:{1024*(2*hl+b)} sc1 lds")
                if (hl, b, t) == (3, 0, 1) or (Cfg.pp_depth == 3 and (hl, b, t) == (3, 1, 1)):
                    a(PP1)
                if hl >= 2:
                    acc = UA + 8 * (hl - 2) + 4 * b
                    a(f"v_cvt_pk_bf16_f32 v{UM+8*b+2*(hl-2)+t}, v{acc+2*t}, v{acc+2*t+1}")
    um_cvt(2)
    a(f"s_mul_i32 m0, s{sWV}, 3072")
    a(f"s_add_u32 m0, m0, {PXL}")
    NL = a.newlabel("or_notlast"); PXW = a.newlabel("or_pxwait")
    a(f"s_cmp_lt_u32 s{sS}, 63")
    a("s_nop 0")
    um_cvt(3)
    prof.stamp(2, keep_m0=True)
    PXD = [f"buffer_load_dwordx4 v{vL16}, {WS}, s{sG} offen offset:{1024*i} sc1 lds" for i in range(3)]
    a(f"s_cbranch_scc1 {NL}")
    for l in PXD:
        a(l)
    a("s_waitcnt vmcnt(0)")
    a(f"s_branch {PXW}")
    a.label(NL)
    PL = a.newlabel("or_pp"); PD = a.newlabel("or_ppd")
    a(f"s_cmp_eq_u32 s{sWV}, 3")
    a(f"s_cbranch_scc0 {PL}")
    a("s_waitcnt vmcnt(0)")
    a(f"s_branch {PD}")
    a.label(PL)
    a(PP1)
    a(f"s_sub_u32 s{sBUD}, s{sBUD}, 1")
    a(f"s_cbranch_scc1 {a.abort}")
    a(f"s_waitcnt vmcnt({Cfg.pp_depth - 1})")
    a(f"v_max3_u32 v{vtmp}, v{PQ}, v{PQ+1}, v{PQ+2}")
    a(f"v_max_u32 v{vtmp}, v{vtmp}, v{PQ+3}")
    a(f"ds_write_b128 v{vPF}, {vr(PQ,4)}")
    a(f"v_cmp_eq_u32 vcc, -1, v{vtmp}")
    a(f"s_cbranch_vccnz {PL}")
    prof.stamp(6, keep_m0=True)
    a("s_waitcnt lgkmcnt(0)")
    a.label(PD)
    a("s_barrier")
    for k in range(3):
        a(f"ds_read_b128 {vr(PPR+4*k,4)}, v{vL16} offset:{PPL_ + 1024*k}")
    TWS = f"buffer_store_dword v{vZ}, v{vTWo}, {WS}, s{sT4} offen {loc}"
    if Cfg.tw_early:
        a(TWS)
    for k in range(3):
        a(f"s_waitcnt lgkmcnt({2-k})")
        for t in range(2):
            b = UX + 16 * t + 8 * k if k < 2 else UM + 8 * t
            a(f"v_smfmac_f32_16x16x64_bf16 {vr(PA+4*t,4)}, {vr(PPR+4*k,4)}, {vr(b,8)}, v{vIDX}")
            if t == 0:
                a(PXD[k])
    if not Cfg.tw_early:
        a(TWS)
        a.nop(7)
    else:
        a.nop(8)
    for r in range(4):
        a(f"v_permlane32_swap_b32 v{PA+r}, v{PA+4+r}")
    for r in range(0, 4, 2):
        a(f"v_pk_add_f32 {vr(PA+r,2)}, {vr(PA+r,2)}, {vr(PA+4+r,2)}")
    a(f"v_cvt_pk_bf16_f32 v{PK}, v{PA}, v{PA+1}")
    a(f"v_cvt_pk_bf16_f32 v{PK+1}, v{PA+2}, v{PA+3}")
    a(f"v_cvt_pk_bf16_f32 v{PK+3}, v{PA+2}, v{PA+3}")
    a(f"v_min_u32 v{PK+2}, -2, v{PK}")
    a(f"v_min_u32 v{PK}, -2, v{PK}")
    a(f"v_permlane16_swap_b32 v{PK+1}, v{PK+3}")
    a("s_nop 0")
    a(f"v_permlane16_swap_b32 v{PK}, v{PK+2}")
    a(f"buffer_store_dwordx4 {vr(PK,4)}, v{vPW}, {WS}, s{sC} offen sc1")
    prof.stamp(4, lite=True)
    a("s_waitcnt vmcnt(1)")
    a.label(PXW)
    RETRY = a.newlabel("or_pxretry"); PXOK = a.newlabel("or_pxok")
    a("s_barrier")
    vx_dma(1)
    a.label(RETRY)
    order = [(ks, rt) for ks in range(6) for rt in range(2)]
    for ks, rt in order:
        k = 6 * rt + ks
        a(f"ds_read_b128 {vr(PXR+4*k,4)}, v{vL16} offset:{PXL + 1024*k}")
    a(f"v_mov_b32 v{vtmp}, 0")
    for n, (ks, rt) in enumerate(order):
        k = 6 * rt + ks
        a(f"s_waitcnt lgkmcnt({11-n})")
        for t in range(2):
            u = UX + 16 * t + 4 * ks if ks < 4 else UM + 8 * t + 4 * (ks - 4)
            acc = ACC + 8 * rt + 4 * t
            c = "0" if ks == 0 else vr(acc, 4)
            a(f"v_mfma_f32_16x16x32_bf16 {vr(acc,4)}, {vr(u,4)}, {vr(PXR+4*k,4)}, {c}")
        a(f"v_max3_u32 v{vtmp}, v{vtmp}, v{PXR+4*k}, v{PXR+4*k+2}")
    a(f"v_cmp_eq_u32 vcc, -1, v{vtmp}")
    a(f"s_cbranch_vccz {PXOK}")
    a("s_barrier")
    px_dma()
    a("s_waitcnt vmcnt(0)")
    a("s_barrier")
    a(f"s_sub_u32 s{sBUD}, s{sBUD}, 1")
    a(f"s_cbranch_scc0 {RETRY}")
    a("s_endpgm")
    a.label(PXOK)
    a(f"s_lshl_b32 s{sT1}, s{sS}, 11")
    a(f"s_add_u32 s{sT1}, s{sT1}, s{sXPW}")
    a(f"s_sub_u32 s{sT2}, s{sS}, 1")
    a(f"s_lshl_b32 s{sT2}, s{sT2}, 7")
    a(f"s_cmp_lt_u32 s{sS}, 1")
    a(f"s_cselect_b32 s{sT2}, 64, s{sT2}")
    a(f"s_add_u32 s{sT2}, s{sT2}, s{sFL}")
    for rt in range(2):
        for t in range(2):
            acc = ACC + 8 * rt + 4 * t
            a(f"v_cvt_pk_bf16_f32 v{XO+4*rt+t}, v{acc}, v{acc+1}")
            a(f"v_cvt_pk_bf16_f32 v{XO+4*rt+2+t}, v{acc+2}, v{acc+3}")
    XST = [f"buffer_store_dwordx4 {vr(XO+4*rt,4)}, v{vL16}, {WS}, s{sT1} offen offset:{1024*rt} sc1" for rt in range(2)]
    XST.append(f"buffer_store_dword v{vZ}, v{vFL}, {WS}, s{sT2} offen sc1")
    prof.stamp(5)
    TAIL = a.newlabel("or_tail")
    a(f"s_cmp_eq_u32 s{sS}, 63")
    a(f"s_cbranch_scc1 {TAIL}")
    late = XST + [f"buffer_store_dwordx4 {vr(vSEN,4)}, v{vPW}, {WS}, s{sD} offen sc1",
                  f"buffer_store_dword v{vSEN}, v{vTWo}, {WS}, s{sT5} offen {loc}"]

    ex = {Cfg.st_at + 2 * i: [l] for i, l in enumerate(late)}
    def mid(f):
        a(f"s_waitcnt vmcnt({sum(1 for k in ex if k < f)})")
        a("s_barrier")
    last = ux_all(UX, ex, mid)
    a.nop(8)
    for l in last:
        a(l)
    prof.stamp(7)
    a(f"s_add_u32 s{sS}, s{sS}, 1")
    a(f"s_branch {LOOP}")
    a.label(TAIL)
    prof.mark(19)
    for l in XST:
        a(l)
    a("s_waitcnt vmcnt(0)")
    a(f"s_add_u32 s{sT0}, s{sFL}, {63<<7}")
    a(f"buffer_store_dword v{vZ}, v{vFL}, {WS}, s{sT0} offen sc1")
    prof.stamp(7)
    dbg_time(a, 10)
    prof.mark(20)
    prof.dump()
    a("s_endpgm")
```

```python
from gen import *
from gen_mp import MemPass

def role_proj(a, mode):
    loc = "" if mode == 0 else "sc1"
    va = VAlloc()
    sXP, sXM = 76, 80
    prof = Prof(a, va)
    MP = MemPass(a, va, mode, sSLOT, prof, False)
    prof.mark(2)
    MP.start_weights()
    MP.setup()
    t0, t1, t2, vL16, sTY = MP.t0, MP.t1, MP.t2, MP.vL16, MP.sTY
    a(f"s_lshl_b32 s{sXP}, s{MP.sTH}, {XP_SH}")
    a(f"s_lshl_b32 s{sT3}, s{sWV}, 10")
    a(f"s_add_u32 s{sXP}, s{sXP}, s{sT3}")
    vXD = va.get()
    a(f"v_lshrrev_b32 v{t0}, 3, v0")
    a(f"v_lshrrev_b32 v{t1}, 4, v0")
    a(f"s_and_b32 s{sT3}, s{sWV}, 1")
    a(f"s_lshl_b32 s{sT3}, s{sT3}, 2")
    a(f"v_add_u32 v{t1}, s{sT3}, v{t1}")
    a(f"v_and_b32 v{t2}, 7, v0")
    a(f"v_xor_b32 v{t1}, v{t1}, v{t2}")
    a(f"v_lshlrev_b32 v{t1}, 4, v{t1}")
    a(f"s_lshl_b32 s{sT3}, s{sWV}, 3")
    a(f"v_add_u32 v{t0}, s{sT3}, v{t0}")
    a(f"v_lshl_add_u32 v{vXD}, v{t0}, 11, v{t1}")
    vXR = va.get(8)
    a(f"v_bfe_u32 v{t0}, v0, 3, 1")
    a(f"v_lshlrev_b32 v{t0}, 10, v{t0}")
    a(f"v_and_b32 v{t1}, 7, v0")
    a(f"v_lshl_add_u32 v{t0}, v{t1}, 7, v{t0}")
    a(f"v_bfe_u32 v{t1}, v0, 1, 3")
    a(f"v_lshrrev_b32 v{t2}, 4, v0")
    a(f"v_xor_b32 v{t1}, v{t1}, v{t2}")
    a(f"v_lshl_add_u32 v{t0}, v{t1}, 4, v{t0}")
    for G in range(4):
        a(f"s_add_u32 s{sT3}, s{sWV}, {G}")
        a(f"s_and_b32 s{sT3}, s{sT3}, 3")
        a(f"s_lshl_b32 s{sT4}, s{sT3}, 14")
        a(f"v_add_u32 v{vXR+2*G}, s{sT4}, v{t0}")
        a(f"v_xor_b32 v{vXR+2*G+1}, 64, v{vXR+2*G}")
    vXP = va.get(); vXQ = va.get(); sXA = 82
    a(f"v_lshrrev_b32 v{t0}, 4, v0")
    a(f"s_lshr_b32 s{sT0}, s{sSLOT}, 3")
    a(f"v_or_b32 v{t0}, s{sT0}, v{t0}")
    a(f"v_min_u32 v{t0}, 1, v{t0}")
    a(f"v_lshlrev_b32 v{t0}, 28, v{t0}")
    a(f"v_lshl_add_u32 v{t0}, v0, 7, v{t0}")
    a(f"s_lshl_b32 s{sT0}, s{sSLOT}, 2")
    a(f"s_add_u32 s{sT0}, s{sT0}, s{sWV}")
    a(f"s_lshl_b32 s{sT0}, s{sT0}, 11")
    a(f"v_add_u32 v{vXP}, s{sT0}, v{t0}")
    def x0():
        a(f"s_lshl_b32 s{sXM}, s{sWV}, 10")
        a(f"s_mov_b32 s{sXM+1}, 0")
        for kb in range(16):
            a(f"s_add_u32 m0, s{sXM}, {kb*(4096-128)}")
            a("s_nop 0")
            a(f"buffer_load_dwordx4 v{vXD}, {XS}, s{sXM+1} offen offset:{kb*128} lds")
    MP.load_weights(x0)
    prof.mark(7)
    M2 = va.get(48, 4)
    ACC = va.get(16, 4); FR = va.get(32, 4); OUTR = va.get(8, 4)
    a(f"s_mov_b32 s{sS}, -2")
    LOOP = a.newlabel("proj_loop"); CRIT = a.newlabel("proj_crit"); XPASS = a.newlabel("proj_x"); END = a.newlabel("proj_end")
    a.label(LOOP)
    a(f"s_cmp_ge_i32 s{sS}, 0")
    a(f"s_cbranch_scc1 {CRIT}")
    a("s_waitcnt vmcnt(0)")
    a("s_barrier")
    a(f"s_cmp_eq_i32 s{sS}, -2")
    a(f"s_cbranch_scc1 {XPASS}")
    prof.mark(8)
    handshake_wait(a, mode, t0, t1, 8)
    prof.mark(9)
    a(f"s_add_u32 s{sT0}, s{MP.sPM}, {3*2048}")
    a(f"buffer_store_dwordx2 {vr(MP.PK,2)}, v{MP.vPMa}, {WS}, s{sT0} offen {loc}")
    a(f"s_branch {XPASS}")
    FULL = a.newlabel("proj_full"); PUB = a.newlabel("proj_pub")
    if Cfg.qk_split:
        a.label(FULL)
        MP.compute(ACC, M2, (0, 1))
        a(f"s_branch {PUB}")
    a.label(CRIT)
    prof.stamp(0, lite=True)
    MP.gather(ACC)
    prof.stamp(1)
    if Cfg.qk_split:
        a(f"s_cmp_eq_u32 s{sTY}, 2")
        a(f"s_cbranch_scc1 {FULL}")
        MP.compute(ACC, M2, (0,))
    else:
        MP.compute(ACC, M2, (0, 1))
    a.label(PUB)
    prof.stamp(2, lite=True)
    MP.finish()
    prof.stamp(4, True)
    a(f"s_cmp_ge_i32 s{sS}, 62")
    a(f"s_cbranch_scc1 {END}")
    a.label(XPASS)
    a(f"s_add_u32 s{sT0}, s{sS}, 3")
    a(f"s_min_u32 s{sT1}, s{sT0}, 63")
    a(f"s_lshl_b32 s{sXM+1}, s{sT1}, 16")
    a(f"s_and_b32 s{sT0}, s{sT0}, 1")
    a(f"s_lshl_b32 s{sT0}, s{sT0}, 16")
    a(f"s_lshl_b32 s{sXM}, s{sWV}, 10")
    a(f"s_add_u32 s{sXM}, s{sXM}, s{sT0}")
    a(f"s_add_u32 s{sXA}, s{sS}, 5")
    a(f"s_min_u32 s{sXA}, s{sXA}, 63")
    a(f"s_lshl_b32 s{sXA}, s{sXA}, 16")
    DEPTH = 6
    DE = Cfg.x_every
    frs = [(ks, rt) for ks in range(32) for rt in range(2)]
    def rd(f):
        ks, rt = frs[f]
        G = ks >> 3
        a(f"ds_read_b128 {vr(FR+4*(f%8),4)}, v{vXR+2*G+(ks&1)} offset:{((ks>>1)&3)*4096 + rt*2048}")
    for f in range(DEPTH):
        rd(f)
    for f in range(64):
        ks, rt = frs[f]
        dm = (f % DE == 1 and f // DE < 16)
        a(f"s_waitcnt lgkmcnt({min(DEPTH-1, 63-f)})")
        if dm:
            a(f"s_add_u32 m0, s{sXM}, {(f//DE)*(4096-128)}")
        for t in range(2):
            acc = ACC + 8 * rt + 4 * t
            c = "0" if ks == 0 else vr(acc, 4)
            a(f"v_mfma_f32_16x16x32_bf16 {vr(acc,4)}, {ar((ks>>1)*16+8*t+4*(ks&1),4)}, {vr(FR+4*(f%8),4)}, {c}")
            if t == 0 and f + DEPTH < 64:
                rd(f + DEPTH)
            if t == 1 and f == 16 * DE + 1 and not Cfg.no_xpf:
                a(f"buffer_load_dword v{vXQ}, v{vXP}, {XS}, s{sXA} offen")
            if t == 1 and dm:
                a(f"buffer_load_dwordx4 v{vXD}, {XS}, s{sXM+1} offen offset:{(f//DE)*128} lds")
    for k in range(8):
        a(f"v_xor_b32 v{vXR+k}, 0x10000, v{vXR+k}")
    a(f"s_add_u32 s{sT0}, s{sS}, 2")
    a(f"s_and_b32 s{sT0}, s{sT0}, {XP_MASK}")
    a(f"s_lshl_b32 s{sT0}, s{sT0}, 13")
    a(f"s_add_u32 s{sT0}, s{sT0}, s{sXP}")
    a(f"s_add_u32 s{sT1}, s{sT0}, 4096")
    for rt in range(2):
        for t in range(2):
            acc = ACC + 8 * rt + 4 * t
            a(f"v_cvt_pk_bf16_f32 v{OUTR+4*rt+2*t}, v{acc}, v{acc+1}")
            a(f"v_cvt_pk_bf16_f32 v{OUTR+4*rt+2*t+1}, v{acc+2}, v{acc+3}")
    NS = a.newlabel("proj_noswap")
    a(f"s_cmp_eq_u32 s{sTY}, 2")
    a(f"s_cbranch_scc0 {NS}")
    a(f"v_swap_b32 v{OUTR+1}, v{OUTR+2}")
    a(f"v_swap_b32 v{OUTR+5}, v{OUTR+6}")
    a.label(NS)
    for rt in range(2):
        a(f"buffer_store_dwordx4 {vr(OUTR+4*rt,4)}, v{vL16}, {WS}, s{sT0+rt} offen {loc}")
    prof.stamp(5, True)
    prof.stamp(3)
    a.label(END)
    a("s_waitcnt vmcnt(0)")
    a(f"s_add_u32 s{sS}, s{sS}, 1")
    a(f"s_cmp_lt_i32 s{sS}, 64")
    a(f"s_cbranch_scc1 {LOOP}")
    prof.mark(20)
    prof.dump()
    a("s_endpgm")
```

```python
from gen import *

class RDuty:
    def __init__(self, a, va, mode, sJW, sbase, prof):
        self.a, self.prof = a, prof
        self.loc = loc = "" if mode == 0 else "sc1"
        sPARTr, sMEMw, sPP, sR0, sR1, sMp, sMr, sTW = range(sbase, sbase + 8)
        self.s = (sPARTr, sMEMw, sPP, sR0, sR1, sMp, sMr, sTW)
        t0 = va.get(); t1 = va.get(); t2 = va.get()
        vPR = va.get(); vME = va.get(); vTW = va.get(); vONE = va.get()
        SEL = va.get(8, 4); PR = va.get(16, 4); ACC = va.get(4, 4); PK = va.get(2); vSEN = va.get(2)
        self.v = (t0, t1, vPR, vME, vTW, SEL, PR, ACC, PK, vSEN)
        srd(a, S_AUX, P_MEM0, 16384)
        a(f"s_and_b32 s{sT1}, s{sJW}, 15")
        a(f"s_lshl_b32 s{sT1}, s{sT1}, 9")
        a(f"s_lshr_b32 s{sT2}, s{sJW}, 4")
        a(f"s_lshl_b32 s{sT2}, s{sT2}, 14")
        a(f"s_add_u32 s{sT1}, s{sT1}, s{sT2}")
        a(f"s_add_u32 s{sPARTr}, s{sT1}, {PART_OFF:#x}")
        a(f"s_and_b32 s{sT1}, s{sX}, 4")
        a(f"s_lshl_b32 s{sT1}, s{sT1}, 15")
        a(f"s_add_u32 s{sPARTr}, s{sPARTr}, s{sT1}")
        a(f"s_lshl_b32 s{sT1}, s{sJW}, 9")
        a(f"s_lshl_b32 s{sT2}, s{sX}, 16")
        a(f"s_add_u32 s{sMEMw}, s{sT1}, s{sT2}")
        a(f"s_add_u32 s{sMEMw}, s{sMEMw}, {MEM_OFF:#x}")
        a(f"s_lshl_b32 s{sPP}, s{sX}, 12")
        a(f"s_add_u32 s{sPP}, s{sPP}, {TW_OFF:#x}")
        a(f"v_mov_b32 v{vSEN}, -1")
        a(f"v_mov_b32 v{vSEN+1}, -1")
        a(f"v_lshrrev_b32 v{t0}, 4, v0")
        a(f"v_lshlrev_b32 v{t0}, 15, v{t0}")
        a(f"v_and_b32 v{t1}, 15, v0")
        a(f"v_lshl_add_u32 v{vPR}, v{t1}, 4, v{t0}")
        a(f"v_and_b32 v{t0}, 31, v0")
        a(f"v_and_b32 v{vTW}, 7, v0")
        a(f"v_lshlrev_b32 v{vTW}, 7, v{vTW}")
        a(f"v_lshlrev_b32 v{t0}, 4, v{t0}")
        a(f"v_lshrrev_b32 v{t1}, 5, v0")
        a(f"v_lshl_add_u32 v{vME}, v{t1}, 3, v{t0}")
        for sl in range(1, 4):
            a(f"s_add_u32 s{sT0}, s{sMEMw}, {sl*16384}")
            a(f"buffer_store_dwordx2 {vr(vSEN,2)}, v{vME}, {WS}, s{sT0} offen {loc}")
        a(f"v_and_b32 v{t0}, 7, v0")
        a(f"v_lshlrev_b32 v{t0}, 11, v{t0}")
        a(f"v_bfe_u32 v{t1}, v0, 4, 1")
        a(f"v_lshl_add_u32 v{t0}, v{t1}, 5, v{t0}")
        a(f"v_lshrrev_b32 v{t1}, 5, v0")
        a(f"v_lshl_add_u32 v{t0}, v{t1}, 4, v{t0}")
        a(f"v_bfe_u32 v{t1}, v0, 3, 1")
        a(f"v_lshl_add_u32 v{t0}, v{t1}, 2, v{t0}")
        a(f"s_lshl_b32 s{sT0}, s{sJW}, 6")
        a(f"buffer_load_dword v{PK}, v{t0}, {sr(S_AUX,4)}, s{sT0} offen")
        a(f"buffer_load_dword v{PK+1}, v{t0}, {sr(S_AUX,4)}, s{sT0} offen offset:8")
        a(f"v_and_b32 v{t0}, 15, v0")
        a(f"v_and_b32 v{t1}, 1, v0")
        a(f"v_lshlrev_b32 v{t1}, 4, v{t1}")
        a(f"v_mov_b32 v{t2}, 0x3f80")
        a(f"v_lshlrev_b32 v{t1}, v{t1}, v{t2}")
        a(f"v_lshrrev_b32 v{t0}, 1, v{t0}")
        for k in range(8):
            a(f"v_cmp_eq_u32 vcc, {k}, v{t0}")
            a("s_nop 1")
            a(f"v_cndmask_b32 v{SEL+k}, 0, v{t1}, vcc")
        a("s_waitcnt vmcnt(0)")
        a(f"v_min_u32 v{PK}, -2, v{PK}")
        a(f"v_min_u32 v{PK+1}, -2, v{PK+1}")
        a(f"buffer_store_dwordx2 {vr(PK,2)}, v{vME}, {WS}, s{sMEMw} offen {loc}")
        a(f"v_min_u32 v{vONE}, 1, v0")
        a(f"v_lshlrev_b32 v{vONE}, 28, v{vONE}")
        self.sJW, self.vONE = sJW, vONE

    def choose(self):
        a = self.a
        a(f"s_and_b32 s{sT0}, s{sT0}, 2")
        a(f"s_lshl_b32 s{sT0}, s{sT0}, 12")
        a(f"s_add_u32 s{self.s[0]}, s{self.s[0]}, s{sT0}")

    def setup(self):
        a = self.a
        sPARTr, sMEMw, sPP, sR0, sR1, sMp, sMr, sTW = self.s
        a(f"s_and_b32 s{sT0}, s{sS}, 3")
        a(f"s_lshl_b32 s{sTW}, s{sT0}, 10")
        a(f"s_add_u32 s{sTW}, s{sTW}, s{sPP}")
        a(f"s_lshl_b32 s{sR0}, s{sT0}, 18")
        a(f"s_add_u32 s{sR0}, s{sR0}, s{sPARTr}")
        a(f"s_xor_b32 s{sR1}, s{sR0}, {0 if Cfg.exp_half == 1 else 131072}")
        if Cfg.exp_half == 2:
            a(f"s_mov_b32 s{sR0}, s{sR1}")
        a(f"s_add_u32 s{sMp}, s{sS}, 1")
        a(f"s_and_b32 s{sMp}, s{sMp}, 3")
        a(f"s_lshl_b32 s{sMp}, s{sMp}, 14")
        a(f"s_xor_b32 s{sMr}, s{sMp}, {2<<14:#x}")
        a(f"s_add_u32 s{sMp}, s{sMp}, s{sMEMw}")
        a(f"s_add_u32 s{sMr}, s{sMr}, s{sMEMw}")

    def watch(self):
        a, prof = self.a, self.prof
        sPARTr, sMEMw, sPP, sR0, sR1, sMp, sMr, sTW = self.s
        t0, t1, vPR, vME, vTW, SEL, PR, ACC, PK, vSEN = self.v
        a("s_waitcnt vmcnt(0)")
        a("s_mov_b64 exec, 0xff")
        poll2(a, [f"buffer_load_dword v{t1}, v{vTW}, {WS}, s{sTW} offen sc1"], [t1], t0, gap=56 // Cfg.w_depth, depth=Cfg.w_depth)
        a("s_mov_b64 exec, -1")
        prof.stamp(5)
        if Cfg.r_delay:
            a(f"s_sleep {Cfg.r_delay}")

    def step(self):
        a, prof, loc = self.a, self.prof, self.loc
        sPARTr, sMEMw, sPP, sR0, sR1, sMp, sMr, sTW = self.s
        t0, t1, vPR, vME, vTW, SEL, PR, ACC, PK, vSEN = self.v
        prof.stamp(3)
        L = a.newlabel("rpoll"); F = a.newlabel("rfirst")
        def ld(pg):
            for hf in range(2):
                a(f"buffer_load_dwordx4 {vr(PR+8*pg+4*hf,4)}, v{vPR}, {WS}, s{sR0+pg} offen offset:{256*hf} sc1")
        if Cfg.r_late:
            E = a.newlabel("rearly")
            a(f"s_cmp_lt_u32 s{sWV}, 2")
            a(f"s_cbranch_scc1 {E}")
            a.nop(Cfg.r_late)
            a.label(E)
        ld(0)
        if Cfg.r_split:
            a.nop(Cfg.r_split)
        a(f"s_branch {F}")
        a.label(L)
        a("s_mov_b64 exec, vcc")
        ld(0)
        a.label(F)
        ld(1)
        a("s_mov_b64 exec, -1")
        a(f"s_sub_u32 s{sBUD}, s{sBUD}, 1")
        a(f"s_cbranch_scc1 {a.abort}")
        for i in range(4):
            a(f"s_waitcnt vmcnt({3-i})")
            if i == 1:
                a(f"v_max_u32 v{t0}, v{PR}, v{PR+4}")
            if i == 3:
                a(f"v_max3_u32 v{t0}, v{t0}, v{PR+8}, v{PR+12}")
            c = "0" if i == 0 else vr(ACC, 4)
            a(f"v_mfma_f32_16x16x32_bf16 {vr(ACC,4)}, {vr(PR+4*i,4)}, {vr(SEL+4*(i&1),4)}, {c}")
        a(f"v_cmp_eq_u32 vcc, -1, v{t0}")
        a(f"s_cbranch_vccnz {L}")
        prof.stamp(4)
        a.nop(6)
        a(f"v_cvt_pk_bf16_f32 v{PK}, v{ACC}, v{ACC+1}")
        a(f"v_cvt_pk_bf16_f32 v{PK+1}, v{ACC+2}, v{ACC+3}")
        a(f"v_min_u32 v{PK}, -2, v{PK}")
        a(f"buffer_store_dwordx2 {vr(PK,2)}, v{vME}, {WS}, s{sMp} offen {loc}")
        prof.stamp(6, lite=True)
        if Cfg.r_bar2:
            a("s_barrier")

    def reset(self):
        a = self.a
        sPARTr, sMEMw, sPP, sR0, sR1, sMp, sMr, sTW = self.s
        t0, t1, vPR, vME, vTW, SEL, PR, ACC, PK, vSEN = self.v
        a(f"buffer_store_dwordx2 {vr(vSEN,2)}, v{vME}, {WS}, s{sMr} offen {self.loc}")
```

```python
from gen import *
from gen_r import RDuty
from gen_mp import MemPass

SCL = 128 ** -0.5 * math.log2(math.e)

def role_t(a, mode):
    loc = "" if mode == 0 else "sc1"
    va = VAlloc()
    sQM, sKM, sQX, sKX, sPO, sHL, sA, sBq, sC, sD, sSC, sJW = 72, 73, 74, 75, 76, 77, 78, 79, 80, 81, 82, 84
    a(f"s_sub_u32 s{sJW}, s{sSLOT}, 20")
    a(f"s_and_b32 s{sHL}, s{sJW}, 3")
    a(f"s_lshl_b32 s{sJW}, s{sJW}, 2")
    a(f"s_add_u32 s{sJW}, s{sJW}, s{sWV}")
    a(f"s_lshl_b32 s{sT2}, s{sX}, 2")
    a(f"s_add_u32 s{sT1}, s{sHL}, s{sT2}")
    a(f"s_lshl_b32 s{sQM}, s{sT1}, 13")
    a(f"s_add_u32 s{sQM}, s{sQM}, {PM_OFF:#x}")
    a(f"s_add_u32 s{sKM}, s{sQM}, {32*8192}")
    a(f"s_lshl_b32 s{sQX}, s{sT1}, {XP_SH}")
    a(f"s_add_u32 s{sKX}, s{sQX}, {32<<XP_SH:#x}")
    a(f"s_mov_b32 s{sSC}, {f32bits(SCL):#x}")
    a(f"s_mov_b32 s{sSC+1}, {f32bits(SCL):#x}")
    prof = Prof(a, va)
    R = RDuty(a, va, mode, sJW, 85, prof)
    t0 = va.get(); t1 = va.get(); t2 = va.get(); vtmp = va.get()
    vL16 = va.get(); vMO = va.get(); vMX = va.get(); vO1 = va.get(); vO2 = va.get()
    vSEN = va.get(4, 4)
    KX = va.get(32, 4); Q = va.get(16, 4); D = va.get(12, 4)
    M2 = va.get(48, 4); KM = M2; E = M2 + 16; PK = va.get(6, 4)
    CI = va.get(4, 4)
    vm = va.get(2); vs = va.get(2); vs2 = va.get(); vNEG = va.get(); vLIM = va.get()
    a(f"v_lshlrev_b32 v{vL16}, 4, v0")
    a(f"v_lshrrev_b32 v{t0}, 4, v0")
    a(f"v_lshlrev_b32 v{t0}, 7, v{t0}")
    a(f"v_and_b32 v{t1}, 7, v0")
    a(f"v_lshl_add_u32 v{vMO}, v{t1}, 4, v{t0}")
    a(f"v_bfe_u32 v{t0}, v0, 3, 1")
    a(f"v_lshl_add_u32 v{vMX}, v{t0}, 18, v{vMO}")
    for r in range(4):
        a(f"v_mov_b32 v{vSEN+r}, -1")
    a(f"s_lshl_b32 s{sT0}, s{sX}, 15")
    a(f"s_lshl_b32 s{sT1}, s{sJW}, 10")
    a(f"s_add_u32 s{sT0}, s{sT0}, s{sT1}")
    for ty in range(3):
        a(f"s_add_u32 s{sT1}, s{sT0}, {PM_OFF + ty*32*8192:#x}")
        a(f"buffer_store_dwordx4 {vr(vSEN,4)}, v{vL16}, {WS}, s{sT1} offen {loc}")
    for sl in range(4):
        a(f"s_add_u32 s{sT1}, s{sT0}, {PART_OFF + sl*262144:#x}")
        a(f"buffer_store_dwordx4 {vr(vSEN,4)}, v{vL16}, {WS}, s{sT1} offen sc1")
    a(f"s_add_u32 s{sT1}, s{sT0}, {FLG_OFF:#x}")
    a(f"buffer_store_dwordx4 {vr(vSEN,4)}, v{vL16}, {WS}, s{sT1} offen sc1")
    a(f"s_lshr_b32 s{sT0}, s{sT0}, 3")
    a(f"s_add_u32 s{sT1}, s{sT0}, {TW_OFF:#x}")
    a(f"buffer_store_dword v{vSEN}, v{R.vONE}, {WS}, s{sT1} offen {loc}")
    XW = a.newlabel("t_xw"); JOIN = a.newlabel("t_join")
    a(f"s_cmp_lt_u32 s{sSLOT}, 24")
    a(f"s_cbranch_scc0 {XW}")
    a(f"v_and_b32 v{t0}, 15, v0")
    a(f"v_lshlrev_b32 v{t0}, 4, v{t0}")
    a(f"v_bfe_u32 v{t1}, v0, 4, 1")
    a(f"v_lshl_add_u32 v{t0}, v{t1}, 3, v{t0}")
    a(f"v_lshrrev_b32 v{t1}, 5, v0")
    a(f"v_lshl_add_u32 v{t2}, v{t1}, 8, v{t0}")
    a(f"s_lshl_b32 s{sT0}, s{sHL}, 9")
    a(f"v_add_u32 v{vO1}, s{sT0}, v{t2}")
    a(f"s_lshr_b32 s{sT0}, s{sHL}, 1")
    a(f"s_lshl_b32 s{sT0}, s{sT0}, 9")
    a(f"s_and_b32 s{sT1}, s{sHL}, 1")
    a(f"s_lshl_b32 s{sT1}, s{sT1}, 2")
    a(f"s_add_u32 s{sT0}, s{sT0}, s{sT1}")
    a(f"s_add_u32 s{sT0}, s{sT0}, 2048")
    a(f"v_add_u32 v{vO2}, s{sT0}, v{t0}")
    a(f"v_xor_b32 v{t1}, 1, v{t1}")
    a(f"v_lshl_add_u32 v{vO2}, v{t1}, 28, v{vO2}")
    a(f"v_mov_b32 v{t0}, 0xff800000")
    a(f"v_cmp_gt_u32 vcc, 32, v0")
    a("s_nop 1")
    for r in range(4):
        a(f"v_cndmask_b32 v{CI+r}, 0, v{t0}, vcc")
    a(f"s_lshl_b32 s{sPO}, s{sX}, 14")
    a(f"s_add_u32 s{sPO}, s{sPO}, {PP_OFF:#x}")
    def pp_store(r2, r1, so):
        a(f"buffer_store_dwordx2 {vr(r2,2)}, v{vO1}, {WS}, s{so} offen {loc}")
        a(f"buffer_store_dword v{r1}, v{vO2}, {WS}, s{so} offen {loc}")
        a(f"buffer_store_dword v{r1}, v{vO2}, {WS}, s{so} offen offset:256 {loc}")
    a(f"s_cmp_eq_u32 s{sWV}, 0")
    a(f"s_cbranch_scc0 {JOIN}")
    for sl in range(4):
        a(f"s_add_u32 s{sT0}, s{sPO}, {sl*4096}")
        pp_store(vSEN, vSEN, sT0)
    a(f"s_branch {JOIN}")
    a.label(XW)
    a(f"s_and_b32 s{sT2}, s{sWV}, 1")
    a(f"s_mul_i32 s{sT3}, s{sT2}, 6144")
    a(f"s_lshl_b32 s{sT0}, s{sHL}, 10")
    a(f"s_add_u32 s{sT0}, s{sT0}, s{sT3}")
    a(f"v_add_u32 v{vO1}, s{sT0}, v{vL16}")
    a(f"s_lshr_b32 s{sT0}, s{sHL}, 1")
    a(f"s_lshl_b32 s{sT0}, s{sT0}, 10")
    a(f"s_and_b32 s{sT1}, s{sHL}, 1")
    a(f"s_lshl_b32 s{sT1}, s{sT1}, 3")
    a(f"s_add_u32 s{sT0}, s{sT0}, s{sT1}")
    a(f"s_add_u32 s{sT0}, s{sT0}, s{sT3}")
    a(f"s_add_u32 s{sT0}, s{sT0}, 4096")
    a(f"v_add_u32 v{vO2}, s{sT0}, v{vL16}")
    a(f"s_lshl_b32 s{sT0}, s{sT2}, 4")
    a(f"v_and_b32 v{t0}, 15, v0")
    a(f"v_add_u32 v{t0}, s{sT0}, v{t0}")
    a(f"v_lshrrev_b32 v{t1}, 4, v0")
    a(f"v_lshlrev_b32 v{t1}, 2, v{t1}")
    a(f"v_sub_u32 v{vLIM}, v{t0}, v{t1}")
    a(f"v_mov_b32 v{vNEG}, {f32bits(-1e9 / (128 ** -0.5)):#x}")
    a(f"s_lshl_b32 s{sT2}, s{sT2}, 12")
    a(f"s_add_u32 s{sQX}, s{sQX}, s{sT2}")
    a(f"s_lshl_b32 s{sPO}, s{sX}, 16")
    a(f"s_add_u32 s{sPO}, s{sPO}, {PX_OFF:#x}")
    a(f"s_cmp_lt_u32 s{sWV}, 2")
    a(f"s_cbranch_scc0 {JOIN}")
    for sl in range(4):
        a(f"s_add_u32 s{sT0}, s{sPO}, {sl*16384}")
        a(f"buffer_store_dwordx4 {vr(vSEN,4)}, v{vO1}, {WS}, s{sT0} offen {loc}")
        a(f"buffer_store_dwordx2 {vr(vSEN,2)}, v{vO2}, {WS}, s{sT0} offen {loc}")
    a.label(JOIN)
    a("s_waitcnt vmcnt(0)")
    a("s_barrier")
    signal(a, DBG_H1, 1)
    prof.mark(2)
    a(f"s_sub_u32 s{sT4}, s{sSLOT}, 20")
    MP = MemPass(a, va, mode, sT4, prof, True)
    MP.start_weights()
    MP.setup()
    MP.load_weights()
    prof.mark(7)
    prof.mark(8)
    handshake_wait(a, mode, t0, t1, 8, True)
    R.choose()
    prof.mark(9)

    def ld_m(dst, voff, sbase, ks):
        return f"buffer_load_dwordx4 {vr(dst+4*ks,4)}, v{voff}, {WS}, s{sbase} offen offset:{512*ks} sc1"
    def chk(base):
        return [base + 4 * ks + d for ks in range(4) for d in (0, 2)]
    def prefetch(seg_add, with_q):
        a(f"s_add_u32 s{sT0}, s{sS}, {seg_add}")
        a(f"s_and_b32 s{sT0}, s{sT0}, {XP_MASK}")
        a(f"s_lshl_b32 s{sT0}, s{sT0}, 13")
        a(f"s_add_u32 s{sT1}, s{sT0}, s{sKX}")
        a(f"s_add_u32 s{sT2}, s{sT1}, 4096")
        for t in range(2):
            for ks in range(4):
                a(f"buffer_load_dwordx4 {vr(KX+16*t+4*ks,4)}, v{vL16}, {WS}, s{sT1+t} offen offset:{1024*ks} sc1")
        if with_q:
            a(f"s_add_u32 s{sT0}, s{sT0}, s{sQX}")
            for ks in range(4):
                a(f"buffer_load_dwordx4 {vr(Q+4*ks,4)}, v{vL16}, {WS}, s{sT0} offen offset:{1024*ks} sc1")
    sSH = 29
    def slots():
        a(f"s_and_b32 s{sT0}, s{sS}, 3")
        a(f"s_lshl_b32 s{sT1}, s{sT0}, 11")
        a(f"s_add_u32 s{sA}, s{sT1}, s{sQM}")
        a(f"s_add_u32 s{sBq}, s{sT1}, s{sKM}")
        a(f"s_lshl_b32 s{sC}, s{sT0}, s{sSH}")
        a(f"s_xor_b32 s{sT0}, s{sT0}, 2")
        a(f"s_lshl_b32 s{sD}, s{sT0}, s{sSH}")
        a(f"s_add_u32 s{sC}, s{sC}, s{sPO}")
        a(f"s_add_u32 s{sD}, s{sD}, s{sPO}")
    def softmax(vals, nx):
        n = len(vals)
        a(f"v_max3_f32 v{vm}, v{vals[0]}, v{vals[1]}, v{vals[2]}")
        i = 3
        while i < n:
            if i + 1 < n:
                a(f"v_max3_f32 v{vm}, v{vm}, v{vals[i]}, v{vals[i+1]}"); i += 2
            else:
                a(f"v_max_f32 v{vm}, v{vm}, v{vals[i]}"); i += 1
        if n == 6:
            a("s_nop 1")
            a(f"v_max_f32_dpp v{vm}, v{vm}, v{vm} row_ror:8 row_mask:0xf bank_mask:0xf")
        xlane_gg(a, "v_max_f32", vm, t0)
        a(f"v_mul_f32 v{vm}, s{sSC}, v{vm}")
        for i in range(0, n, 2):
            a(f"v_pk_fma_f32 {vr(E+i,2)}, {vr(vals[i],2)}, s[{sSC}:{sSC+1}], {vr(vm,2)} op_sel_hi:[1,1,0] neg_lo:[0,0,1] neg_hi:[0,0,1]")
        for i in range(n):
            a(f"v_exp_f32 v{E+i}, v{E+i}")
        a(f"v_add_f32 v{vs}, v{E}, v{E+1}")
        for i in range(2, nx):
            a(f"v_add_f32 v{vs}, v{vs}, v{E+i}")
        if nx < n:
            a(f"v_add_f32 v{vs2}, v{E+nx}, v{E+nx+1}")
            for i in range(nx + 2, n):
                a(f"v_add_f32 v{vs2}, v{vs2}, v{E+i}")
            a(f"v_fma_f32 v{vs}, v{vs2}, 0.5, v{vs}")
        if n == 6:
            a("s_nop 1")
            a(f"v_add_f32_dpp v{vs}, v{vs}, v{vs} row_ror:8 row_mask:0xf bank_mask:0xf")
        xlane_gg(a, "v_add_f32", vs, t0)
        a(f"v_rcp_f32 v{vs}, v{vs}")
        a("s_nop 0")
        for i in range(0, n, 2):
            a(f"v_pk_mul_f32 {vr(E+i,2)}, {vr(E+i,2)}, {vr(vs,2)} op_sel_hi:[1,0]")
        for i in range(n // 2):
            a(f"v_cvt_pk_bf16_f32 v{PK+i}, v{E+2*i}, abs(v{E+2*i+1})")
    sKD, sLAST = 93, 28
    a(f"s_cmp_lt_u32 s{sSLOT}, 24")
    a(f"s_cselect_b32 s{sT0}, 1, 2")
    a(f"s_cselect_b32 s{sKD}, 0, 1")
    a(f"s_cselect_b32 s{sLAST}, 63, 64")
    a(f"s_cselect_b32 s{sSH}, 12, 14")
    a(f"s_cmp_lt_u32 s{sWV}, s{sT0}")
    a(f"s_cselect_b32 s{sKD}, s{sKD}, 2")
    a(f"s_cmp_eq_u32 s{sWV}, 3")
    a(f"s_cselect_b32 s{sKD}, 3, s{sKD}")
    QM = E
    a(f"v_lshrrev_b32 v{t2}, 4, v0")
    a(f"v_lshlrev_b32 v{t2}, 9, v{t2}")
    def xpoll(sl):
        poll(a, [ld_m(KM, vMO, sBq, ks) for ks in range(4)] + [f"buffer_load_dword v{QM}, v{t2}, {WS}, s{sA} offen sc1"],
             chk(KM) + [QM], vtmp, sleep=sl)
    LOOP = a.newlabel("t_loop"); K1 = a.newlabel("t_k1"); K2 = a.newlabel("t_k2"); K3 = a.newlabel("t_k3"); JN = a.newlabel("t_jn"); END = a.newlabel("t_end")
    GO = a.newlabel("t_go"); PX0 = a.newlabel("t_px0")
    a(f"s_mov_b32 s{sS}, -1")
    slots()
    a(f"s_cmp_ge_u32 s{sKD}, 2")
    a(f"s_cbranch_scc1 {GO}")
    xpoll(4)
    a(f"s_cmp_eq_u32 s{sKD}, 1")
    a(f"s_cbranch_scc1 {PX0}")
    prefetch(1, False)
    a(f"s_branch {GO}")
    a.label(PX0)
    prefetch(1, True)
    a.label(GO)
    a(f"s_mov_b32 s{sS}, 0")
    a.label(LOOP)
    def shadow():
        slots()
        R.setup()
    MP.gather(D, shadow)
    MP.compute(D, M2, (1,))
    prof.stamp(0, lite=True)
    a(f"s_cmp_lg_u32 s{sKD}, 0")
    a(f"s_cbranch_scc1 {K1}")
    for d in range(Cfg.t_depth - 1):
        for ks in range(4):
            a(ld_m(Q, vMX, sA, ks))
        a.nop(Cfg.t0_gap)
    ST = [a.newlabel("t0_st") for i in range(4)]
    RT = [a.newlabel("t0_rt") for i in range(4)]
    def check(ks):
        a(f"s_waitcnt vmcnt({4*Cfg.t_depth-1-ks})")
        a(f"v_max_u32 v{vtmp}, v{Q+4*ks}, v{Q+4*ks+2}")
        a(f"v_cmp_eq_u32 vcc, -1, v{vtmp}")
    a(f"s_branch {RT[0]}")
    for i in (3, 2, 1, 0):
        a.label(RT[i])
        for ks in range(4):
            a(ld_m(Q, vMX, sA, ks))
        a(f"s_sub_u32 s{sBUD}, s{sBUD}, 1")
        a(f"s_cbranch_scc1 {a.abort}")
        check(i)
        if i:
            a(f"s_cbranch_vccnz {RT[i]}")
            a(f"s_branch {ST[i]}")
    for ks in range(4):
        a(f"s_cbranch_vccnz {RT[ks]}")
        a.label(ST[ks])
        for t in range(3):
            src = KX + 16 * t + 4 * ks if t < 2 else Q + 4 * ks
            c = (vr(CI, 4) if t == 2 else "0") if ks == 0 else vr(D + 4 * t, 4)
            a(f"v_mfma_f32_16x16x32_bf16 {vr(D+4*t,4)}, {vr(src,4)}, {vr(Q+4*ks,4)}, {c}")
            if t == 0 and ks < 3:
                check(ks + 1)
    prof.stamp(1)
    a.nop(6)
    for t in range(3):
        for r in range(2):
            a(f"v_mov_b32_dpp v{D+4*t+r}, v{D+4*t+2+r} row_ror:8 row_mask:0xf bank_mask:0xc")
    softmax([D, D + 1, D + 4, D + 5, D + 8, D + 9], 6)
    pp_store(PK, PK + 2, sC)
    prof.stamp(2, lite=True)
    pp_store(vSEN, vSEN, sD)
    prefetch(1, False)
    a(f"s_branch {JN}")
    a.label(K1)
    a(f"s_cmp_lg_u32 s{sKD}, 1")
    a(f"s_cbranch_scc1 {K2}")
    for ks in range(4):
        for t in range(2):
            c = "0" if ks == 0 else vr(D + 4 * t, 4)
            a(f"v_mfma_f32_16x16x32_bf16 {vr(D+4*t,4)}, {vr(KX+16*t+4*ks,4)}, {vr(Q+4*ks,4)}, {c}")
    xpoll(0)
    prof.stamp(1)
    for ks in range(4):
        c = "0" if ks == 0 else vr(D + 8, 4)
        a(f"v_mfma_f32_16x16x32_bf16 {vr(D+8,4)}, {vr(KM+4*ks,4)}, {vr(Q+4*ks,4)}, {c}")
    prefetch(1, True)
    for t in range(2):
        for r in range(4):
            a(f"v_cmp_le_i32 vcc, {16*t+r}, v{vLIM}")
            a("s_nop 1")
            a(f"v_cndmask_b32 v{D+4*t+r}, v{vNEG}, v{D+4*t+r}, vcc")
    softmax(list(range(D, D + 12)), 8)
    a(f"buffer_store_dwordx4 {vr(PK,4)}, v{vO1}, {WS}, s{sC} offen {loc}")
    a(f"buffer_store_dwordx2 {vr(PK+4,2)}, v{vO2}, {WS}, s{sC} offen {loc}")
    prof.stamp(2, lite=True)
    a(f"buffer_store_dwordx4 {vr(vSEN,4)}, v{vO1}, {WS}, s{sD} offen {loc}")
    a(f"buffer_store_dwordx2 {vr(vSEN,2)}, v{vO2}, {WS}, s{sD} offen {loc}")
    a(f"s_branch {JN}")
    a.label(K2)
    a(f"s_cmp_ge_i32 s{sS}, 63")
    a(f"s_cbranch_scc1 {END}")
    a(f"s_sleep {Cfg.r_idle}")
    MP.finish()
    R.reset()
    a(f"s_cmp_eq_u32 s{sKD}, 2")
    a(f"s_cbranch_scc1 {K3}")
    R.watch()
    a(f"s_branch {K3}")
    a.label(JN)
    a(f"s_cmp_ge_i32 s{sS}, 63")
    a(f"s_cbranch_scc1 {END}")
    MP.finish()
    R.reset()
    a.label(K3)
    a("s_barrier")
    R.step()
    a(f"s_add_u32 s{sS}, s{sS}, 1")
    a(f"s_cmp_lt_i32 s{sS}, s{sLAST}")
    a(f"s_cbranch_scc1 {LOOP}")
    a.label(END)
    prof.dump()
    a("s_endpgm")
```

```python
import sys, os, struct, math

KNAME = "gated_mix__memory_aug_recurrent_mem_tr__spectral_gfnet__prompt_kernel"
MB = 1 << 20

XP_OFF    = 0
XP_SH, XP_MASK = 15, 3
XPART_OFF = 48 * MB
FLG_OFF   = 80 * MB
RT_OFF    = 84 * MB
HT_OFF    = 88 * MB
Z_OFF     = 92 * MB
GATE_OFF  = 96 * MB
PM_OFF    = 98 * MB
PP_OFF    = 99 * MB
PX_OFF    = 100 * MB
PART_OFF  = 102 * MB
MEM_OFF   = 97 * MB
TW_OFF    = 101 * MB
PROF_OFF  = 104 * MB
WS_HALF   = 128 * MB

LDS_BYTES = 163840

def f32bits(x):
    return struct.unpack("<I", struct.pack("<f", x))[0]

class Asm:
    def __init__(self):
        self.lines = []
        self.uid = 0
    def __call__(self, s):
        for ln in s.split("\n"):
            ln = ln.strip()
            if ln:
                self.lines.append(" " + ln)
    def label(self, n):
        self.lines.append(n + ":")
    def newlabel(self, p):
        self.uid += 1
        return f"L_{p}_{self.uid}"
    def nop(self, n):
        while n > 0:
            k = min(n, 16)
            self(f"s_nop {k-1}")
            n -= k
    def text(self):
        return "\n".join(self.lines) + "\n"

def vr(b, n=1):
    return f"v{b}" if n == 1 else f"v[{b}:{b+n-1}]"
def ar(b, n=1):
    return f"a{b}" if n == 1 else f"a[{b}:{b+n-1}]"
def sr(b, n=1):
    return f"s{b}" if n == 1 else f"s[{b}:{b+n-1}]"

S_WS, S_X, S_W, S_DBG, S_OUT, S_WR, S_WI, S_AUX = 4, 8, 12, 16, 20, 24, 28, 32
P_X, P_MEM0, P_WQ, P_WK, P_WV, P_WO, P_WR, P_WI, P_GATE, P_OUT, P_DBG, P_WS = range(36, 60, 2)
sX, sSLOT, sWV, sBUD, sS = 60, 61, 62, 63, 64
sMODE = 101
sT0, sT1, sT2, sT3, sT4, sT5 = 65, 66, 67, 68, 69, 70
WS, XS, WW, DBG = sr(S_WS, 4), sr(S_X, 4), sr(S_W, 4), sr(S_DBG, 4)

DBG_H1 = 4
DBG_CL = 24
DBG_OV = 20
DBG_FB = 8

WFL = ['', 'nt', 'sc1', 'sc0 sc1 nt']
class Cfg:
    wfl = 1
    hfl = 1
    xfl = 0
    ffl = 0
    f_wait = 6
    o_wait = 4
    qk_split = True
    p_pre1 = 4
    exp_half = 0
    p_pre = 2
    tw_early = False
    r_late = 0
    profile = False
    force_fallback = False
    no_f = False
    realtime = False
    lite = False
    r_at = 14
    r2_at = 26
    r_sp = 2
    xpf_sleep = 6
    pp_prime = 3
    no_xpf = False
    no_wpf = True
    no_hpf = False
    hpf_from = 0
    dbgtime = False
    r_split = 30
    st_at = 12
    px_at = 20
    r_delay = 2
    r_gap = 2
    t0_idle = 0
    tx_idle = 0
    tx_gap = 0
    p_idle = 0
    o_idle = 0
    r_idle = 14
    t0_gap = 28
    r_bar2 = False
    x_every = 3
    w_depth = 2
    vm_depth = 2
    pp_depth = 2
    fsm_depth = 2
    t_depth = 2
    t3_sleep = 24
    f_sleep = 40
    pp_lds = True
    pipe_mem = False
    pipe_pp = False
    pipe_part = False
    budget = 1000000

class VAlloc:
    def __init__(self, start=1):
        self.n = start
    def get(self, cnt=1, align=1):
        if cnt > 1 and align == 1:
            align = 2
        self.n = (self.n + align - 1) // align * align
        b = self.n
        self.n += cnt
        assert self.n <= 252, "out of VGPRs"
        return b

def srd(a, s, ptr, nbytes):
    a(f"s_mov_b32 s{s}, s{ptr}")
    a(f"s_mov_b32 s{s+1}, s{ptr+1}")
    a(f"s_mov_b32 s{s+2}, {nbytes:#x}")
    a(f"s_mov_b32 s{s+3}, 0x00020000")

def maxtree(a, regs, tmp):
    regs = list(regs)
    if len(regs) == 1:
        a(f"v_mov_b32 v{tmp}, v{regs[0]}")
        return
    if len(regs) == 2:
        a(f"v_max_u32 v{tmp}, v{regs[0]}, v{regs[1]}")
        return
    a(f"v_max3_u32 v{tmp}, v{regs[0]}, v{regs[1]}, v{regs[2]}")
    i = 3
    while i < len(regs):
        if i + 1 < len(regs):
            a(f"v_max3_u32 v{tmp}, v{tmp}, v{regs[i]}, v{regs[i+1]}")
            i += 2
        else:
            a(f"v_max_u32 v{tmp}, v{tmp}, v{regs[i]}")
            i += 1

def poll(a, loads, regs, tmp, sleep=0):
    L = a.newlabel("poll")
    F = a.newlabel("pfirst")
    a(f"s_branch {F}")
    a.label(L)
    if sleep:
        a(f"s_sleep {sleep}")
    a(f"s_sub_u32 s{sBUD}, s{sBUD}, 1")
    a(f"s_cbranch_scc1 {a.abort}")
    a.label(F)
    for l in loads:
        a(l)
    a("s_waitcnt vmcnt(0)")
    maxtree(a, regs, tmp)
    a(f"v_cmp_eq_u32 vcc, -1, v{tmp}")
    a(f"s_cbranch_vccnz {L}")

def poll2(a, loads, regs, tmp, gap=0, depth=2):
    L = a.newlabel("poll")
    for d in range(depth - 1):
        for l in loads:
            a(l)
        a.nop(gap)
    a.label(L)
    for l in loads:
        a(l)
    a(f"s_sub_u32 s{sBUD}, s{sBUD}, 1")
    a(f"s_cbranch_scc1 {a.abort}")
    a(f"s_waitcnt vmcnt({len(loads) * (depth - 1)})")
    if len(regs) > 1:
        maxtree(a, regs, tmp)
        a(f"v_cmp_eq_u32 vcc, -1, v{tmp}")
    else:
        a(f"v_cmp_eq_u32 vcc, -1, v{regs[0]}")
    a(f"s_cbranch_vccnz {L}")

def signal(a, byte_off, val):
    L = a.newlabel("nosig")
    a(f"s_cmp_eq_u32 s{sWV}, 0")
    a(f"s_cbranch_scc0 {L}")
    a(f"s_add_u32 s{sT0}, s{sMODE}, {byte_off}")
    a(f"s_mov_b32 s{sT1}, {val:#x}")
    a(f"s_atomic_add s{sT1}, s[{P_DBG}:{P_DBG+1}], s{sT0}")
    a("s_waitcnt lgkmcnt(0)")
    a.label(L)

def dbg_time(a, word, inv=False):
    if not Cfg.dbgtime:
        return
    a("s_memrealtime s[98:99]")
    a("s_waitcnt lgkmcnt(0)")
    if inv:
        a("s_not_b32 s98, s98")
    a(f"s_atomic_umax s98, s[{P_DBG}:{P_DBG+1}], {4*word}")
    a("s_waitcnt lgkmcnt(0)")

def wait_counter(a, byte_off, target, vt0, vt1, sleep, split16=False):
    L = a.newlabel("wc")
    D = a.newlabel("wcok")
    a(f"v_mov_b32 v{vt0}, {byte_off}")
    a.label(L)
    a(f"buffer_load_dword v{vt1}, v{vt0}, {DBG}, s{sMODE} offen sc1")
    a("s_waitcnt vmcnt(0)")
    a(f"v_readfirstlane_b32 s{sT0}, v{vt1}")
    a("s_nop 3")
    if split16:
        a(f"s_lshr_b32 s{sT1}, s{sT0}, 16")
        a(f"s_and_b32 s{sT2}, s{sT0}, 0xffff")
        a(f"s_add_u32 s{sT2}, s{sT2}, s{sT1}")
        a(f"s_cmp_ge_u32 s{sT2}, {target}")
    else:
        a(f"s_cmp_ge_u32 s{sT0}, {target}")
    a(f"s_cbranch_scc1 {D}")
    a(f"s_sleep {sleep}")
    a(f"s_sub_u32 s{sBUD}, s{sBUD}, 1")
    a(f"s_cbranch_scc0 {L}")
    a("s_endpgm")
    a.label(D)

def handshake_wait(a, mode, vt0, vt1, sleep, want_class=False):
    L = a.newlabel("hs"); F = a.newlabel("hs1"); C = a.newlabel("hs2")
    a(f"v_lshlrev_b32 v{vt0}, 2, v0")
    a(f"s_lshr_b32 s{sT1}, s{sMODE}, 2")
    a(f"s_add_u32 s{sT1}, s{sT1}, {DBG_H1//4}")
    a(f"s_branch {F}")
    a.label(L)
    a(f"s_sleep {sleep}")
    a(f"s_sub_u32 s{sBUD}, s{sBUD}, 1")
    a(f"s_cbranch_scc1 {a.abort}")
    a.label(F)
    a(f"buffer_load_dword v{vt1}, v{vt0}, {DBG}, 0 offen sc1")
    a("s_waitcnt vmcnt(0)")
    a(f"v_readlane_b32 s{sT0}, v{vt1}, s{sT1}")
    a(f"s_cmp_lg_u32 s{sMODE}, 0")
    a(f"s_cbranch_scc1 {C}")
    if Cfg.force_fallback:
        a("s_branch L_fallback")
    a(f"v_readlane_b32 s{sT2}, v{vt1}, {DBG_OV//4}")
    a(f"v_cmp_lt_u32 s[94:95], 32, v{vt1}")
    a(f"v_cmp_eq_u32 s[96:97], 32, v{vt1}")
    a("s_mov_b32 vcc_lo, 0x01010101")
    a("s_mov_b32 vcc_hi, 0x01010101")
    a(f"s_cmp_lg_u32 s{sT2}, 0")
    a("s_cbranch_scc1 L_fallback")
    a("s_and_b64 s[94:95], s[94:95], vcc")
    a("s_cbranch_scc1 L_fallback")
    a("s_and_b64 s[96:97], s[96:97], vcc")
    a("s_cmp_eq_u64 s[96:97], vcc")
    a(f"s_cbranch_scc0 {L}")
    a.label(C)
    a(f"s_cmp_ge_u32 s{sT0}, 64")
    a(f"s_cbranch_scc0 {L}")
    if want_class:
        a(f"s_lshl_b32 s{sT2}, s{sX}, 3")
        a(f"s_add_u32 s{sT2}, s{sT2}, {DBG_CL//4}")
        a(f"s_lshr_b32 s{sT0}, s{sMODE}, 7")
        a(f"s_add_u32 s{sT2}, s{sT2}, s{sT0}")
        a(f"v_readlane_b32 s{sT0}, v{vt1}, s{sT2}")
        a("s_nop 3")
        a(f"s_cmp_eq_u32 s{sT0}, 0")
        a(f"s_cbranch_scc1 {L}")

def helper_prefetch(a, sIDX, t0, t1):
    if Cfg.no_hpf:
        return
    a(f"s_lshr_b32 s{sT0}, s{sIDX}, 2")
    a(f"s_cmp_eq_u32 s{sT0}, 0")
    a(f"s_cselect_b64 s[94:95], s[{P_WQ}:{P_WQ+1}], s[{P_WK}:{P_WK+1}]")
    a(f"s_cmp_eq_u32 s{sT0}, 2")
    a(f"s_cselect_b64 s[94:95], s[{P_WV}:{P_WV+1}], s[94:95]")
    a(f"s_and_b32 s{sT0}, s{sIDX}, 3")
    a(f"s_lshl_b32 s{sT0}, s{sT0}, 2")
    a(f"s_add_u32 s{sT0}, s{sT0}, s{sWV}")
    a(f"s_lshl_b32 s{sT0}, s{sT0}, 16")
    a(f"s_lshl_b32 s{sT1}, s{sX}, 10")
    a(f"s_add_u32 s{sT0}, s{sT0}, s{sT1}")
    a(f"v_lshrrev_b32 v{t0}, 3, v0")
    a(f"v_lshlrev_b32 v{t0}, 13, v{t0}")
    a(f"v_and_b32 v{t1}, 7, v0")
    a(f"v_lshl_add_u32 v{t0}, v{t1}, 7, v{t0}")
    a(f"v_add_u32 v{t0}, s{sT0}, v{t0}")
    for k in range(Cfg.hpf_from, 8):
        a(f"v_add_u32 v{t1}, {k*MB:#x}, v{t0}")
        a(f"global_load_dword v{252+(k&3)}, v{t1}, s[94:95] {WFL[Cfg.hfl]}")

class Prof:
    def __init__(self, a, va):
        self.a = a
        if Cfg.profile:
            self.vo = va.get()
            self.vd = va.get(8)
            a(f"s_lshl_b32 s{sT0}, s{sX}, 5")
            a(f"s_add_u32 s{sT0}, s{sT0}, s{sSLOT}")
            a(f"s_lshl_b32 s{sT0}, s{sT0}, 2")
            a(f"s_add_u32 s{sT0}, s{sT0}, s{sWV}")
            a(f"s_lshl_b32 s{sT0}, s{sT0}, 11")
            a(f"s_add_u32 s{sT0}, s{sT0}, {PROF_OFF:#x}")
            a(f"v_lshlrev_b32 v{self.vo}, 2, v0")
            a(f"v_add_u32 v{self.vo}, s{sT0}, v{self.vo}")
            for k in range(8):
                a(f"v_mov_b32 v{self.vd+k}, 0")
            a(f"v_writelane_b32 v{self.vd+7}, s3, 0")
            self.mark(1)
    def stamp(self, k, cyc=False, keep_m0=False, lite=False):
        if not Cfg.profile or (Cfg.lite and not lite):
            return
        a = self.a
        if keep_m0:
            a("s_mov_b32 s100, m0")
            a("s_cselect_b32 s97, 1, 0")
            self.stamp(k, cyc)
            a("s_mov_b32 m0, s100")
            a("s_cmp_eq_u32 s97, 1")
            return
        a("s_memrealtime s[98:99]" if (Cfg.realtime and not cyc) else "s_memtime s[98:99]")
        a(f"s_and_b32 m0, s{sS}, 63")
        a("s_waitcnt lgkmcnt(0)")
        a(f"v_writelane_b32 v{self.vd+k}, s98, m0")
    def mark(self, lane):
        if not (Cfg.profile and Cfg.lite):
            return
        a = self.a
        a("s_memrealtime s[98:99]")
        a("s_waitcnt lgkmcnt(0)")
        a(f"v_writelane_b32 v{self.vd+7}, s98, {lane}")
    def dump(self):
        if not Cfg.profile:
            return
        a = self.a
        for k in range(8):
            a(f"buffer_store_dword v{self.vd+k}, v{self.vo}, {WS}, 0 offen offset:{256*k}")

def weight_dma(a, vW, chunk, buf, stride, sB):
    for i in range(16):
        a(f"s_add_u32 m0, s{sB+1}, {buf*65536 + i*1024}")
        a(f"s_add_u32 s{sT0}, s{sB}, {(chunk*256 + 4*i)*stride}")
        a(f"buffer_load_dwordx4 v{vW}, {WW}, s{sT0} offen {WFL[Cfg.wfl]} lds")

def weight_tr(a, vTR, group, tiles=(0, 1)):
    for ks in range(8):
        for t in tiles:
            for q in range(2):
                d = group * 64 + (ks >> 1) * 16 + t * 8 + (ks & 1) * 4 + 2 * q
                a(f"ds_read_b64_tr_b16 {ar(d,2)}, v{vTR[q]} offset:{ks*8192 + 8*t}")
    a("s_waitcnt lgkmcnt(0)")

def weight_addr_setup(a, va, stride, sB, swap):
    vW = va.get(); vTR = va.get(4); t0 = va.get(); t1 = va.get()
    a(f"v_lshrrev_b32 v{t0}, 4, v0")
    a(f"v_lshlrev_b32 v{t1}, 2, v{t0}")
    a(f"v_and_b32 v{vW}, 15, v0")
    a(f"v_xor_b32 v{vW}, v{vW}, v{t1}")
    a(f"v_lshlrev_b32 v{vW}, 4, v{vW}")
    a(f"v_mul_u32_u24 v{t0}, {stride}, v{t0}")
    a(f"v_add_u32 v{vW}, v{vW}, v{t0}")
    if swap:
        a(f"v_bfe_u32 v{t0}, v0, 3, 1")
        a(f"v_bfe_u32 v{t1}, v0, 2, 1")
        a(f"v_lshl_add_u32 v{t0}, v{t0}, 2, v{t1}")
    else:
        a(f"v_bfe_u32 v{t0}, v0, 2, 2")
    if swap:
        a(f"v_bfe_u32 v{t1}, v0, 1, 1")
        a(f"v_and_b32 v{vTR}, 1, v0")
        a(f"v_lshl_add_u32 v{t1}, v{vTR}, 1, v{t1}")
    else:
        a(f"v_and_b32 v{t1}, 3, v0")
    a(f"s_lshl_b32 s{sT0}, s{sWV}, 2")
    a(f"v_add_u32 v{t1}, s{sT0}, v{t1}")
    a(f"v_and_b32 v{vTR}, 3, v{t0}")
    a(f"v_lshlrev_b32 v{vTR}, 2, v{vTR}")
    a(f"v_xor_b32 v{t1}, v{t1}, v{vTR}")
    a(f"v_lshlrev_b32 v{t1}, 4, v{t1}")
    a(f"v_lshrrev_b32 v{vTR}, 4, v0")
    a(f"v_lshlrev_b32 v{vTR}, 3, v{vTR}")
    a(f"v_add_u32 v{vTR}, v{vTR}, v{t0}")
    a(f"v_lshlrev_b32 v{vTR}, 8, v{vTR}")
    a(f"v_add_u32 v{vTR}, v{vTR}, v{t1}")
    if swap:
        a(f"v_xor_b32 v{vTR+1}, 128, v{vTR}")
        a(f"v_add_u32 v{vTR+1}, 512, v{vTR+1}")
    else:
        a(f"v_add_u32 v{vTR+1}, 1024, v{vTR}")
    a(f"v_add_u32 v{vTR+2}, 0x10000, v{vTR}")
    a(f"v_add_u32 v{vTR+3}, 0x10000, v{vTR+1}")
    a(f"s_mul_i32 s{sB}, s{sWV}, {64*stride}")
    a(f"s_lshl_b32 s{sB+1}, s{sWV}, 14")
    return vW, ((vTR, vTR + 1), (vTR + 2, vTR + 3)), t0, t1

def idx_setup(a, vIDX, t0):
    a(f"v_and_b32 v{t0}, 8, v0")
    a(f"v_cmp_ne_u32 vcc, 0, v{t0}")
    a(f"v_mov_b32 v{vIDX}, 0x44444444")
    a(f"v_mov_b32 v{t0}, 0xeeeeeeee")
    a("s_nop 1")
    a(f"v_cndmask_b32 v{vIDX}, v{vIDX}, v{t0}, vcc")

def halfsum(a, acc0, acc1, out):
    for r in range(4):
        a(f"v_permlane32_swap_b32 v{acc0+r}, v{acc1+r}")
    for r in range(4):
        a(f"v_add_f32 v{acc0+r}, v{acc0+r}, v{acc1+r}")
    a(f"v_cvt_pk_bf16_f32 v{out}, v{acc0}, v{acc0+1}")
    a(f"v_cvt_pk_bf16_f32 v{out+1}, v{acc0+2}, v{acc0+3}")

def xlane_gg(a, op, v, t):
    for sw in ("v_permlane16_swap_b32", "v_permlane32_swap_b32"):
        a(f"v_mov_b32 v{t}, v{v}")
        a("s_nop 1")
        a(f"{sw} v{v}, v{t}")
        a(f"{op} v{v}, v{v}, v{t}")

def dispatch(a, mode):
    from gen_f import role_f
    from gen_proj import role_proj
    from gen_t import role_t
    from gen_or import role_or
    LP, LO, LT, LF = (f"L_role_{n}_{mode}" for n in "potf")
    LF = "L_role_f"
    a(f"s_mov_b32 s{sMODE}, {128*mode}")
    a(f"s_cmp_lt_u32 s{sSLOT}, 12")
    a(f"s_cbranch_scc1 {LP}")
    a(f"s_cmp_lt_u32 s{sSLOT}, 20")
    a(f"s_cbranch_scc1 {LO}")
    a(f"s_cmp_lt_u32 s{sSLOT}, 28")
    a(f"s_cbranch_scc1 {LT}")
    a(f"s_branch {LF}")
    for lab, fn in ((LP, role_proj), (LO, role_or), (LT, role_t), (LF, role_f)):
        if fn is role_f and mode == 0:
            continue
        a.abort = lab + "_abort"
        a.label(a.abort)
        a("s_endpgm")
        a.lines.append(".p2align 6")
        a.label(lab)
        fn(a, mode)

def build():
    a = Asm()
    a("s_cmp_ge_u32 s2, 256")
    a("s_cbranch_scc0 L_start")
    a("s_endpgm")
    a.label("L_start")
    for i, off in enumerate((0, 16, 32, 64, 80, 96)):
        a(f"s_load_dwordx4 s[{36+4*i}:{39+4*i}], s[0:1], {off}")
    if Cfg.profile:
        a("s_memrealtime s[98:99]")
        a("s_waitcnt lgkmcnt(0)")
        a("s_mov_b32 s3, s98")
    a(f"s_getreg_b32 s{sX}, hwreg(HW_REG_XCC_ID)")
    a(f"s_and_b32 s{sX}, s{sX}, 15")
    a("v_lshrrev_b32 v1, 6, v0")
    a("v_and_b32 v0, 63, v0")
    a(f"v_readfirstlane_b32 s{sWV}, v1")
    a(f"s_mov_b32 s{sBUD}, {Cfg.budget}")
    a(f"s_mov_b32 s{sS}, -2")
    a(f"s_mov_b32 s{sMODE}, 0")
    a("s_waitcnt lgkmcnt(0)")
    srd(a, S_WS, P_WS, WS_HALF)
    srd(a, S_X, P_X, 4 * MB)
    srd(a, S_DBG, P_DBG, 256)
    a(f"s_and_b32 s{sT2}, s{sX}, 7")
    a("v_mov_b32 v3, 0")
    a(f"s_cmp_eq_u32 s{sWV}, 0")
    a("s_cbranch_scc0 L_notk0")
    a(f"s_lshl_b32 s{sT0}, s{sT2}, 5")
    a(f"s_lshr_b32 s{sSLOT}, s{sX}, 3")
    a(f"s_xor_b32 s{sSLOT}, s{sSLOT}, 1")
    a(f"s_atomic_add s{sSLOT}, s[{P_DBG}:{P_DBG+1}], s{sT0} glc")
    a.label("L_notk0")
    if not Cfg.no_wpf:
        a("s_lshr_b32 s72, s2, 3")
        a("s_lshl_b32 s72, s72, 2")
        a(f"s_add_u32 s72, s72, s{sWV}")
        a("v_lshrrev_b32 v4, 3, v0")
        a("v_lshlrev_b32 v4, 13, v4")
        a("v_and_b32 v5, 7, v0")
        a("v_lshl_add_u32 v4, v5, 7, v4")
        a("s_lshl_b32 s73, s72, 16")
        a(f"s_lshl_b32 s74, s{sT2}, 10")
        a("s_add_u32 s73, s73, s74")
        a("v_add_u32 v4, s73, v4")
        a("s_lshl_b32 s73, s72, 13")
        a(f"s_lshl_b32 s74, s{sT2}, 20")
        a("s_add_u32 s73, s73, s74")
        a("v_lshlrev_b32 v5, 7, v0")
        a("v_add_u32 v5, s73, v5")
        for k, ptr in enumerate((P_WQ, P_WK, P_WV)):
            a(f"global_load_dword v{252+k}, v4, s[{ptr}:{ptr+1}]")
        a(f"global_load_dword v255, v5, s[{P_WO}:{P_WO+1}]")
    a(f"s_cmp_eq_u32 s{sWV}, 0")
    a("s_cbranch_scc0 L_noticket")
    a("s_waitcnt lgkmcnt(0)")
    a(f"v_mov_b32 v2, s{sSLOT}")
    a("ds_write_b32 v3, v2")
    a("s_waitcnt lgkmcnt(0)")
    a.label("L_noticket")
    a("s_barrier")
    a("ds_read_b32 v2, v3")
    a("s_waitcnt lgkmcnt(0)")
    a(f"v_readfirstlane_b32 s{sSLOT}, v2")
    a("s_barrier")
    a(f"s_cmp_ge_u32 s{sX}, 8")
    a("s_cbranch_scc1 L_overflow")
    a(f"s_cmp_ge_u32 s{sSLOT}, 32")
    a("s_cbranch_scc1 L_overflow")
    a("s_branch L_mode0")
    a.label("L_overflow")
    signal(a, DBG_OV, 1)
    a.label("L_fallback")
    a("s_mov_b64 exec, -1")
    a("s_waitcnt vmcnt(0) lgkmcnt(0)")
    a("s_barrier")
    a(f"s_lshr_b32 s{sX}, s2, 5")
    a(f"s_and_b32 s{sSLOT}, s2, 31")
    a(f"s_add_u32 s{S_WS}, s{P_WS}, {WS_HALF:#x}")
    a(f"s_addc_u32 s{S_WS+1}, s{P_WS+1}, 0")
    a(f"s_mov_b32 s{sS}, -2")
    dispatch(a, 1)
    a.lines.append(".p2align 6")
    a.label("L_mode0")
    dispatch(a, 0)
    return a.text()

HEADER = open(os.path.join(os.path.dirname(os.path.abspath(__file__)), "header.txt")).read()

def full_text():
    body = build()
    return (HEADER + f"; @launch grid=(256,1,1) block=(256,1,1) lds={LDS_BYTES}\n"
            + '.amdgcn_target "amdgcn-amd-amdhsa--gfx950"\n.text\n'
            + f".globl {KNAME}\n.p2align 8\n.type {KNAME},@function\n{KNAME}:\n"
            + body
            + '.section .rodata,"a"\n.p2align 6\n'
            + f".amdhsa_kernel {KNAME}\n"
            + "  .amdhsa_next_free_vgpr 512\n  .amdhsa_next_free_sgpr 102\n  .amdhsa_accum_offset 256\n"
            + "  .amdhsa_group_segment_fixed_size 0\n  .amdhsa_kernarg_size 112\n  .amdhsa_user_sgpr_count 2\n"
            + "  .amdhsa_user_sgpr_kernarg_segment_ptr 1\n  .amdhsa_system_sgpr_workgroup_id_x 1\n"
            + "  .amdhsa_float_denorm_mode_32 3\n"
            + ".end_amdhsa_kernel\n")

if __name__ == "__main__":
    import gen as G
    out = sys.argv[1]
    for o in sys.argv[2:]:
        if "=" in o:
            k, v = o.split("="); setattr(G.Cfg, k, int(v))
        else:
            setattr(G.Cfg, o, True)
    open(out, "w").write(G.full_text())
```

```python
from gen import *

LOG2E = math.log2(math.e)

def role_f(a, mode):
    va = VAlloc()
    t0 = va.get(); t1 = va.get(); t2 = va.get(); t3 = va.get()
    sFI, sE, sDB, sK, sLB = 72, 73, 74, 75, 76
    sROW = 78
    sO0, sO1, sO2, sO3 = 86, 87, 88, 89
    sMA, sMB = 90, 92
    a(f"s_sub_u32 s{sFI}, s{sSLOT}, 28")
    prof = Prof(a, va)
    dbg_time(a, 9, True)
    NOP = a.newlabel("f_noprobe"); PRD = a.newlabel("f_probed")
    a(f"v_min_u32 v{t2}, 1, v0")
    a(f"v_lshlrev_b32 v{t2}, 28, v{t2}")
    a(f"s_cmp_eq_u32 s{sFI}, 0")
    a(f"s_cbranch_scc0 {NOP}")
    a(f"s_cmp_eq_u32 s{sWV}, 0")
    a(f"s_cbranch_scc0 {PRD}")
    a(f"s_lshl_b32 s{sT0}, s{sX}, 7")
    a(f"s_add_u32 s{sO0}, s{sT0}, {PART_OFF + MB:#x}")
    a(f"s_add_u32 s{sO1}, s{sO0}, 8192")
    a(f"s_mov_b32 s{sO2}, -1")
    a(f"s_mov_b32 s{sO3}, -1")
    a(f"s_mov_b32 s{sK}, 5")
    PL = a.newlabel("f_probe")
    a.label(PL)
    for k in range(2):
        a(f"buffer_store_dword v{t2}, v{t2}, {WS}, s{sO0+k} offen sc1")
    a("s_waitcnt vmcnt(0)")
    for k in range(2):
        a("s_memtime s[94:95]")
        a("s_waitcnt lgkmcnt(0)")
        a(f"buffer_load_dword v{t0}, v{t2}, {WS}, s{sO0+k} offen sc1")
        a("s_waitcnt vmcnt(0)")
        a("s_memtime s[96:97]")
        a("s_waitcnt lgkmcnt(0)")
        a("s_sub_u32 s96, s96, s94")
        a(f"s_min_u32 s{sO2+k}, s{sO2+k}, s96")
    a(f"s_sub_u32 s{sK}, s{sK}, 1")
    a(f"s_cmp_lg_u32 s{sK}, 0")
    a(f"s_cbranch_scc1 {PL}")
    a(f"s_cmp_lt_u32 s{sO3}, s{sO2}")
    a(f"s_cselect_b32 s{sT1}, 2, 1")
    a(f"s_lshl_b32 s{sT0}, s{sX}, 5")
    a(f"s_lshr_b32 s{sT2}, s{sMODE}, 5")
    a(f"s_add_u32 s{sT0}, s{sT0}, s{sT2}")
    a(f"s_add_u32 s{sT0}, s{sT0}, {DBG_CL}")
    a(f"s_atomic_add s{sT1}, s[{P_DBG}:{P_DBG+1}], s{sT0}")
    a("s_waitcnt lgkmcnt(0)")
    a.label(PRD)
    a("s_barrier")
    GO = a.newlabel("f_go")
    a(f"s_branch {GO}")
    a.label(NOP)
    a(f"s_sub_u32 s{sT3}, s{sSLOT}, 20")
    helper_prefetch(a, sT3, t0, t1)
    for i in range(Cfg.f_wait):
        a("s_sleep 32")
    a.label(GO)
    if Cfg.no_f:
        a("s_sleep 100")
        handshake_wait(a, mode, t0, t1, 40)
        a("s_endpgm")
        return
    OUTS, WRS, WIS, AUX = sr(S_OUT, 4), sr(S_WR, 4), sr(S_WI, 4), sr(S_AUX, 4)
    srd(a, S_OUT, P_OUT, 4 * MB)
    srd(a, S_WR, P_WR, 2048 * 1026)
    srd(a, S_WI, P_WI, 2048 * 1026)
    srd(a, S_AUX, P_GATE, 2048)
    vC = va.get(); vHH = va.get(); vPERM = va.get()
    vDM = va.get(2); vRB = va.get(4); vINC = va.get(2); vOA = va.get(); vLW = va.get(); vLR = va.get()
    vW1 = va.get(); vW2 = va.get(); vW20 = va.get(); Y = va.get(4)
    TH = va.get(16, 4); CS = va.get(16, 4); GN = va.get(16, 4); FR = va.get(32, 4)
    BIG = va.get(128, 4)
    EX = TH
    a(f"v_and_b32 v{vC}, 31, v0")
    a(f"v_lshrrev_b32 v{vHH}, 5, v0")
    a(f"v_bfe_u32 v{t0}, v0, 2, 1")
    a(f"v_bfe_u32 v{t1}, v0, 3, 2")
    a(f"v_lshlrev_b32 v{t0}, 4, v{t0}")
    a(f"v_lshl_add_u32 v{t0}, v{t1}, 2, v{t0}")
    a(f"v_and_b32 v{t1}, 3, v0")
    a(f"v_add_u32 v{vPERM}, v{t0}, v{t1}")

    a(f"s_lshl_b32 s{sT0}, s{sX}, 2")
    a(f"s_add_u32 s{sT0}, s{sT0}, s{sFI}")
    a(f"s_lshl_b32 s{sT0}, s{sT0}, 2")
    a(f"s_add_u32 s{sT0}, s{sT0}, s{sWV}")
    a(f"s_lshl_b32 s{sT1}, s{sT0}, 15")
    a(f"v_lshlrev_b32 v{t0}, 4, v0")
    for k in range(2):
        a(f"buffer_load_dwordx4 {vr(EX+4*k,4)}, v{t0}, {AUX}, 0 offen offset:{1024*k}")
    for r in range(16):
        for k in range(2):
            a(f"buffer_load_dwordx4 {vr(BIG+8*r+4*k,4)}, v{t0}, {XS}, s{sT1} offen offset:{1024*k} {WFL[Cfg.ffl]}")
        a(f"s_add_u32 s{sT1}, s{sT1}, 2048")
    a("s_waitcnt vmcnt(0)")
    G = EX + 8
    for r in range(16):
        a(f"v_mov_b32 v{G+r}, 0")
    for k in range(8):
        for r in range(16):
            a(f"v_dot2_f32_bf16 v{G+r}, v{BIG+8*r+k}, v{EX+k}, v{G+r}")
    a.nop(3)
    for sh in (8, 4, 2, 1):
        for r in range(16):
            a(f"v_add_f32_dpp v{G+r}, v{G+r}, v{G+r} row_ror:{sh} row_mask:0xf bank_mask:0xf")
    a(f"v_mov_b32 v{t2}, v{G}")
    a(f"v_and_b32 v{t0}, 15, v0")
    for r in range(1, 16):
        a(f"v_cmp_eq_u32 vcc, {r}, v{t0}")
        a("s_nop 1")
        a(f"v_cndmask_b32 v{t2}, v{t2}, v{G+r}, vcc")
    xlane_gg(a, "v_add_f32", t2, t1)
    a(f"v_mul_f32 v{t2}, {f32bits(-LOG2E):#x}, v{t2}")
    a(f"v_exp_f32 v{t2}, v{t2}")
    a("s_nop 0")
    a(f"v_add_f32 v{t2}, 1.0, v{t2}")
    a(f"v_rcp_f32 v{t2}, v{t2}")
    a(f"v_lshrrev_b32 v{t1}, 4, v0")
    a(f"v_min_u32 v{t1}, 1, v{t1}")
    a(f"v_lshlrev_b32 v{t1}, 28, v{t1}")
    a(f"v_lshl_add_u32 v{t1}, v0, 2, v{t1}")
    a(f"s_lshl_b32 s{sT0}, s{sT0}, 6")
    a(f"s_add_u32 s{sT0}, s{sT0}, {GATE_OFF:#x}")
    a(f"buffer_store_dword v{t2}, v{t1}, {WS}, s{sT0} offen sc1")

    DEPTH = 6
    NFR = 8

    def gemm(stage, half=0):
        fwd = stage in (1, 2)
        gen_is_a = stage in (2, 4)
        N = 1024 if stage in (1, 4) else 2048
        K = 512 if stage == 4 else 1024
        NG = 1 if stage == 4 else 2
        accb = 128 * half
        stride = {1: 2048, 2: 4096, 3: 4096, 4: 2048}[stage]
        src = XS if stage == 1 else WS
        src_off = {1: 0, 2: RT_OFF, 3: HT_OFF, 4: Z_OFF + 1024 * half}[stage]
        fl = WFL[Cfg.ffl] if stage == 1 else "sc1"
        if stage == 1:
            a(f"s_lshr_b32 s{sE}, s{sFI}, 1")
        elif stage == 4:
            a(f"s_mov_b32 s{sE}, {half}")
        else:
            a(f"s_and_b32 s{sE}, s{sX}, 1")
        if stage == 4:
            a(f"s_lshl_b32 s{sT0}, s{sWV}, 7")
            a(f"s_add_u32 s{sT0}, s{sT0}, s{sX}")
            a(f"s_mul_i32 s{sT0}, s{sT0}, {4*stride}")
        elif stage == 1:
            a(f"s_lshl_b32 s{sT0}, s{sX}, 1")
            a(f"s_and_b32 s{sT1}, s{sWV}, 1")
            a(f"s_add_u32 s{sT0}, s{sT0}, s{sT1}")
            a(f"s_lshr_b32 s{sT1}, s{sWV}, 1")
            a(f"s_lshl_b32 s{sT1}, s{sT1}, 4")
            a(f"s_add_u32 s{sT0}, s{sT0}, s{sT1}")
            a(f"s_mul_i32 s{sT0}, s{sT0}, {64*stride}")
        else:
            a(f"s_lshr_b32 s{sDB}, s{sX}, 1")
            a(f"s_lshl_b32 s{sT0}, s{sDB}, 2")
            a(f"s_add_u32 s{sT0}, s{sT0}, s{sWV}")
            a(f"s_mul_i32 s{sT0}, s{sT0}, {64*stride}")
            a(f"s_lshl_b32 s{sT1}, s{sE}, 11")
            a(f"s_add_u32 s{sT0}, s{sT0}, s{sT1}")
        a(f"v_lshrrev_b32 v{t0}, 3, v0")
        if stage in (1, 3):
            a(f"v_lshrrev_b32 v{t1}, 2, v{t0}")
            a(f"v_and_b32 v{t2}, 3, v{t0}")
            a(f"v_lshl_add_u32 v{t1}, v{t1}, 4, v{t2}")
            rows = [32 * (m >> 2) + 4 * (m & 3) for m in range(8)]
        elif stage == 2:
            a(f"v_lshlrev_b32 v{t1}, 1, v{t0}")
            rows = [16 * (m & 3) + (m >> 2) for m in range(8)]
        else:
            a(f"v_lshrrev_b32 v{t1}, 2, v{t0}")
            a(f"v_and_b32 v{t2}, 3, v{t0}")
            a(f"v_lshl_add_u32 v{t1}, v{t1}, 5, v{t2}")
            rows = [256 * (m >> 2) + 64 * (m & 3) for m in range(8)]
        a(f"v_mul_u32_u24 v{t1}, {stride}, v{t1}")
        a(f"v_lshrrev_b32 v{t0}, 1, v{t0}")
        a(f"v_and_b32 v{t2}, 7, v0")
        a(f"v_xor_b32 v{t0}, v{t0}, v{t2}")
        a(f"v_lshl_add_u32 v{vDM}, v{t0}, 4, v{t1}")
        a(f"v_xor_b32 v{vDM+1}, 64, v{vDM}")
        for m in range(8):
            a(f"s_add_u32 s{sROW+m}, s{sT0}, {src_off + rows[m]*stride:#x}")
        a(f"s_lshl_b32 s{sLB}, s{sWV}, 13")
        def dma_pre(m):
            a(f"s_add_u32 m0, s{sLB}, {1024*m}")
        def dma(m):
            if Cfg.exp_f == 1:
                return
            a(f"buffer_load_dwordx4 v{vDM+(m&1)}, {src}, s{sROW+m} offen {fl} lds")
        def dma_adv():
            a(f"v_add_u32 v{vDM}, 128, v{vDM}")
            a(f"v_add_u32 v{vDM+1}, 128, v{vDM+1}")
            a(f"s_add_u32 s{sLB}, s{sLB}, 32768")
            a(f"s_and_b32 s{sLB}, s{sLB}, 0x1ffff")
        for st in range(2):
            for m in range(8):
                dma_pre(m)
                a("s_nop 0")
                dma(m)
            dma_adv()
        a(f"v_bfe_u32 v{t0}, v0, 1, 3")
        a(f"v_xor_b32 v{t0}, v{t0}, v{vHH}")
        a(f"v_lshlrev_b32 v{t0}, 4, v{t0}")
        a(f"v_lshl_add_u32 v{vRB}, v{vC}, 7, v{t0}")
        for ks in range(1, 4):
            a(f"v_xor_b32 v{vRB+ks}, {ks<<5}, v{vRB}")
        a(f"s_mov_b32 s{sT1}, {f32bits(1.0 / N):#x}")
        for u in range(NG):
            if stage == 1:
                a(f"s_and_b32 s{sT0}, s{sFI}, 1")
            else:
                a(f"s_mov_b32 s{sT0}, s{sFI}")
            a(f"s_lshl_b32 s{sT0}, s{sT0}, 2")
            a(f"s_add_u32 s{sT0}, s{sT0}, s{sWV}")
            a(f"s_lshl_b32 s{sT0}, s{sT0}, {4 + NG}")
            a(f"s_add_u32 s{sT0}, s{sT0}, {32*u}")
            a(f"v_add_u32 v{t0}, s{sT0}, v{vPERM if gen_is_a else vC}")
            T = TH + 8 * u; C = CS + 8 * u
            if fwd:
                a(f"v_and_b32 v{t1}, -2, v{t0}")
                a(f"v_add_u32 v{t1}, s{sE}, v{t1}")
                a(f"v_and_b32 v{t2}, 1, v{t0}")
                a(f"v_lshl_add_u32 v{t3}, v{t1}, 1, v{t2}")
                a(f"v_cmp_eq_u32 vcc, 1, v{t3}")
                a(f"v_cvt_f32_u32 v{t2}, v{t2}")
                a(f"v_mul_f32 v{t2}, {f32bits(-0.25):#x}, v{t2}")
                a(f"v_mov_b32 v{t3}, {N//2}")
                a(f"v_cndmask_b32 v{t1}, v{t1}, v{t3}, vcc")
                a(f"v_cndmask_b32 v{t2}, v{t2}, 0, vcc")
                for j in range(8):
                    a(f"v_lshl_add_u32 v{t3}, v{vHH}, 3, {j}")
                    a(f"v_mul_u32_u24 v{t3}, v{t3}, v{t1}")
                    a(f"v_and_b32 v{t3}, {N-1}, v{t3}")
                    a(f"v_cvt_f32_u32 v{t3}, v{t3}")
                    a(f"v_fma_f32 v{T+j}, v{t3}, s{sT1}, v{t2}")
                a(f"v_lshlrev_b32 v{t3}, 4, v{t1}")
            else:
                for j in range(0, 8, 2):
                    a(f"v_lshl_add_u32 v{t3}, v{vHH}, 3, {j}")
                    a(f"v_add_u32 v{t3}, s{sE}, v{t3}")
                    a(f"v_mul_u32_u24 v{t3}, v{t3}, v{t0}")
                    a(f"v_and_b32 v{t3}, {N-1}, v{t3}")
                    a(f"v_cvt_f32_u32 v{t3}, v{t3}")
                    a(f"v_mul_f32 v{T+j}, s{sT1}, v{t3}")
                    a(f"v_add_f32 v{T+j+1}, {f32bits(-0.25):#x}, v{T+j}")
                a(f"v_lshlrev_b32 v{t3}, 4, v{t0}")
            a(f"v_and_b32 v{t3}, {N-1}, v{t3}")
            a(f"v_cvt_f32_u32 v{t3}, v{t3}")
            a(f"v_mul_f32 v{vINC+u}, s{sT1}, v{t3}")
            for j in range(8):
                a(f"v_cos_f32 v{C+j}, v{T+j}")
            if not fwd:
                a(f"v_and_b32 v{t1}, 1, v{t0}")
                a(f"v_cvt_f32_u32 v{t1}, v{t1}")
                a(f"v_fma_f32 v{t1}, v{t1}, -2.0, 1.0")
                a(f"v_add_u32 v{t2}, s{sE}, v{vHH}")
                a(f"v_cmp_eq_u32 vcc, 0, v{t2}")
                a("s_nop 1")
                a(f"v_cndmask_b32 v{C+1}, v{C+1}, v{t1}, vcc")
            for j in range(8):
                a(f"v_add_f32 v{T+j}, v{T+j}, v{vINC+u}")
            for j in range(4):
                a(f"v_cvt_pk_bf16_f32 v{GN+4*u+j}, v{C+2*j}, v{C+2*j+1}")
        for r in range(4):
            a(f"v_mov_b32 v{FR+28+r}, 0")
        a("s_nop 1")
        for tl in range(8 * NG):
            a(f"v_mfma_f32_32x32x16_bf16 {ar(accb+16*tl,16)}, {vr(FR+28,4)}, {vr(FR+28,4)}, 0")
        a("s_waitcnt vmcnt(8)")
        a("s_barrier")
        def rd(f):
            f64 = f % 64
            st, ks, tl = f64 >> 5, (f64 >> 3) & 3, f64 & 7
            a(f"ds_read_b128 {vr(FR+4*(f%NFR),4)}, v{vRB+ks} offset:{st*32768 + tl*4096}")
            if st == 1 and tl == 7:
                a(f"v_xor_b32 v{vRB+ks}, 0x10000, v{vRB+ks}")
        for f in range(DEPTH):
            rd(f)
        a(f"s_mov_b32 s{sK}, {K // 128}")
        L = a.newlabel("f_loop")
        a.label(L)
        for f in range(64):
            ksg, tl = f >> 3, f & 7
            cur = GN + 8 * (ksg & 1); nxt = GN + 8 * ((ksg + 1) & 1)
            fs = f & 31
            dm = fs // 3 if (fs % 3 == 2 and fs // 3 < 8) else None
            if fs == 32 - DEPTH:
                a("s_waitcnt vmcnt(8)")
                a("s_barrier")
            a(f"s_waitcnt lgkmcnt({DEPTH-1})")
            if dm is not None:
                dma_pre(dm)
            d = vr(FR + 4 * (f % NFR), 4)
            for u in range(NG):
                g = vr(cur + 4 * u, 4)
                A, B = (g, d) if gen_is_a else (d, g)
                acc = ar(accb + 128 * u + 16 * tl, 16)
                if Cfg.exp_f == 2:
                    a("s_nop 5")
                    if u == 0:
                        rd(f + DEPTH)
                    if u == NG - 1 and dm is not None:
                        dma(dm)
                    continue
                a(f"v_mfma_f32_32x32x16_bf16 {acc}, {A}, {B}, {acc}")
                if u == 0:
                    rd(f + DEPTH)
                if u == NG - 1 and dm is not None:
                    dma(dm)
                if NG == 2:
                    gap = 2 * tl + u
                    ops = []
                    for uu, start in ((0, 0), (1, 6)):
                        j = gap - start
                        if 0 <= j < 8:
                            ops.append(f"v_cos_f32 v{CS+8*uu+j}, v{TH+8*uu+j}")
                        if 1 <= j < 9:
                            ops.append(f"v_add_f32 v{TH+8*uu+j-1}, v{TH+8*uu+j-1}, v{vINC+uu}")
                        if j in (2, 4, 6, 8):
                            m = j // 2 - 1
                            ops.append(f"v_cvt_pk_bf16_f32 v{nxt+4*uu+m}, v{CS+8*uu+2*m}, v{CS+8*uu+2*m+1}")
                    for o in ops:
                        a(o)
                else:
                    if tl < 4:
                        for j in (2 * tl, 2 * tl + 1):
                            a(f"v_cos_f32 v{CS+j}, v{TH+j}")
                    else:
                        for j in (2 * (tl - 4), 2 * (tl - 4) + 1):
                            a(f"v_add_f32 v{TH+j}, v{TH+j}, v{vINC}")
                        if tl < 6:
                            for j in (2 * (tl - 4), 2 * (tl - 4) + 1):
                                a(f"v_cvt_pk_bf16_f32 v{nxt+j}, v{CS+2*j}, v{CS+2*j+1}")
            if fs == 24:
                dma_adv()
        a(f"s_sub_u32 s{sK}, s{sK}, 1")
        a(f"s_cmp_lg_u32 s{sK}, 0")
        a(f"s_cbranch_scc1 {L}")
        a("s_waitcnt vmcnt(0) lgkmcnt(0)")
        a("s_barrier")
        a.nop(12)

    def image_out(swz_shift, seg_stride, row_stride, sbase):
        a("s_waitcnt lgkmcnt(0)")
        a("s_barrier")
        a(f"v_lshrrev_b32 v{t0}, 4, v{vC}")
        a(f"v_mul_u32_u24 v{t0}, {seg_stride}, v{t0}")
        a(f"v_and_b32 v{t1}, 15, v0")
        a(f"v_lshl_add_u32 v{t0}, v{t1}, 4, v{t0}")
        a(f"v_mul_u32_u24 v{t1}, {row_stride}, v{vHH}")
        a(f"v_add_u32 v{vOA}, v{t0}, v{t1}")
        a(f"s_mul_i32 s{sT0}, s{sWV}, {64*row_stride}")
        a(f"s_add_u32 s{sT0}, s{sT0}, s{sbase}")
        a(f"s_lshl_b32 s{sT1}, s{sWV}, 15")
        if swz_shift == 0:
            a(f"v_xor_b32 v{t0}, v{vC}, v{vHH}")
        else:
            a(f"v_mov_b32 v{t0}, v{vC}")
        a(f"v_lshlrev_b32 v{t0}, 4, v{t0}")
        a(f"v_lshl_add_u32 v{t0}, v{vHH}, 9, v{t0}")
        a(f"v_add_u32 v{vLR}, s{sT1}, v{t0}")
        nvar = 4 if swz_shift == 0 else 8
        for k in range(nvar):
            x = (2 * k if swz_shift == 0 else k) << 4
            a(f"v_xor_b32 v{EX+k}, {x}, v{vLR}")
        for m in range(32):
            a(f"ds_read_b128 {vr(BIG+4*m,4)}, v{EX + m % nvar} offset:{1024*m}")
        for m in range(32):
            if m < 32 - 15:
                if m == 0:
                    a("s_waitcnt lgkmcnt(15)")
            else:
                a(f"s_waitcnt lgkmcnt({31-m})")
            a(f"buffer_store_dwordx4 {vr(BIG+4*m,4)}, v{vOA}, {WS}, s{sT0} offen sc1")
            a(f"s_add_u32 s{sT0}, s{sT0}, {2*row_stride}")
            if Cfg.st_pace:
                a(f"s_sleep {Cfg.st_pace}")

    def epi_rows(fold):
        a(f"v_and_b32 v{t0}, 7, v0")
        a(f"v_lshlrev_b32 v{t1}, 1, v{vHH}")
        a(f"v_xor_b32 v{t0}, v{t0}, v{t1}")
        a(f"v_lshlrev_b32 v{t0}, 4, v{t0}")
        a(f"v_lshl_add_u32 v{t0}, v{vC}, 9, v{t0}")
        a(f"s_lshl_b32 s{sT1}, s{sWV}, 15")
        a(f"v_add_u32 v{EX}, s{sT1}, v{t0}")
        for k, x in enumerate((16, 64, 80)):
            a(f"v_xor_b32 v{EX+1+k}, {x}, v{EX}")
        def put(src, u, tl):
            for r in range(8):
                a(f"v_cvt_pk_bf16_f32 v{src+r}, v{src+2*r}, v{src+2*r+1}")
            for q in range(2):
                a(f"ds_write_b128 v{EX + 2*(tl&1) + q}, {vr(src+4*q,4)} offset:{u*16384 + (tl>>1)*128}")
        for u in range(2):
            for i in range(4):
                b = BIG + 48 * (i & 1)
                ta, tb = (i, i + 4) if fold else (2 * i, 2 * i + 1)
                for r in range(16):
                    a(f"v_accvgpr_read_b32 v{b+r}, a{128*u+16*ta+r}")
                    a(f"v_accvgpr_read_b32 v{b+16+r}, a{128*u+16*tb+r}")
                if fold:
                    for r in range(0, 16, 2):
                        a(f"v_pk_add_f32 {vr(b+32+r,2)}, {vr(b+r,2)}, {vr(b+16+r,2)}")
                        a(f"v_pk_add_f32 {vr(b+16+r,2)}, {vr(b+r,2)}, {vr(b+16+r,2)} neg_lo:[0,1] neg_hi:[0,1]")
                    put(b + 32, u, ta)
                else:
                    put(b, u, ta)
                put(b + 16, u, tb)

    def fbarrier(k):
        a("s_waitcnt vmcnt(0)")
        a("s_barrier")
        signal(a, DBG_FB + 4 * k, 1)
        SK = a.newlabel("fb_skip")
        a(f"s_cmp_eq_u32 s{sWV}, 0")
        a(f"s_cbranch_scc0 {SK}")
        wait_counter(a, DBG_FB + 4 * k, 32, t0, t1, 10)
        a.label(SK)
        a("s_barrier")

    prof.mark(2)
    gemm(1)
    prof.mark(3)
    epi_rows(True)
    a(f"s_lshl_b32 s{sO0}, s{sFI}, 20")
    a(f"s_lshl_b32 s{sT1}, s{sX}, 8")
    a(f"s_add_u32 s{sO0}, s{sO0}, s{sT1}")
    a(f"s_add_u32 s{sO0}, s{sO0}, {RT_OFF:#x}")
    image_out(0, 2048, 4096, sO0)
    handshake_wait(a, mode, t0, t1, 8)
    prof.mark(4)
    a(f"s_and_b32 s{sE}, s{sX}, 1")
    a(f"s_lshr_b32 s{sDB}, s{sX}, 1")
    a(f"s_lshl_b32 s{sT0}, s{sFI}, 2")
    a(f"s_add_u32 s{sT0}, s{sT0}, s{sWV}")
    a(f"s_lshl_b32 s{sT0}, s{sT0}, 6")
    a(f"s_add_u32 s{sT0}, s{sT0}, s{sE}")
    a(f"v_lshl_add_u32 v{t0}, v{vHH}, 4, s{sT0}")
    a(f"s_and_b32 s{sT1}, s{sDB}, 1")
    a(f"s_lshl_b32 s{sT1}, s{sT1}, 9")
    a(f"s_and_b32 s{sT2}, s{sDB}, 2")
    a(f"s_add_u32 s{sT1}, s{sT1}, s{sT2}")
    a(f"v_lshl_add_u32 v{vLW}, v{vC}, 2, s{sT1}")
    a(f"v_mul_u32_u24 v{vW1}, 1026, v{t0}")
    a(f"v_sub_u32 v{t2}, {2048-46}, v{t0}")
    a(f"v_mul_u32_u24 v{vW2}, 1026, v{t2}")
    a(f"v_sub_u32 v{t2}, 2048, v{t0}")
    a(f"v_cmp_eq_u32 s[{sMA}:{sMA+1}], 0, v{t0}")
    a(f"v_mov_b32 v{t3}, 1024")
    a("s_nop 0")
    a(f"v_cndmask_b32 v{t2}, v{t2}, v{t3}, s[{sMA}:{sMA+1}]")
    a(f"v_mul_u32_u24 v{vW20}, 1026, v{t2}")
    a(f"v_cmp_eq_u32 s[{sMB}:{sMB+1}], 0, v{vLW}")
    for r in (vW1, vW2, vW20):
        a(f"v_add_u32 v{r}, v{r}, v{vLW}")
    wreg = lambda u, i, q: BIG + 64 * u + 16 * i + 2 * q
    a(f"v_and_b32 v{t1}, 8, v0")
    a(f"v_and_b32 v{t2}, 7, v0")
    a(f"v_lshl_add_u32 v{t1}, v{t1}, 1, v{t2}")
    a(f"v_lshl_add_u32 v{t1}, v{t1}, 1, v{t0}")
    a(f"v_sub_u32 v{t2}, 2048, v{t1}")
    a(f"v_cmp_eq_u32 vcc, 0, v{t1}")
    a(f"v_mul_u32_u24 v{t1}, 1026, v{t1}")
    a("s_nop 0")
    a(f"v_cndmask_b32 v{t2}, v{t2}, v{t3}, vcc")
    a(f"v_mul_u32_u24 v{t2}, 1026, v{t2}")
    a(f"buffer_load_ushort v{Y}, v{t1}, {WRS}, 0 offen offset:1024")
    a(f"buffer_load_ushort v{Y+1}, v{t1}, {WIS}, 0 offen offset:1024")
    a(f"buffer_load_ushort v{Y+2}, v{t2}, {WRS}, 0 offen offset:1024")
    a(f"buffer_load_ushort v{Y+3}, v{t2}, {WIS}, 0 offen offset:1024")
    def w_pack(n):
        u, q = n >> 3, n & 7
        for i in range(4):
            for k in range(2):
                a(f"v_lshl_or_b32 v{wreg(u,i,q)+k}, v{EX+8*(n%4)+2*i+k}, 16, v{wreg(u,i,q)+k}")
    for n in range(16):
        u, q = n >> 3, n & 7
        dk = 2 * q + 32 * u
        a(f"s_mov_b32 s{sT2}, {dk*1026}")
        a(f"s_mov_b32 s{sT3}, {0 if dk == 0 else (46-dk)*1026}")
        v2 = vW20 if dk == 0 else vW2
        for i in range(4):
            dst = wreg(u, i, q); tmp = EX + 8 * (n % 4) + 2 * i
            a(f"buffer_load_ushort v{dst}, v{vW1}, {WRS}, s{sT2} offen offset:{128*i} {WFL[Cfg.ffl]}")
            a(f"buffer_load_ushort v{dst+1}, v{v2}, {WRS}, s{sT3} offen offset:{128*i} {WFL[Cfg.ffl]}")
            a(f"buffer_load_ushort v{tmp}, v{vW1}, {WIS}, s{sT2} offen offset:{128*i} {WFL[Cfg.ffl]}")
            a(f"buffer_load_ushort v{tmp+1}, v{v2}, {WIS}, s{sT3} offen offset:{128*i} {WFL[Cfg.ffl]}")
        if n >= 2:
            a("s_waitcnt vmcnt(32)")
            w_pack(n - 2)
    a("s_waitcnt vmcnt(0)")
    w_pack(14)
    w_pack(15)
    for k in range(4):
        a(f"v_lshlrev_b32 v{Y+k}, 16, v{Y+k}")
    fbarrier(0)
    prof.mark(5)
    gemm(2)
    prof.mark(6)
    SC = 2.0 / (2048 * 1024)
    a(f"s_mov_b32 s{sO0}, {f32bits(SC):#x}")
    a(f"v_and_b32 v{t0}, 7, v0")
    a(f"v_lshlrev_b32 v{t1}, 1, v{vHH}")
    a(f"v_xor_b32 v{t0}, v{t0}, v{t1}")
    a(f"v_lshlrev_b32 v{t0}, 4, v{t0}")
    a(f"v_lshl_add_u32 v{t0}, v{vC}, 10, v{t0}")
    a(f"s_lshl_b32 s{sT1}, s{sWV}, 7")
    IW = EX + 32
    a(f"v_add_u32 v{IW}, s{sT1}, v{t0}")
    for k, x in enumerate((16, 64, 80)):
        a(f"v_xor_b32 v{IW+1+k}, {x}, v{IW}")
    for k in range(4):
        a(f"v_add_u32 v{IW+4+k}, 0x10000, v{IW+k}")
    A_, B_, C_, E_, P_, M_, Pi, Mi = range(FR, FR + 8)
    U0, U1, V0, V1 = range(FR + 8, FR + 12)
    w1r, w1i, w2r, w2i = range(FR + 12, FR + 16)
    OU = FR + 16; OV = FR + 24
    K0, K1 = EX + 40, EX + 41
    def unpack(w):
        a(f"v_lshlrev_b32 v{w1r}, 16, v{w}")
        a(f"v_and_b32 v{w1i}, 0xffff0000, v{w}")
        a(f"v_lshlrev_b32 v{w2r}, 16, v{w+1}")
        a(f"v_and_b32 v{w2i}, 0xffff0000, v{w+1}")
    for i in range(4):
        for u in range(2):
            for q in range(8):
                ab = 128 * u + 32 * i + 2 * q
                a(f"v_accvgpr_read_b32 v{A_}, a{ab}")
                a(f"v_accvgpr_read_b32 v{B_}, a{ab+1}")
                a(f"v_accvgpr_read_b32 v{C_}, a{ab+16}")
                a(f"v_accvgpr_read_b32 v{E_}, a{ab+17}")
                unpack(wreg(u, i, q))
                a(f"v_add_f32 v{P_}, v{w1r}, v{w2r}")
                a(f"v_sub_f32 v{M_}, v{w1r}, v{w2r}")
                a(f"v_add_f32 v{Pi}, v{w1i}, v{w2i}")
                a(f"v_sub_f32 v{Mi}, v{w1i}, v{w2i}")
                a(f"v_pk_mul_f32 {vr(U0,2)}, {vr(A_,2)}, {vr(P_,2)} op_sel_hi:[1,0]")
                a(f"v_pk_mul_f32 {vr(V0,2)}, {vr(C_,2)}, {vr(P_,2)} op_sel_hi:[1,0]")
                a(f"v_pk_fma_f32 {vr(U0,2)}, {vr(A_,2)}, {vr(Pi,2)}, {vr(U0,2)} op_sel:[1,1,0] op_sel_hi:[0,1,1] neg_hi:[1,0,0]")
                a(f"v_pk_fma_f32 {vr(V0,2)}, {vr(C_,2)}, {vr(Pi,2)}, {vr(V0,2)} op_sel:[1,1,0] op_sel_hi:[0,1,1] neg_hi:[1,0,0]")
                if i == 0:
                    a(f"v_mul_f32 v{K0}, 0.5, v{U0}")
                    a(f"v_mul_f32 v{K1}, 0.5, v{U1}")
                a(f"v_pk_fma_f32 {vr(U0,2)}, {vr(C_,2)}, {vr(P_,2)}, {vr(U0,2)} op_sel:[1,1,0] op_sel_hi:[0,1,1] neg_lo:[1,0,0]")
                a(f"v_pk_fma_f32 {vr(V0,2)}, {vr(A_,2)}, {vr(P_,2)}, {vr(V0,2)} op_sel:[1,1,0] op_sel_hi:[0,1,1] neg_hi:[1,0,0]")
                a(f"v_pk_fma_f32 {vr(U0,2)}, {vr(C_,2)}, {vr(Pi,2)}, {vr(U0,2)} op_sel_hi:[1,0,1]")
                a(f"v_pk_fma_f32 {vr(V0,2)}, {vr(A_,2)}, {vr(Pi,2)}, {vr(V0,2)} op_sel_hi:[1,0,1] neg_lo:[1,0,0] neg_hi:[1,0,0]")
                first = (u == 0 and q == 0)
                if first:
                    a(f"s_mov_b64 exec, s[{sMA}:{sMA+1}]")
                    a(f"v_mul_f32 v{U0}, v{A_}, v{w1r}")
                    a(f"v_mul_f32 v{U1}, v{B_}, v{w2r}")
                    if i == 0:
                        a(f"v_mul_f32 v{K0}, 0.5, v{U0}")
                        a(f"v_mul_f32 v{K1}, 0.5, v{U1}")
                    a(f"v_fma_f32 v{U0}, v{C_}, v{w1i}, v{U0}")
                    a(f"v_fma_f32 v{U1}, v{E_}, v{w2i}, v{U1}")
                    a(f"v_mul_f32 v{V0}, v{C_}, v{w1r}")
                    a(f"v_fma_f32 v{V0}, -v{A_}, v{w1i}, v{V0}")
                    a(f"v_mul_f32 v{V1}, v{E_}, v{w2r}")
                    a(f"v_fma_f32 v{V1}, -v{B_}, v{w2i}, v{V1}")
                    a("s_mov_b64 exec, -1")
                if i == 0:
                    for k in range(4):
                        if first:
                            a(f"v_mov_b32 v{w1r+k}, v{Y+k}")
                        else:
                            a(f"v_mov_b32_dpp v{w1r+k}, v{Y+k} row_shl:{8*u+q} row_mask:0xf bank_mask:0xf")
                    a(f"s_mov_b64 exec, s[{sMB}:{sMB+1}]")
                    a(f"v_mov_b32 v{U0}, v{K0}")
                    a(f"v_mov_b32 v{U1}, v{K1}")
                    a(f"v_add_f32 v{P_}, v{w1r}, v{w2r}")
                    a(f"v_sub_f32 v{Mi}, v{w1i}, v{w2i}")
                    a(f"v_mul_f32 v{V0}, v{C_}, v{P_}")
                    a(f"v_mul_f32 v{V1}, v{E_}, v{P_}")
                    a(f"v_fma_f32 v{V0}, v{E_}, v{Mi}, v{V0}")
                    a(f"v_fma_f32 v{V1}, -v{C_}, v{Mi}, v{V1}")
                    if first:
                        a(f"s_and_b64 exec, s[{sMB}:{sMB+1}], s[{sMA}:{sMA+1}]")
                        a(f"v_mul_f32 v{V0}, v{C_}, v{w1r}")
                        a(f"v_mul_f32 v{V1}, v{E_}, v{w2r}")
                        a(f"s_mov_b64 exec, s[{sMB}:{sMB+1}]")
                    a(f"v_mul_f32 v{V0}, 0.5, v{V0}")
                    a(f"v_mul_f32 v{V1}, 0.5, v{V1}")
                    a("s_mov_b64 exec, -1")
                for r in (U0, U1, V0, V1):
                    a(f"v_mul_f32 v{r}, s{sO0}, v{r}")
                a(f"v_cvt_pk_bf16_f32 v{OU+q}, v{U0}, v{U1}")
                a(f"v_cvt_pk_bf16_f32 v{OV+q}, v{V0}, v{V1}")
            for q in range(2):
                ad = IW + 4 * (i >> 1) + 2 * u + q
                a(f"ds_write_b128 v{ad}, {vr(OU+4*q,4)} offset:{(i&1)*32768}")
                a(f"ds_write_b128 v{ad}, {vr(OV+4*q,4)} offset:{(i&1)*32768 + 512}")
    a(f"s_lshl_b32 s{sO0}, s{sDB}, 20")
    a(f"s_lshl_b32 s{sT1}, s{sE}, 2")
    a(f"s_add_u32 s{sT1}, s{sT1}, s{sFI}")
    a(f"s_lshl_b32 s{sT1}, s{sT1}, 9")
    a(f"s_add_u32 s{sO0}, s{sO0}, s{sT1}")
    a(f"s_add_u32 s{sO0}, s{sO0}, {HT_OFF:#x}")
    image_out(1, 256, 4096, sO0)
    fbarrier(1)
    prof.mark(7)
    gemm(3)
    prof.mark(8)
    epi_rows(False)
    a(f"s_lshl_b32 s{sT1}, s{sE}, 2")
    a(f"s_add_u32 s{sT1}, s{sT1}, s{sFI}")
    a(f"s_lshl_b32 s{sO0}, s{sT1}, 19")
    a(f"s_lshl_b32 s{sT1}, s{sDB}, 9")
    a(f"s_add_u32 s{sO0}, s{sO0}, s{sT1}")
    a(f"s_add_u32 s{sO0}, s{sO0}, {Z_OFF:#x}")
    image_out(0, 256, 2048, sO0)
    fbarrier(2)
    prof.mark(9)
    gemm(4, 0)
    gemm(4, 1)
    dbg_time(a, 11)
    prof.mark(10)
    a(f"s_lshl_b32 s{sT1}, s{sWV}, 15")
    a(f"v_lshlrev_b32 v{t0}, 4, v0")
    a(f"v_add_u32 v{vLR}, s{sT1}, v{t0}")
    for i in range(4):
        AE, AO, BE, BO, S0, S1 = (BIG + 16 * k for k in range(6))
        for r in range(16):
            a(f"v_accvgpr_read_b32 v{AE+r}, a{16*i+r}")
            a(f"v_accvgpr_read_b32 v{AO+r}, a{64+16*i+r}")
            a(f"v_accvgpr_read_b32 v{BE+r}, a{128+16*i+r}")
            a(f"v_accvgpr_read_b32 v{BO+r}, a{192+16*i+r}")
        NEG = "neg_lo:[0,1] neg_hi:[0,1]"
        for r in range(0, 16, 2):
            a(f"v_pk_add_f32 {vr(S0+r,2)}, {vr(AE+r,2)}, {vr(AO+r,2)}")
            a(f"v_pk_add_f32 {vr(AE+r,2)}, {vr(AE+r,2)}, {vr(AO+r,2)} {NEG}")
            a(f"v_pk_add_f32 {vr(S1+r,2)}, {vr(BE+r,2)}, {vr(BO+r,2)}")
            a(f"v_pk_add_f32 {vr(BE+r,2)}, {vr(BE+r,2)}, {vr(BO+r,2)} {NEG}")
        for hn, (x, y) in enumerate(((S0, S1), (AE, BE))):
            for hd in range(2):
                o = FR + 8 * (2 * hn + hd)
                for r in range(0, 16, 2):
                    a(f"v_pk_add_f32 {vr(AO,2)}, {vr(x+r,2)}, {vr(y+r,2)} {NEG if hd else ''}")
                    a(f"v_cvt_pk_bf16_f32 v{o+r//2}, v{AO}, v{AO+1}")
                for q in range(2):
                    a(f"ds_write_b128 v{vLR}, {vr(o+4*q,4)} offset:{((hn*4+i)*2+hd)*2048 + 1024*q}")
    vXA = vW1; vFA = vW2; vGA = vW20
    a(f"v_bfe_u32 v{t0}, v0, 3, 2")
    a(f"v_bfe_u32 v{t1}, v0, 1, 2")
    a(f"v_and_b32 v{t2}, 1, v0")
    a(f"v_lshlrev_b32 v{vXA}, 3, v{vC}")
    a(f"v_lshl_add_u32 v{vXA}, v{vHH}, 21, v{vXA}")
    a(f"v_and_b32 v{t3}, 7, v0")
    a(f"v_bfe_u32 v{vLW}, v0, 3, 1")
    a(f"v_lshlrev_b32 v{vLW}, 10, v{vLW}")
    a(f"v_lshl_add_u32 v{vLW}, v{t3}, 3, v{vLW}")
    a(f"v_bfe_u32 v{t3}, v0, 4, 1")
    a(f"v_lshl_add_u32 v{vLW}, v{t3}, 9, v{vLW}")
    a(f"v_lshl_add_u32 v{vLW}, v{vHH}, 11, v{vLW}")
    a(f"s_lshl_b32 s{sT1}, s{sWV}, 15")
    a(f"v_add_u32 v{vLW}, s{sT1}, v{vLW}")
    a(f"v_lshlrev_b32 v{vGA}, 2, v{t1}")
    a(f"v_lshlrev_b32 v{vOA}, 11, v{t1}")
    a(f"v_lshl_add_u32 v{vOA}, v{vHH}, 10, v{vOA}")
    a(f"v_lshl_add_u32 v{vOA}, v{t0}, 4, v{vOA}")
    a(f"v_lshl_add_u32 v{vOA}, v{t2}, 3, v{vOA}")
    a(f"v_mov_b32 v{vFA}, 0")
    a(f"s_lshl_b32 s{sO3}, s{sFI}, 2")
    a(f"s_add_u32 s{sO3}, s{sO3}, s{sWV}")
    a(f"s_lshl_b32 s{sO0}, s{sO3}, 17")
    a(f"s_lshl_b32 s{sT0}, s{sX}, 8")
    a(f"s_add_u32 s{sO0}, s{sO0}, s{sT0}")
    a(f"s_add_u32 s{sO0}, s{sO0}, {XPART_OFF:#x}")
    a(f"s_lshl_b32 s{sO1}, s{sX}, 7")
    a(f"s_add_u32 s{sO1}, s{sO1}, {PROG_OFF:#x}")
    a(f"s_lshl_b32 s{sO2}, s{sO3}, 6")
    a(f"s_lshl_b32 s{sT0}, s{sX}, 13")
    a(f"s_add_u32 s{sO2}, s{sO2}, s{sT0}")
    a(f"s_lshl_b32 s{sLB}, s{sX}, 4")
    a(f"s_add_u32 s{sLB}, s{sLB}, {GATE_OFF:#x}")
    a(f"s_mov_b32 s{sK}, 0")
    SUM = FR; BV = FR + 4; TMP = FR + 8; GV = EX; BP = EX + 8; OP = EX + 16
    def mix(NS, last, sleep, direct=False):
        L = a.newlabel("f_mix")
        a.label(L)
        a(f"s_lshr_b32 s{sT0}, s{sK}, 3")
        a(f"s_lshl_b32 s{sT0}, s{sT0}, 12")
        a(f"s_and_b32 s{sT1}, s{sK}, 7")
        a(f"s_lshl_b32 s{sT1}, s{sT1}, 6")
        a(f"s_add_u32 s{sT0}, s{sT0}, s{sT1}")
        a(f"v_add_u32 v{t0}, s{sT0}, v{vLW}")
        for g in range(NS):
            a(f"buffer_load_dword v{GV+2*g}, v{vGA}, {WS}, s{sLB} offen offset:{128*g} sc1")
            a(f"ds_read_b64 {vr(BP+2*g,2)}, v{t0} offset:{64*g}")
        def loads():
            for g in range(NS):
                a(f"s_add_u32 s{sT0}, s{sO0}, {2048*g}")
                for p in range(8):
                    a(f"buffer_load_dwordx2 {vr(BIG+16*g+2*p,2)}, v{vXA}, {WS}, s{sT0} offen sc1")
                    if p < 7:
                        a(f"s_add_u32 s{sT0}, s{sT0}, {4*MB:#x}")
        PL = a.newlabel("f_w"); PF = a.newlabel("f_w1")
        a(f"s_add_u32 s{sT2}, s{sK}, {NS + 1}")
        a(f"s_branch {PF}")
        a.label(PL)
        a(f"s_sleep {sleep}")
        a(f"s_sub_u32 s{sBUD}, s{sBUD}, 1")
        a(f"s_cbranch_scc1 {a.abort}")
        a.label(PF)
        if not direct:
            a(f"buffer_load_dword v{t2}, v{vFA}, {WS}, s{sO1} offen sc1")
            a("s_waitcnt vmcnt(0)")
            a(f"v_cmp_gt_u32 vcc, s{sT2}, v{t2}")
            a(f"s_cbranch_vccnz {PL}")
            loads()
        else:
            loads()
            a("s_waitcnt vmcnt(0)")
            maxtree(a, range(BIG, BIG + 16 * NS, 2), t3)
            a(f"v_cmp_eq_u32 vcc, -1, v{t3}")
            a(f"s_cbranch_vccnz {PL}")
        prof.mark(13)
        a("s_waitcnt lgkmcnt(0)")
        for g in range(NS):
            for r in range(2):
                a(f"v_lshlrev_b32 v{BV+2*r}, 16, v{BP+2*g+r}")
                a(f"v_and_b32 v{BV+2*r+1}, 0xffff0000, v{BP+2*g+r}")
            for p in range(8):
                a(f"s_waitcnt vmcnt({8*(NS-g) - 1 - p + g})")
                for r in range(2):
                    src = BIG + 16 * g + 2 * p + r
                    d = (SUM if p == 0 else TMP) + 2 * r
                    a(f"v_lshlrev_b32 v{d}, 16, v{src}")
                    a(f"v_and_b32 v{d+1}, 0xffff0000, v{src}")
                if p:
                    for r in range(2):
                        a(f"v_pk_add_f32 {vr(SUM+2*r,2)}, {vr(SUM+2*r,2)}, {vr(TMP+2*r,2)}")
            for r in range(0, 4, 2):
                a(f"v_pk_add_f32 {vr(SUM+r,2)}, {vr(SUM+r,2)}, {vr(BV+r,2)} neg_lo:[0,1] neg_hi:[0,1]")
                a(f"v_pk_fma_f32 {vr(SUM+r,2)}, {vr(SUM+r,2)}, {vr(GV+2*g,2)}, {vr(BV+r,2)} op_sel_hi:[1,0,1]")
                a(f"v_cvt_pk_bf16_f32 v{OP+2*g+r//2}, v{SUM+r}, v{SUM+r+1}")
            a(f"buffer_store_dwordx2 {vr(OP+2*g,2)}, v{vOA}, {OUTS}, s{sO2} offen {WFL[Cfg.out_fl]}")
            a(f"s_add_u32 s{sO2}, s{sO2}, 65536")
        a(f"s_add_u32 s{sO0}, s{sO0}, {2048*NS}")
        a(f"s_add_u32 s{sLB}, s{sLB}, {128*NS}")
        a(f"s_add_u32 s{sK}, s{sK}, {NS}")
        a(f"s_cmp_lt_u32 s{sK}, {last}")
        a(f"s_cbranch_scc1 {L}")
    mix(Cfg.f_ns, 60, Cfg.f_sleep)
    prof.mark(12)
    mix(1, 62, 4)
    mix(1, 64, Cfg.f_sl2, True)
    dbg_time(a, 10)
    prof.mark(20)
    prof.dump()
    a("s_endpgm")
```

```python
from gen import *
import itertools

STAGE = 131072

class MemPass:
    def __init__(self, a, va, mode, sIDX, prof, helper):
        self.a, self.prof, self.helper = a, prof, helper
        self.loc = "" if mode == 0 else "sc1"
        sB, sPM, sMEM, sTY, sSL, sSL2, sTH = 20, 22, 23, 24, 25, 26, 27
        self.sB, self.sPM, self.sMEM, self.sTY, self.sSL, self.sSL2, self.sTH = sB, sPM, sMEM, sTY, sSL, sSL2, sTH
        a(f"s_and_b32 s{sT1}, s{sIDX}, 3")
        a(f"s_lshr_b32 s{sTY}, s{sIDX}, 2")
        a(f"s_lshl_b32 s{sT2}, s{sX}, 2")
        a(f"s_add_u32 s{sT1}, s{sT1}, s{sT2}")
        a(f"s_cmp_eq_u32 s{sTY}, 0")
        a(f"s_cselect_b64 s[{S_W}:{S_W+1}], s[{P_WQ}:{P_WQ+1}], s[{P_WK}:{P_WK+1}]")
        a(f"s_cmp_eq_u32 s{sTY}, 2")
        a(f"s_cselect_b64 s[{S_W}:{S_W+1}], s[{P_WV}:{P_WV+1}], s[{S_W}:{S_W+1}]")
        a(f"s_lshl_b32 s{sT2}, s{sT1}, 8")
        a(f"s_add_u32 s{S_W}, s{S_W}, s{sT2}")
        a(f"s_addc_u32 s{S_W+1}, s{S_W+1}, 0")
        a(f"s_sub_u32 s{S_W+2}, {8*MB:#x}, s{sT2}")
        a(f"s_mov_b32 s{S_W+3}, 0x00020000")
        a(f"s_lshl_b32 s{sTH}, s{sTY}, 5")
        a(f"s_add_u32 s{sTH}, s{sTH}, s{sT1}")
        a(f"s_lshl_b32 s{sPM}, s{sTH}, 13")
        a(f"s_add_u32 s{sPM}, s{sPM}, {PM_OFF:#x}")
        a(f"s_lshl_b32 s{sMEM}, s{sX}, 16")
        a(f"s_lshl_b32 s{sT3}, s{sWV}, 12")
        a(f"s_add_u32 s{sMEM}, s{sMEM}, s{sT3}")
        a(f"s_add_u32 s{sMEM}, s{sMEM}, {MEM_OFF:#x}")
        self.vW, self.vTR, self.t0, self.t1 = weight_addr_setup(a, va, 8192, sB, False)
        self.order = (2, 3, 0, 1) if helper else (0, 1, 2, 3)
        self.va = va

    def start_weights(self):
        a = self.a
        for k in range(2):
            weight_dma(self.a, self.vW, self.order[k], k, 8192, self.sB)
        self.npf = 0
        if Cfg.self_pf and not self.helper:
            a(f"v_lshrrev_b32 v{self.t0}, 1, v0")
            a(f"v_lshlrev_b32 v{self.t0}, 13, v{self.t0}")
            a(f"v_and_b32 v{self.t1}, 1, v0")
            a(f"v_lshl_add_u32 v{self.t0}, v{self.t1}, 7, v{self.t0}")
            for k in range(4):
                a(f"s_add_u32 s{sT0}, s{self.sB}, {(512 + 256*(k>>1) + 32*(k&1))*8192}")
                a(f"buffer_load_dword v{252+k}, v{self.t0}, {WW}, s{sT0} offen {WFL[Cfg.hfl]}")
            self.npf = 4

    def setup(self):
        a, va = self.a, self.va
        t0, t1 = self.t0, self.t1
        t2 = va.get(); t3 = va.get()
        self.t2, self.t3 = t2, t3
        sTY = self.sTY
        self.vL16 = vL16 = va.get()
        a(f"v_lshlrev_b32 v{vL16}, 4, v0")
        self.vPMa = vPMa = va.get(); self.vPMo = vPMo = va.get()
        a(f"s_cmp_eq_u32 s{sTY}, 2")
        a("s_cselect_b64 vcc, -1, 0")
        a(f"v_and_b32 v{t0}, 15, v0")
        a(f"v_lshrrev_b32 v{t1}, 5, v0")
        a(f"v_lshl_add_u32 v{t0}, v{t1}, 4, v{t0}")
        a(f"v_lshlrev_b32 v{t0}, 4, v{t0}")
        a(f"v_bfe_u32 v{t1}, v0, 4, 1")
        a(f"v_lshl_add_u32 v{t2}, v{t1}, 3, v{t0}")
        a(f"v_lshrrev_b32 v{t0}, 4, v0")
        a(f"v_lshlrev_b32 v{t0}, 7, v{t0}")
        a(f"v_and_b32 v{t1}, 7, v0")
        a(f"v_lshl_add_u32 v{t0}, v{t1}, 4, v{t0}")
        a(f"v_bfe_u32 v{t1}, v0, 3, 1")
        a(f"v_lshl_add_u32 v{t3}, v{t1}, 3, v{t0}")
        a(f"v_cndmask_b32 v{t2}, v{t3}, v{t2}, vcc")
        a(f"s_lshl_b32 s{sT3}, s{sWV}, 9")
        a(f"v_add_u32 v{vPMa}, s{sT3}, v{t2}")
        if self.helper:
            a(f"v_xor_b32 v{t1}, 1, v{t1}")
        a(f"v_cndmask_b32 v{t1}, v{t1}, 0, vcc")
        a(f"v_lshl_add_u32 v{vPMo}, v{t1}, 28, v{vPMa}")
        self.vSEN = vSEN = va.get(4, 4)
        for r in range(4):
            a(f"v_mov_b32 v{vSEN+r}, -1")
        self.vST = vST = va.get(4)
        for G in range(4):
            a(f"s_add_u32 s{sT3}, s{sWV}, {G}")
            a(f"s_and_b32 s{sT3}, s{sT3}, 3")
            a(f"s_lshl_b32 s{sT4}, s{sT3}, 12")
            a(f"s_add_u32 s{sT4}, s{sT4}, {STAGE}")
            a(f"v_add_u32 v{vST+G}, s{sT4}, v{vL16}")
        self.vIDX = va.get()
        idx_setup(a, self.vIDX, t0)
        self.SEL = SEL = va.get(4, 4)
        a(f"v_and_b32 v{t1}, 1, v0")
        a(f"v_lshlrev_b32 v{t1}, 4, v{t1}")
        a(f"v_mov_b32 v{t2}, 0x3f80")
        a(f"v_lshlrev_b32 v{t1}, v{t1}, v{t2}")
        a(f"v_bfe_u32 v{t0}, v0, 3, 1")
        a(f"v_bfe_u32 v{t2}, v0, 1, 1")
        a(f"v_lshl_add_u32 v{t0}, v{t0}, 1, v{t2}")
        a(f"v_bfe_u32 v{t2}, v0, 4, 1")
        a(f"v_bfe_u32 v{t3}, v0, 2, 1")
        a(f"v_xor_b32 v{t2}, v{t2}, v{t3}")
        a(f"v_lshl_add_u32 v{t0}, v{t2}, 2, v{t0}")
        for k in range(4):
            a(f"v_cmp_eq_u32 vcc, {k}, v{t0}")
            a("s_nop 1")
            a(f"v_cndmask_b32 v{SEL+k}, 0, v{t1}, vcc")
        self.M = va.get(16, 4); self.PK = va.get(4, 4); self.PO = va.get(2); self.vtmp = va.get()
        for r in range(4):
            a(f"v_mov_b32 v{self.PK+r}, 0")

    def load_weights(self, after2=None):
        a = self.a
        tiles = (1,) if self.helper else (0, 1)
        for c in range(4):
            a(f"s_waitcnt vmcnt({(16 if (c < 3 or after2) else 0) + (self.npf if c < 2 else 0)})")
            a("s_barrier")
            self.prof.mark(3 + c)
            a(f"s_sub_u32 s{sT3}, {self.order[c]+4}, s{sWV}")
            a(f"s_and_b32 s{sT3}, s{sT3}, 3")
            done = a.newlabel("wl_done")
            for G in range(4):
                nxt = a.newlabel("wl_next")
                if G < 3:
                    a(f"s_cmp_eq_u32 s{sT3}, {G}")
                    a(f"s_cbranch_scc0 {nxt}")
                weight_tr(a, self.vTR[c & 1], G, tiles)
                if G < 3:
                    a(f"s_branch {done}")
                    a.label(nxt)
            a.label(done)
            a("s_barrier")
            if c < 2:
                weight_dma(a, self.vW, self.order[c + 2], c & 1, 8192, self.sB)
            elif c == 2 and after2:
                after2()

    def address(self, add=0):
        a, sMA = self.a, self.sB
        a(f"s_add_u32 s{sMA}, s{sS}, {add}")
        a(f"s_and_b32 s{sMA}, s{sMA}, 3")
        a(f"s_lshl_b32 s{sMA}, s{sMA}, 14")
        a(f"s_add_u32 s{sMA}, s{sMA}, s{self.sMEM}")

    def loads(self):
        return [f"buffer_load_dwordx4 {vr(self.M+4*i,4)}, v{self.vL16}, {WS}, s{self.sB} offen offset:{1024*i} sc1" for i in range(4)]

    def first_loads(self):
        for l in self.loads():
            self.a(l)

    def gather(self, ACC):
        a, M, vST, vtmp = self.a, self.M, self.vST, self.vtmp
        sSL, sSL2 = self.sSL, self.sSL2
        LD = self.loads()
        a(f"s_and_b32 s{sSL}, s{sS}, 3")
        a(f"s_lshl_b32 s{sSL2}, s{sSL}, 11")
        a(f"s_xor_b32 s{sSL}, s{sSL2}, 4096")
        a(f"s_add_u32 s{sSL2}, s{sSL2}, s{self.sPM}")
        a(f"s_add_u32 s{sSL}, s{sSL}, s{self.sPM}")
        for r in range(8):
            a(f"v_mov_b32 v{ACC+r}, 0")
        base = a.newlabel("pq")
        lab = lambda q: base + "_" + "".join(map(str, q))
        DONE = base + "_done"
        emitted = set()
        keep = set()
        def emit(q, fall):
            while True:
                emitted.add(q)
                h = q[0]
                a.label(lab(q))
                if len(q) == 1:
                    if Cfg.fsm_depth == 3:
                        a(LD[h])
                        a.label(lab(q) + "r")
                    a(LD[h])
                    a(f"s_sub_u32 s{sBUD}, s{sBUD}, 1")
                    a(f"s_cbranch_scc1 {a.abort}")
                    a(f"s_waitcnt vmcnt({Cfg.fsm_depth - 1})")
                    fail = lab(q) + ("r" if Cfg.fsm_depth == 3 else "")
                else:
                    a(f"s_waitcnt vmcnt({len(q)-1})")
                    fail = lab(q) + "f"
                a(f"v_max_u32 v{vtmp}, v{M+4*h}, v{M+4*h+2}")
                a(f"v_cmp_eq_u32 vcc, -1, v{vtmp}")
                a(f"ds_write_b128 v{vST}, {vr(M+4*h,4)} offset:{1024*h}")
                a(f"s_cbranch_vccnz {fail}")
                nq = q[1:]
                if not nq:
                    if not fall:
                        a(f"s_branch {DONE}")
                    return
                if nq in emitted or nq in keep:
                    a(f"s_branch {lab(nq)}")
                    return
                q = nq
        states = []
        for n in (4, 3, 2, 1):
            for sub in itertools.combinations(range(4), n):
                for r in range(n):
                    states.append(sub[r:] + sub[:r])
        main = [(0, 1, 2, 3), (1, 2, 3), (2, 3), (3,)]
        keep.update(main)
        a(f"s_branch {lab(main[0])}")
        for q in states:
            if len(q) > 1:
                a.label(lab(q) + "f")
                a(LD[q[0]])
                if q[0] == min(q):
                    a(f"s_sub_u32 s{sBUD}, s{sBUD}, 1")
                    a(f"s_cbranch_scc1 {a.abort}")
                nq = q[1:] + q[:1]
                if nq in emitted or nq in keep:
                    a(f"s_branch {lab(nq)}")
                else:
                    emit(nq, False)
        for q in states:
            if q not in emitted and q not in keep:
                emit(q, False)
        keep.clear()
        emit(main[0], True)
        a.label(DONE)

    def compute(self, ACC, M2, tiles):
        a, M, vST, PK, PO = self.a, self.M, self.vST, self.PK, self.PO
        def sm(frag, kbslot):
            for t in tiles:
                a(f"v_smfmac_f32_16x16x64_bf16 {vr(ACC+4*t,4)}, {vr(frag,4)}, {ar(kbslot*16+8*t,8)}, v{self.vIDX}")
        pre = 2 if len(tiles) == 2 else Cfg.p_pre1
        for i in range(pre):
            sm(M + 4 * i, i)
        a("s_waitcnt lgkmcnt(0)")
        a("s_barrier")
        own = list(range(pre, 4))
        for G in range(1, 4):
            for i in range(4):
                a(f"ds_read_b128 {vr(M2+16*(G-1)+4*i,4)}, v{vST+G} offset:{1024*i}")
            if own:
                i = own.pop(0)
                sm(M + 4 * i, i)
        for i in own:
            sm(M + 4 * i, i)
        for n in range(12):
            a(f"s_waitcnt lgkmcnt({11-n})")
            sm(M2 + 4 * n, 4 + n)
        a.nop(9 - len(tiles))
        for t in tiles:
            a(f"v_cvt_pk_bf16_f32 v{PK+2*t}, v{ACC+4*t}, v{ACC+4*t+1}")
            a(f"v_cvt_pk_bf16_f32 v{PK+2*t+1}, v{ACC+4*t+2}, v{ACC+4*t+3}")
        a.nop(2)
        a(f"v_mfma_f32_16x16x32_bf16 {vr(ACC+8,4)}, {vr(PK,4)}, {vr(self.SEL,4)}, 0")
        a.nop(8)
        a(f"v_cvt_pk_bf16_f32 v{PO}, v{ACC+8}, v{ACC+9}")
        a(f"v_cvt_pk_bf16_f32 v{PO+1}, v{ACC+10}, v{ACC+11}")
        a(f"v_min_u32 v{PO}, -2, v{PO}")
        a(f"buffer_store_dwordx2 {vr(PO,2)}, v{self.vPMo}, {WS}, s{self.sSL2} offen {self.loc}")

    def reset(self):
        self.a(f"buffer_store_dwordx2 {vr(self.vSEN,2)}, v{self.vPMo}, {WS}, s{self.sSL} offen {self.loc}")

    def finish(self, reset=True):
        a = self.a
        if reset:
            self.reset()
        for G in range(4):
            a(f"v_xor_b32 v{self.vST+G}, 0x4000, v{self.vST+G}")
```

```python
from gen import *

def role_or(a, mode):
    loc = "" if mode == 0 else "sc1"
    va = VAlloc()
    sB, sJ, sVM, sVX, sPP, sPX, sPARTw, sPARTr, sTW, sXPW, sFL = 72, 74, 75, 76, 77, 78, 79, 80, 81, 82, 83
    sA, sBb, sC, sD, sE, sF, sG = 85, 86, 87, 88, 89, 90, 91
    sR0, sR1, sMp, sMr = 84, 71, sT4, sT5
    sM0 = 92
    sNP = 83
    PXL = 32768
    VML = 49152
    PPL_ = 57344
    a(f"s_sub_u32 s{sJ}, s{sSLOT}, 12")
    a(f"s_lshl_b32 s{sT2}, s{sX}, 20")
    a(f"s_lshl_b32 s{sT1}, s{sJ}, 8")
    a(f"s_add_u32 s{sT2}, s{sT2}, s{sT1}")
    a(f"s_add_u32 s{S_W}, s{P_WO}, s{sT2}")
    a(f"s_addc_u32 s{S_W+1}, s{P_WO+1}, 0")
    a(f"s_sub_u32 s{S_W+2}, {8*MB:#x}, s{sT2}")
    a(f"s_mov_b32 s{S_W+3}, 0x00020000")
    a(f"s_lshl_b32 s{sVM}, s{sX}, 2")
    a(f"s_add_u32 s{sVM}, s{sVM}, s{sWV}")
    a(f"s_lshl_b32 s{sVM}, s{sVM}, 13")
    a(f"s_add_u32 s{sVM}, s{sVM}, {PM_OFF + 64*8192:#x}")
    a(f"s_lshl_b32 s{sT0}, s{sX}, 2")
    a(f"s_lshr_b32 s{sT1}, s{sWV}, 1")
    a(f"s_add_u32 s{sT0}, s{sT0}, s{sT1}")
    a(f"s_lshl_b32 s{sVX}, s{sT0}, {XP_SH}")
    a(f"s_and_b32 s{sT1}, s{sWV}, 1")
    a(f"s_lshl_b32 s{sT1}, s{sT1}, 12")
    a(f"s_add_u32 s{sVX}, s{sVX}, s{sT1}")
    a(f"s_add_u32 s{sVX}, s{sVX}, {64<<XP_SH:#x}")
    a(f"s_lshl_b32 s{sPP}, s{sX}, 14")
    a(f"s_add_u32 s{sPP}, s{sPP}, {PP_OFF:#x}")
    a(f"s_min_u32 s{sT1}, s{sWV}, 2")
    a(f"s_lshl_b32 s{sT1}, s{sT1}, 10")
    a(f"s_add_u32 s{sPP}, s{sPP}, s{sT1}")
    a(f"s_lshl_b32 s{sTW}, s{sX}, 12")
    a(f"s_lshl_b32 s{sT1}, s{sJ}, 7")
    a(f"s_add_u32 s{sTW}, s{sTW}, s{sT1}")
    a(f"s_add_u32 s{sTW}, s{sTW}, {TW_OFF:#x}")
    a(f"s_lshl_b32 s{sPX}, s{sX}, 16")
    a(f"s_mul_i32 s{sT1}, s{sWV}, 3072")
    a(f"s_add_u32 s{sPX}, s{sPX}, s{sT1}")
    a(f"s_add_u32 s{sPX}, s{sPX}, {PX_OFF:#x}")
    a(f"s_lshl_b32 s{sT0}, s{sJ}, 2")
    a(f"s_add_u32 s{sT0}, s{sT0}, s{sWV}")
    a(f"s_and_b32 s{sT1}, s{sT0}, 15")
    a(f"s_lshl_b32 s{sT1}, s{sT1}, 9")
    a(f"s_lshr_b32 s{sT2}, s{sT0}, 4")
    a(f"s_lshl_b32 s{sT2}, s{sT2}, 14")
    a(f"s_add_u32 s{sT1}, s{sT1}, s{sT2}")
    a(f"s_add_u32 s{sPARTr}, s{sT1}, {PART_OFF:#x}")
    a(f"s_lshl_b32 s{sT2}, s{sX}, 15")
    a(f"s_add_u32 s{sPARTw}, s{sPARTr}, s{sT2}")
    a(f"s_lshl_b32 s{sT1}, s{sT0}, 17")
    a(f"s_add_u32 s{sXPW}, s{sT1}, {XPART_OFF:#x}")
    a(f"s_lshl_b32 s{sT2}, s{sX}, 22")
    a(f"s_add_u32 s{sXPW}, s{sXPW}, s{sT2}")
    prof = Prof(a, va)
    vW, vTR, t0, t1 = weight_addr_setup(a, va, 2048, sB, True)
    vXP = va.get(); vXQ = va.get(); sXA = 84
    a(f"v_lshrrev_b32 v{t0}, 4, v0")
    a(f"v_min_u32 v{t0}, 1, v{t0}")
    a(f"v_lshlrev_b32 v{t0}, 28, v{t0}")
    a(f"v_lshl_add_u32 v{t0}, v0, 7, v{t0}")
    a(f"s_lshl_b32 s{sT0}, s{sJ}, 2")
    a(f"s_add_u32 s{sT0}, s{sT0}, s{sWV}")
    a(f"s_lshl_b32 s{sT0}, s{sT0}, 11")
    a(f"v_add_u32 v{vXP}, s{sT0}, v{t0}")
    for k in range(3):
        a(f"s_mov_b32 s{sXA}, {k << 16}")
        a(f"buffer_load_dword v{vXQ}, v{vXP}, {XS}, s{sXA} offen")
    for i in range(Cfg.o_wait):
        a("s_sleep 32")
    prof.mark(2)
    weight_dma(a, vW, 0, 0, 2048, sB)
    weight_dma(a, vW, 1, 1, 2048, sB)
    t2 = va.get(); vtmp = va.get()
    vL16 = va.get(); vPW = va.get(); vPF = va.get(); vMW = va.get(); vFL = va.get(); vZ = va.get()
    vSEN = va.get(4, 4)
    a(f"v_lshlrev_b32 v{vL16}, 4, v0")
    a(f"v_lshrrev_b32 v{t0}, 5, v0")
    a(f"v_and_b32 v{t1}, 15, v0")
    a(f"v_lshl_add_u32 v{t0}, v{t0}, 4, v{t1}")
    a(f"v_lshlrev_b32 v{t0}, 4, v{t0}")
    a(f"v_bfe_u32 v{t1}, v0, 4, 1")
    a(f"v_lshl_add_u32 v{vPW}, v{t1}, 13, v{t0}")
    a(f"s_lshl_b32 s{sT0}, s{sWV}, 10")
    a(f"s_add_u32 s{sT0}, s{sT0}, {PPL_}")
    a(f"v_add_u32 v{vPF}, s{sT0}, v{vL16}")
    a(f"s_lshl_b32 s{sT0}, s{sWV}, 11")
    a(f"s_add_u32 s{sT0}, s{sT0}, {VML}")
    a(f"v_add_u32 v{vMW}, s{sT0}, v{vL16}")
    for r in range(4):
        a(f"v_mov_b32 v{vSEN+r}, -1")
    a(f"v_mov_b32 v{vZ}, 0")
    a(f"v_min_u32 v{t0}, 1, v0")
    a(f"v_lshlrev_b32 v{vFL}, 28, v{t0}")
    vTWo = va.get()
    a(f"s_cmp_eq_u32 s{sWV}, 3")
    a(f"s_cselect_b32 s{sT0}, 0, 0x10000000")
    a(f"v_or_b32 v{vTWo}, s{sT0}, v{vFL}")
    PK = va.get(4, 4)
    vXS = va.get()
    a(f"v_bfe_u32 v{t0}, v0, 2, 2")
    a(f"v_lshlrev_b32 v{vXS}, 8, v{t0}")
    a(f"v_bfe_u32 v{t0}, v0, 4, 1")
    a(f"v_lshl_add_u32 v{vXS}, v{t0}, 7, v{vXS}")
    a(f"v_lshrrev_b32 v{t0}, 5, v0")
    a(f"v_lshl_add_u32 v{vXS}, v{t0}, 6, v{vXS}")
    a(f"v_and_b32 v{t0}, 3, v0")
    a(f"v_lshl_add_u32 v{vXS}, v{t0}, 4, v{vXS}")
    vIDX = va.get()
    idx_setup(a, vIDX, t0)

    PXR = va.get(48, 4)
    VM = PXR
    UA = va.get(32, 4)
    UX = va.get(32, 8); UM = va.get(16, 8)
    FR = PXR
    VO = va.get(8, 4); PPR = FR; XO = va.get(8, 4)
    ACC = UA
    WT = PXR
    assert UA == PXR + 48
    a(f"v_and_b32 v{t0}, 2, v0")
    a(f"v_cmp_eq_u32 s[92:93], 0, v{t0}")
    a(f"v_cmp_ne_u32 s[94:95], 0, v{t0}")
    for c in range(2):
        a(f"s_waitcnt vmcnt({16 if c == 0 else 0})")
        a("s_barrier")
        for ks in range(8):
            for t in range(2):
                for q in range(2):
                    d = (ks >> 1) * 16 + t * 8 + (ks & 1) * 4 + 2 * q
                    a(f"ds_read_b64_tr_b16 {vr(WT+d,2)}, v{vTR[c][q]} offset:{ks*8192 + 8*t}")
        a("s_waitcnt lgkmcnt(0)")
        for t in range(2):
            a(f"s_mov_b64 vcc, s[{92+2*t}:{93+2*t}]")
            for kb in range(4):
                for r in range(8):
                    A = WT + kb * 16 + r; B = A + 8
                    if t == 0:
                        a(f"v_cndmask_b32_dpp v{vtmp}, v{B}, v{A}, vcc quad_perm:[0,1,0,1] row_mask:0xf bank_mask:0xf")
                    else:
                        a(f"v_cndmask_b32_dpp v{vtmp}, v{A}, v{B}, vcc quad_perm:[2,3,2,3] row_mask:0xf bank_mask:0xf")
                    a(f"v_accvgpr_write_b32 a{c*64 + kb*16 + 8*t + r}, v{vtmp}")
                    a("s_nop 0")
    a("s_barrier")
    prof.mark(8)
    handshake_wait(a, mode, t0, t1, 8)
    prof.mark(9)

    def vm_loads():
        return [f"buffer_load_dwordx4 {vr(VO+4*b,4)}, v{vL16}, {WS}, s{sA} offen offset:{1024*b} sc1" for b in range(2)]
    def vm_slots():
        a(f"s_and_b32 s{sT0}, s{sS}, 3")
        a(f"s_lshl_b32 s{sT0}, s{sT0}, 11")
        a(f"s_add_u32 s{sA}, s{sT0}, s{sVM}")
    def vx_setup():
        a(f"s_add_u32 s{sT0}, s{sS}, 1")
        a(f"s_and_b32 s{sT0}, s{sT0}, {XP_MASK}")
        a(f"s_lshl_b32 s{sT0}, s{sT0}, 13")
        a(f"s_add_u32 s{sE}, s{sT0}, s{sVX}")
        a(f"s_add_u32 s{sF}, s{sE}, {2<<XP_SH:#x}")
    def vx_dma(pair):
        a(f"s_lshl_b32 m0, s{sWV}, 12")
        if pair:
            a("s_add_u32 m0, m0, 16384")
        a("s_nop 0")
        for i in range(4):
            a(f"buffer_load_dwordx4 v{vL16}, {WS}, s{sE+pair} offen offset:{1024*i} sc1 lds")
    def px_dma():
        a(f"s_mul_i32 m0, s{sWV}, 3072")
        a(f"s_add_u32 m0, m0, {PXL}")
        a("s_nop 0")
        for i in range(3):
            a(f"buffer_load_dwordx4 v{vL16}, {WS}, s{sG} offen offset:{1024*i} sc1 lds")
    def ux_all(dst, extra={}, mid=None):
        frs = [(hl, ks, rt) for hl in range(4) for ks in range(4) for rt in range(2)]
        DEPTH = 5; NR = 8
        def rd(f):
            hl, ks, rt = frs[f]
            a(f"ds_read_b128 {vr(FR+4*(f%NR),4)}, v{vL16} offset:{hl*8192 + rt*4096 + ks*1024}")
        def cvts(hl):
            base = UA + 16 * (hl & 1)
            out = []
            for t in range(2):
                for rt in range(2):
                    acc = base + 8 * rt + 4 * t
                    d = dst + 16 * t + 4 * hl + 2 * rt
                    out.append(f"v_cvt_pk_bf16_f32 v{d}, v{acc}, v{acc+1}")
                    out.append(f"v_cvt_pk_bf16_f32 v{d+1}, v{acc+2}, v{acc+3}")
            return out
        for f in range(DEPTH):
            rd(f)
        pend = []
        for f in range(32):
            hl, ks, rt = frs[f]
            if mid and f + DEPTH == 16:
                mid(f)
            a(f"s_waitcnt lgkmcnt({min(DEPTH-1, 31-f)})")
            if hl > 0 and f % 8 == 3:
                pend = cvts(hl - 1)
            for t in range(2):
                acc = UA + 16 * (hl & 1) + 8 * rt + 4 * t
                c = "0" if ks == 0 else vr(acc, 4)
                a(f"v_mfma_f32_16x16x32_bf16 {vr(acc,4)}, {vr(FR+4*(f%NR),4)}, {ar((2*hl+(ks>>1))*16+8*t+4*(ks&1),4)}, {c}")
                if t == 0 and f + DEPTH < 32:
                    rd(f + DEPTH)
                if t == 1:
                    for l in extra.get(f, []):
                        a(l)
                if pend:
                    a(pend.pop(0))
        return cvts(3)

    a(f"s_mov_b32 s{sS}, -1")
    vm_slots()
    poll(a, vm_loads(), range(VO, VO + 8, 2), vtmp, sleep=4)
    a("s_barrier")
    prof.mark(10)
    vx_setup()
    vx_dma(0)
    vx_dma(1)
    a("s_waitcnt vmcnt(0)")
    a("s_barrier")
    last = ux_all(UX)
    a.nop(8)
    for l in last:
        a(l)
    a(f"s_mov_b32 s{sS}, 0")
    dbg_time(a, 9)
    prof.mark(11)
    PQ = va.get(4, 4)
    PA = va.get(8, 4)
    LOOP = a.newlabel("or_loop")
    a.label(LOOP)
    for r in range(32):
        a(f"v_mov_b32 v{UA+r}, 0")
    for r in range(8):
        a(f"v_mov_b32 v{PA+r}, 0")
    vm_slots()
    vx_setup()
    a(f"s_and_b32 s{sT0}, s{sS}, 3")
    a(f"s_lshl_b32 s{sBb}, s{sT0}, 12")
    a(f"s_add_u32 s{sBb}, s{sBb}, s{sPP}")
    a(f"s_lshl_b32 s{sG}, s{sT0}, 14")
    a(f"s_add_u32 s{sG}, s{sG}, s{sPX}")
    a(f"s_lshl_b32 s{sC}, s{sT0}, 18")
    a(f"s_xor_b32 s{sD}, s{sC}, {2<<18:#x}")
    a(f"s_add_u32 s{sC}, s{sC}, s{sPARTw}")
    a(f"s_add_u32 s{sD}, s{sD}, s{sPARTw}")
    a(f"s_lshl_b32 s{sT4}, s{sT0}, 10")
    a(f"s_xor_b32 s{sT5}, s{sT4}, 2048")
    a(f"s_add_u32 s{sT4}, s{sT4}, s{sTW}")
    a(f"s_add_u32 s{sT5}, s{sT5}, s{sTW}")
    a(f"s_cmp_lt_u32 s{sS}, 63")
    a(f"s_cselect_b32 s{sNP}, 3, 0")
    if Cfg.o_idle:
        a(f"s_sleep {Cfg.o_idle}")
    prof.stamp(0, lite=True)
    a("s_waitcnt vmcnt(0)")
    poll2(a, vm_loads(), list(range(VO, VO + 8, 2)), vtmp, gap=56 // Cfg.vm_depth, depth=Cfg.vm_depth)
    prof.stamp(1)
    for b in range(2):
        a(f"ds_write_b128 v{vMW}, {vr(VO+4*b,4)} offset:{1024*b}")
    a(f"s_lshl_b32 m0, s{sWV}, 12")
    a("s_waitcnt lgkmcnt(0)")
    a("s_barrier")
    for k in range(8):
        a(f"ds_read_b128 {vr(VM+4*k,4)}, v{vL16} offset:{VML + 1024*k}")
    PP1 = f"buffer_load_dwordx4 {vr(PQ,4)}, v{vL16}, {WS}, s{sBb} offen sc1"
    def um_cvt(hl):
        out = []
        for t in range(2):
            acc = UA + 8 * hl + 4 * t
            out.append(f"v_cvt_pk_bf16_f32 v{UM+8*t+2*hl}, v{acc}, v{acc+1}")
            out.append(f"v_cvt_pk_bf16_f32 v{UM+8*t+2*hl+1}, v{acc+2}, v{acc+3}")
        return out
    def um_head(hl, fill, wait=True):
        for b in range(2):
            if wait:
                a(f"s_waitcnt lgkmcnt({7-2*hl-b})")
            for t in range(2):
                a(f"v_smfmac_f32_16x16x64_bf16 {vr(UA+8*hl+4*t,4)}, {vr(VM+8*hl+4*b,4)}, {ar((2*hl+b)*16+8*t,8)}, v{vIDX}")
                for l in fill[2 * b + t]:
                    a(l)
    VD = lambda i: f"buffer_load_dwordx4 v{vL16}, {WS}, s{sE} offen offset:{1024*i} sc1 lds"
    um_head(0, [[], [VD(0)], [], [VD(1)]])
    um_head(1, [[], [VD(2)], [], [VD(3)]])
    c0 = um_cvt(0)
    um_head(2, [[c0[0]], [c0[1]], [c0[2]], [c0[3]]])
    c1 = um_cvt(1)
    um_head(3, [[c1[0]], [PP1, c1[1]], [c1[2]], [c1[3]]])
    for l in um_cvt(2):
        a(l)
    a(f"s_mul_i32 m0, s{sWV}, 3072")
    a(f"s_add_u32 m0, m0, {PXL}")
    a("s_nop 1")
    for l in um_cvt(3):
        a(l)
    NL = a.newlabel("or_notlast"); PXW = a.newlabel("or_pxwait")
    prof.stamp(2, keep_m0=True)
    PXD = [f"buffer_load_dwordx4 v{vL16}, {WS}, s{sG} offen offset:{1024*i} sc1 lds" for i in range(3)]
    PL = a.newlabel("or_pp"); PD = a.newlabel("or_ppd")
    a(f"s_cmp_lt_u32 s{sWV}, s{sNP}")
    a(f"s_cbranch_scc1 {PL}")
    a("s_waitcnt vmcnt(0)")
    a(f"s_cmp_lt_u32 s{sS}, 63")
    a(f"s_cbranch_scc1 {PD}")
    poll(a, [f"buffer_load_dwordx4 {vr(PXR+4*i,4)}, v{vL16}, {WS}, s{sG} offen offset:{1024*i} sc1" for i in range(3)],
         list(range(PXR, PXR + 12, 2)), vtmp)
    a(f"v_add_u32 v{vtmp}, m0, v{vL16}")
    for i in range(3):
        a(f"ds_write_b128 v{vtmp}, {vr(PXR+4*i,4)} offset:{1024*i}")
    a("s_waitcnt lgkmcnt(0)")
    a(f"s_branch {PXW}")
    a.label(PL)
    a(PP1)
    a(f"s_sub_u32 s{sBUD}, s{sBUD}, 1")
    a(f"s_cbranch_scc1 {a.abort}")
    a("s_waitcnt vmcnt(1)")
    a(f"v_max3_u32 v{vtmp}, v{PQ}, v{PQ+1}, v{PQ+2}")
    a(f"v_max_u32 v{vtmp}, v{vtmp}, v{PQ+3}")
    a(f"ds_write_b128 v{vPF}, {vr(PQ,4)}")
    a(f"v_cmp_eq_u32 vcc, -1, v{vtmp}")
    a(f"s_cbranch_vccnz {PL}")
    prof.stamp(6, keep_m0=True)
    a.label(PD)
    a("s_waitcnt lgkmcnt(0)")
    a("s_barrier")
    for k in range(3):
        a(f"ds_read_b128 {vr(PPR+4*k,4)}, v{vL16} offset:{PPL_ + 1024*k}")
    TWS = f"buffer_store_dword v{vZ}, v{vTWo}, {WS}, s{sT4} offen {loc}"
    for k in range(3):
        a(f"s_waitcnt lgkmcnt({2-k})")
        for t in range(2):
            b = UX + 16 * t + 8 * k if k < 2 else UM + 8 * t
            a(f"v_smfmac_f32_16x16x64_bf16 {vr(PA+4*t,4)}, {vr(PPR+4*k,4)}, {vr(b,8)}, v{vIDX}")
            if t == 0:
                a(PXD[k])
    a(TWS)
    a.nop(7)
    for r in range(4):
        a(f"v_permlane32_swap_b32 v{PA+r}, v{PA+4+r}")
    for r in range(0, 4, 2):
        a(f"v_pk_add_f32 {vr(PA+r,2)}, {vr(PA+r,2)}, {vr(PA+4+r,2)}")
    a(f"v_cvt_pk_bf16_f32 v{PK}, v{PA}, v{PA+1}")
    a(f"v_cvt_pk_bf16_f32 v{PK+1}, v{PA+2}, v{PA+3}")
    a(f"v_cvt_pk_bf16_f32 v{PK+3}, v{PA+2}, v{PA+3}")
    a(f"v_min_u32 v{PK+2}, -2, v{PK}")
    a(f"v_min_u32 v{PK}, -2, v{PK}")
    a(f"v_permlane16_swap_b32 v{PK+1}, v{PK+3}")
    a("s_nop 0")
    a(f"v_permlane16_swap_b32 v{PK}, v{PK+2}")
    a(f"buffer_store_dwordx4 {vr(PK,4)}, v{vPW}, {WS}, s{sC} offen sc1")
    prof.stamp(4, lite=True)
    a("s_waitcnt vmcnt(1)")
    a.label(PXW)
    RETRY = a.newlabel("or_pxretry"); PXOK = a.newlabel("or_pxok")
    a("s_barrier")
    vx_dma(1)
    a.label(RETRY)
    order = [(ks, rt) for ks in range(6) for rt in range(2)]
    for ks, rt in order:
        k = 6 * rt + ks
        a(f"ds_read_b128 {vr(PXR+4*k,4)}, v{vL16} offset:{PXL + 1024*k}")
    a(f"v_mov_b32 v{vtmp}, 0")
    for n, (ks, rt) in enumerate(order):
        k = 6 * rt + ks
        a(f"s_waitcnt lgkmcnt({11-n})")
        for t in range(2):
            u = UX + 16 * t + 4 * ks if ks < 4 else UM + 8 * t + 4 * (ks - 4)
            acc = ACC + 8 * rt + 4 * t
            c = "0" if ks == 0 else vr(acc, 4)
            a(f"v_mfma_f32_16x16x32_bf16 {vr(acc,4)}, {vr(u,4)}, {vr(PXR+4*k,4)}, {c}")
        a(f"v_max3_u32 v{vtmp}, v{vtmp}, v{PXR+4*k}, v{PXR+4*k+2}")
    a(f"v_cmp_eq_u32 vcc, -1, v{vtmp}")
    a(f"s_cbranch_vccz {PXOK}")
    a("s_barrier")
    px_dma()
    a("s_waitcnt vmcnt(0)")
    a("s_barrier")
    a(f"s_sub_u32 s{sBUD}, s{sBUD}, 1")
    a(f"s_cbranch_scc0 {RETRY}")
    a("s_endpgm")
    a.label(PXOK)
    a(f"s_lshl_b32 s{sT1}, s{sS}, 11")
    a(f"s_add_u32 s{sT1}, s{sT1}, s{sXPW}")
    a.nop(4)
    for rt in range(2):
        for t in range(2):
            acc = ACC + 8 * rt + 4 * t
            a(f"v_cvt_pk_bf16_f32 v{XO+4*rt+t}, v{acc}, v{acc+1}")
            a(f"v_cvt_pk_bf16_f32 v{XO+4*rt+2+t}, v{acc+2}, v{acc+3}")
    XST = [f"buffer_store_dwordx4 {vr(XO+4*rt,4)}, v{vXS}, {WS}, s{sT1} offen offset:{1024*rt} sc1 {'nt' if Cfg.xs_nt else ''}" for rt in range(2)]
    for r in range(0, 8, 2):
        a(f"v_min_u32 v{XO+r}, -2, v{XO+r}")
    prof.stamp(5)
    TAIL = a.newlabel("or_tail")
    a(f"s_cmp_eq_u32 s{sS}, 63")
    a(f"s_cbranch_scc1 {TAIL}")
    late = XST + [f"buffer_store_dwordx4 {vr(vSEN,4)}, v{vPW}, {WS}, s{sD} offen sc1",
                  f"buffer_store_dword v{vSEN}, v{vTWo}, {WS}, s{sT5} offen {loc}"]

    ex = {Cfg.st_at + 2 * i: [l] for i, l in enumerate(late)}
    def mid(f):
        a(f"s_waitcnt vmcnt({sum(1 for k in ex if k < f)})")
        a("s_barrier")
    last = ux_all(UX, ex, mid)
    a.nop(8)
    for l in last:
        a(l)
    prof.stamp(7)
    a(f"s_add_u32 s{sS}, s{sS}, 1")
    a(f"s_branch {LOOP}")
    a.label(TAIL)
    prof.mark(19)
    for l in XST:
        a(l)
    prof.stamp(7)
    dbg_time(a, 10)
    prof.mark(20)
    prof.dump()
    a("s_endpgm")
```

```python
from gen import *
from gen_mp import MemPass

def role_proj(a, mode):
    loc = "" if mode == 0 else "sc1"
    va = VAlloc()
    sXP, sXM = 76, 80
    prof = Prof(a, va)
    MP = MemPass(a, va, mode, sSLOT, prof, False)
    prof.mark(2)
    MP.start_weights()
    MP.setup()
    t0, t1, t2, vL16, sTY = MP.t0, MP.t1, MP.t2, MP.vL16, MP.sTY
    a(f"s_lshl_b32 s{sXP}, s{MP.sTH}, {XP_SH}")
    a(f"s_lshl_b32 s{sT3}, s{sWV}, 10")
    a(f"s_add_u32 s{sXP}, s{sXP}, s{sT3}")
    vXD = va.get()
    a(f"v_lshrrev_b32 v{t0}, 3, v0")
    a(f"v_lshrrev_b32 v{t1}, 4, v0")
    a(f"s_and_b32 s{sT3}, s{sWV}, 1")
    a(f"s_lshl_b32 s{sT3}, s{sT3}, 2")
    a(f"v_add_u32 v{t1}, s{sT3}, v{t1}")
    a(f"v_and_b32 v{t2}, 7, v0")
    a(f"v_xor_b32 v{t1}, v{t1}, v{t2}")
    a(f"v_lshlrev_b32 v{t1}, 4, v{t1}")
    a(f"s_lshl_b32 s{sT3}, s{sWV}, 3")
    a(f"v_add_u32 v{t0}, s{sT3}, v{t0}")
    a(f"v_lshl_add_u32 v{vXD}, v{t0}, 11, v{t1}")
    vXR = va.get(8)
    a(f"v_bfe_u32 v{t0}, v0, 3, 1")
    a(f"v_lshlrev_b32 v{t0}, 10, v{t0}")
    a(f"v_and_b32 v{t1}, 7, v0")
    a(f"v_lshl_add_u32 v{t0}, v{t1}, 7, v{t0}")
    a(f"v_bfe_u32 v{t1}, v0, 1, 3")
    a(f"v_lshrrev_b32 v{t2}, 4, v0")
    a(f"v_xor_b32 v{t1}, v{t1}, v{t2}")
    a(f"v_lshl_add_u32 v{t0}, v{t1}, 4, v{t0}")
    for G in range(4):
        a(f"s_add_u32 s{sT3}, s{sWV}, {G}")
        a(f"s_and_b32 s{sT3}, s{sT3}, 3")
        a(f"s_lshl_b32 s{sT4}, s{sT3}, 14")
        a(f"v_add_u32 v{vXR+2*G}, s{sT4}, v{t0}")
        a(f"v_xor_b32 v{vXR+2*G+1}, 64, v{vXR+2*G}")
    vXP = va.get(); vXQ = va.get(); sXA = 82
    a(f"v_lshrrev_b32 v{t0}, 4, v0")
    a(f"s_lshr_b32 s{sT0}, s{sSLOT}, 3")
    a(f"v_or_b32 v{t0}, s{sT0}, v{t0}")
    a(f"v_min_u32 v{t0}, 1, v{t0}")
    a(f"v_lshlrev_b32 v{t0}, 28, v{t0}")
    a(f"v_lshl_add_u32 v{t0}, v0, 7, v{t0}")
    a(f"s_lshl_b32 s{sT0}, s{sSLOT}, 2")
    a(f"s_add_u32 s{sT0}, s{sT0}, s{sWV}")
    a(f"s_lshl_b32 s{sT0}, s{sT0}, 11")
    a(f"v_add_u32 v{vXP}, s{sT0}, v{t0}")
    def x0():
        a(f"s_lshl_b32 s{sXM}, s{sWV}, 10")
        a(f"s_mov_b32 s{sXM+1}, 0")
        for kb in range(16):
            a(f"s_add_u32 m0, s{sXM}, {kb*(4096-128)}")
            a("s_nop 0")
            a(f"buffer_load_dwordx4 v{vXD}, {XS}, s{sXM+1} offen offset:{kb*128} lds")
    MP.load_weights(x0)
    prof.mark(7)
    M2 = va.get(48, 4)
    ACC = va.get(16, 4); FR = va.get(32, 4); OUTR = va.get(8, 4)
    a(f"s_mov_b32 s{sS}, -2")
    a(f"s_add_u32 s{MP.sSL}, s{MP.sPM}, {2*2048}")
    LOOP = a.newlabel("proj_loop"); CRIT = a.newlabel("proj_crit"); XPASS = a.newlabel("proj_x"); END = a.newlabel("proj_end")
    a.label(LOOP)
    a(f"s_cmp_ge_i32 s{sS}, 0")
    a(f"s_cbranch_scc1 {CRIT}")
    a("s_waitcnt vmcnt(0)")
    a("s_barrier")
    a(f"s_cmp_eq_i32 s{sS}, -2")
    a(f"s_cbranch_scc1 {XPASS}")
    prof.mark(8)
    handshake_wait(a, mode, t0, t1, 8)
    prof.mark(9)
    a(f"s_add_u32 s{sT0}, s{MP.sPM}, {3*2048}")
    a(f"buffer_store_dwordx2 {vr(MP.PK,2)}, v{MP.vPMa}, {WS}, s{sT0} offen {loc}")
    a(f"s_branch {XPASS}")
    HALF = a.newlabel("proj_half"); PUB = a.newlabel("proj_pub")
    a.label(HALF)
    MP.gather(ACC)
    prof.stamp(1)
    MP.compute(ACC, M2, (0,))
    prof.gap(2, Cfg.g_pm)
    a(f"s_branch {PUB}")
    a.label(CRIT)
    prof.stamp(4, True, lite=True)
    prof.stamp(0, lite=True)
    MP.address()
    MP.first_loads()
    a(f"s_cmp_eq_u32 s{sTY}, 2")
    a(f"s_cbranch_scc0 {HALF}")
    MP.gather(ACC)
    prof.stamp(1)
    MP.compute(ACC, M2, (0, 1))
    prof.gap(2, Cfg.g_pm)
    a.label(PUB)
    MP.finish(False)
    a(f"s_cmp_ge_i32 s{sS}, 62")
    a(f"s_cbranch_scc1 {END}")
    a.label(XPASS)
    a(f"s_add_u32 s{sT0}, s{sS}, 3")
    a(f"s_min_u32 s{sT1}, s{sT0}, 63")
    a(f"s_lshl_b32 s{sXM+1}, s{sT1}, 16")
    a(f"s_and_b32 s{sT0}, s{sT0}, 1")
    a(f"s_lshl_b32 s{sT0}, s{sT0}, 16")
    a(f"s_lshl_b32 s{sXM}, s{sWV}, 10")
    a(f"s_add_u32 s{sXM}, s{sXM}, s{sT0}")
    a(f"s_add_u32 s{sXA}, s{sS}, 5")
    a(f"s_min_u32 s{sXA}, s{sXA}, 63")
    a(f"s_lshl_b32 s{sXA}, s{sXA}, 16")
    DEPTH = 6
    DE = Cfg.x_every
    frs = [(ks, rt) for ks in range(32) for rt in range(2)]
    def rd(f):
        ks, rt = frs[f]
        G = ks >> 3
        a(f"ds_read_b128 {vr(FR+4*(f%8),4)}, v{vXR+2*G+(ks&1)} offset:{((ks>>1)&3)*4096 + rt*2048}")
    for f in range(DEPTH):
        rd(f)
    for f in range(64):
        ks, rt = frs[f]
        g = f - Cfg.x_from
        dm = (g >= 0 and g % DE == 1 and g // DE < 16)
        a(f"s_waitcnt lgkmcnt({min(DEPTH-1, 63-f)})")
        if dm:
            a(f"s_add_u32 m0, s{sXM}, {(g//DE)*(4096-128)}")
        for t in range(2):
            acc = ACC + 8 * rt + 4 * t
            c = "0" if ks == 0 else vr(acc, 4)
            a(f"v_mfma_f32_16x16x32_bf16 {vr(acc,4)}, {ar((ks>>1)*16+8*t+4*(ks&1),4)}, {vr(FR+4*(f%8),4)}, {c}")
            if t == 0 and f + DEPTH < 64:
                rd(f + DEPTH)
            if t == 1 and f == 10 and not Cfg.no_xpf:
                a(f"buffer_load_dword v{vXQ}, v{vXP}, {XS}, s{sXA} offen")
            if t == 1 and f == 8:
                MP.reset()
            if t == 1 and dm:
                a(f"buffer_load_dwordx4 v{vXD}, {XS}, s{sXM+1} offen offset:{(g//DE)*128} lds")
    for k in range(8):
        a(f"v_xor_b32 v{vXR+k}, 0x10000, v{vXR+k}")
    a(f"s_add_u32 s{sT0}, s{sS}, 2")
    a(f"s_and_b32 s{sT0}, s{sT0}, {XP_MASK}")
    a(f"s_lshl_b32 s{sT0}, s{sT0}, 13")
    a(f"s_add_u32 s{sT0}, s{sT0}, s{sXP}")
    a(f"s_add_u32 s{sT1}, s{sT0}, 4096")
    for rt in range(2):
        for t in range(2):
            acc = ACC + 8 * rt + 4 * t
            a(f"v_cvt_pk_bf16_f32 v{OUTR+4*rt+2*t}, v{acc}, v{acc+1}")
            a(f"v_cvt_pk_bf16_f32 v{OUTR+4*rt+2*t+1}, v{acc+2}, v{acc+3}")
    NS = a.newlabel("proj_noswap")
    a(f"s_cmp_eq_u32 s{sTY}, 2")
    a(f"s_cbranch_scc0 {NS}")
    a(f"v_swap_b32 v{OUTR+1}, v{OUTR+2}")
    a(f"v_swap_b32 v{OUTR+5}, v{OUTR+6}")
    a.label(NS)
    for rt in range(2):
        a(f"buffer_store_dwordx4 {vr(OUTR+4*rt,4)}, v{vL16}, {WS}, s{sT0+rt} offen {loc}")
    prof.stamp(5, True)
    prof.stamp(3)
    a.label(END)
    a("s_waitcnt vmcnt(0)")
    a(f"s_add_u32 s{sS}, s{sS}, 1")
    a(f"s_cmp_lt_i32 s{sS}, 64")
    a(f"s_cbranch_scc1 {LOOP}")
    prof.mark(20)
    prof.dump()
    a("s_endpgm")
```

```python
from gen import *

class RDuty:
    def __init__(self, a, va, mode, sJW, sbase, prof):
        self.a, self.prof = a, prof
        self.loc = loc = "" if mode == 0 else "sc1"
        sPARTr, sMEMw, sPP, sR0, sR1, sMp, sMr, sTW = range(sbase, sbase + 8)
        self.s = (sPARTr, sMEMw, sPP, sR0, sR1, sMp, sMr, sTW)
        t0 = va.get(); t1 = va.get(); t2 = va.get()
        vPR = va.get(); vME = va.get(); vTW = va.get(); vONE = va.get()
        SEL = va.get(8, 4); PR = va.get(16, 4); ACC = va.get(4, 4); PK = va.get(2); vSEN = va.get(2)
        self.v = (t0, t1, vPR, vME, vTW, SEL, PR, ACC, PK, vSEN)
        srd(a, S_AUX, P_MEM0, 16384)
        a(f"s_and_b32 s{sT1}, s{sJW}, 15")
        a(f"s_lshl_b32 s{sT1}, s{sT1}, 9")
        a(f"s_lshr_b32 s{sT2}, s{sJW}, 4")
        a(f"s_lshl_b32 s{sT2}, s{sT2}, 14")
        a(f"s_add_u32 s{sT1}, s{sT1}, s{sT2}")
        a(f"s_add_u32 s{sPARTr}, s{sT1}, {PART_OFF:#x}")
        a(f"s_and_b32 s{sT1}, s{sX}, 4")
        a(f"s_lshl_b32 s{sT1}, s{sT1}, 15")
        a(f"s_add_u32 s{sPARTr}, s{sPARTr}, s{sT1}")
        a(f"s_lshl_b32 s{sT1}, s{sJW}, 9")
        a(f"s_lshl_b32 s{sT2}, s{sX}, 16")
        a(f"s_add_u32 s{sMEMw}, s{sT1}, s{sT2}")
        a(f"s_add_u32 s{sMEMw}, s{sMEMw}, {MEM_OFF:#x}")
        a(f"s_lshl_b32 s{sPP}, s{sX}, 12")
        a(f"s_add_u32 s{sPP}, s{sPP}, {TW_OFF:#x}")
        a(f"v_mov_b32 v{vSEN}, -1")
        a(f"v_mov_b32 v{vSEN+1}, -1")
        a(f"v_lshrrev_b32 v{t0}, 4, v0")
        a(f"v_lshlrev_b32 v{t0}, 15, v{t0}")
        a(f"v_and_b32 v{t1}, 15, v0")
        a(f"v_lshl_add_u32 v{vPR}, v{t1}, 4, v{t0}")
        a(f"v_and_b32 v{t0}, 31, v0")
        a(f"v_and_b32 v{vTW}, 7, v0")
        a(f"v_lshlrev_b32 v{vTW}, 7, v{vTW}")
        a(f"v_lshlrev_b32 v{t0}, 4, v{t0}")
        a(f"v_lshrrev_b32 v{t1}, 5, v0")
        a(f"v_lshl_add_u32 v{vME}, v{t1}, 3, v{t0}")
        for sl in range(1, 4):
            a(f"s_add_u32 s{sT0}, s{sMEMw}, {sl*16384}")
            a(f"buffer_store_dwordx2 {vr(vSEN,2)}, v{vME}, {WS}, s{sT0} offen {loc}")
        a(f"v_and_b32 v{t0}, 7, v0")
        a(f"v_lshlrev_b32 v{t0}, 11, v{t0}")
        a(f"v_bfe_u32 v{t1}, v0, 4, 1")
        a(f"v_lshl_add_u32 v{t0}, v{t1}, 5, v{t0}")
        a(f"v_lshrrev_b32 v{t1}, 5, v0")
        a(f"v_lshl_add_u32 v{t0}, v{t1}, 4, v{t0}")
        a(f"v_bfe_u32 v{t1}, v0, 3, 1")
        a(f"v_lshl_add_u32 v{t0}, v{t1}, 2, v{t0}")
        a(f"s_lshl_b32 s{sT0}, s{sJW}, 6")
        a(f"buffer_load_dword v{PK}, v{t0}, {sr(S_AUX,4)}, s{sT0} offen")
        a(f"buffer_load_dword v{PK+1}, v{t0}, {sr(S_AUX,4)}, s{sT0} offen offset:8")
        a(f"v_and_b32 v{t0}, 15, v0")
        a(f"v_and_b32 v{t1}, 1, v0")
        a(f"v_lshlrev_b32 v{t1}, 4, v{t1}")
        a(f"v_mov_b32 v{t2}, 0x3f80")
        a(f"v_lshlrev_b32 v{t1}, v{t1}, v{t2}")
        a(f"v_lshrrev_b32 v{t0}, 1, v{t0}")
        for k in range(8):
            a(f"v_cmp_eq_u32 vcc, {k}, v{t0}")
            a("s_nop 1")
            a(f"v_cndmask_b32 v{SEL+k}, 0, v{t1}, vcc")
        a("s_waitcnt vmcnt(0)")
        a(f"v_min_u32 v{PK}, -2, v{PK}")
        a(f"v_min_u32 v{PK+1}, -2, v{PK+1}")
        a(f"buffer_store_dwordx2 {vr(PK,2)}, v{vME}, {WS}, s{sMEMw} offen {loc}")
        a(f"v_min_u32 v{vONE}, 1, v0")
        a(f"v_lshlrev_b32 v{vONE}, 28, v{vONE}")
        self.sJW, self.vONE = sJW, vONE

    def choose(self):
        a = self.a
        a(f"s_and_b32 s{sT0}, s{sT0}, 2")
        a(f"s_lshl_b32 s{sT0}, s{sT0}, 12")
        a(f"s_add_u32 s{self.s[0]}, s{self.s[0]}, s{sT0}")

    def setup(self):
        a = self.a
        if Cfg.profile:
            a(f"s_sub_u32 m0, s{sS}, 1")
            a("s_and_b32 m0, m0, 63")
            a("s_waitcnt lgkmcnt(0)")
            a(f"v_writelane_b32 v{self.prof.vd+6}, s98, m0")
        sPARTr, sMEMw, sPP, sR0, sR1, sMp, sMr, sTW = self.s
        a(f"s_and_b32 s{sT0}, s{sS}, 3")
        a(f"s_lshl_b32 s{sTW}, s{sT0}, 10")
        a(f"s_add_u32 s{sTW}, s{sTW}, s{sPP}")
        a(f"s_lshl_b32 s{sR0}, s{sT0}, 18")
        a(f"s_add_u32 s{sR0}, s{sR0}, s{sPARTr}")
        a(f"s_xor_b32 s{sR1}, s{sR0}, {0 if Cfg.exp_half == 1 else 131072}")
        if Cfg.exp_half == 2:
            a(f"s_mov_b32 s{sR0}, s{sR1}")
        a(f"s_add_u32 s{sMp}, s{sS}, 1")
        a(f"s_and_b32 s{sMp}, s{sMp}, 3")
        a(f"s_lshl_b32 s{sMp}, s{sMp}, 14")
        a(f"s_xor_b32 s{sMr}, s{sMp}, {2<<14:#x}")
        a(f"s_add_u32 s{sMp}, s{sMp}, s{sMEMw}")
        a(f"s_add_u32 s{sMr}, s{sMr}, s{sMEMw}")

    def watch(self):
        a, prof = self.a, self.prof
        sPARTr, sMEMw, sPP, sR0, sR1, sMp, sMr, sTW = self.s
        t0, t1, vPR, vME, vTW, SEL, PR, ACC, PK, vSEN = self.v
        a("s_waitcnt vmcnt(0)")
        a("s_mov_b64 exec, 0xff")
        poll2(a, [f"buffer_load_dword v{t1}, v{vTW}, {WS}, s{sTW} offen sc1"], [t1], t0, gap=56 // Cfg.w_depth, depth=Cfg.w_depth)
        a("s_mov_b64 exec, -1")
        prof.stamp(5)
        if Cfg.r_delay:
            a(f"s_sleep {Cfg.r_delay}")

    def step(self, after=None):
        a, prof, loc = self.a, self.prof, self.loc
        sPARTr, sMEMw, sPP, sR0, sR1, sMp, sMr, sTW = self.s
        t0, t1, vPR, vME, vTW, SEL, PR, ACC, PK, vSEN = self.v
        prof.stamp(3)
        L = a.newlabel("rpoll"); F = a.newlabel("rfirst")
        def ld(pg):
            for hf in range(2):
                a(f"buffer_load_dwordx4 {vr(PR+8*pg+4*hf,4)}, v{vPR}, {WS}, s{sR0+pg} offen offset:{256*hf} sc1")
        if Cfg.r_late:
            E = a.newlabel("rearly")
            a(f"s_cmp_lt_u32 s{sWV}, 2")
            a(f"s_cbranch_scc1 {E}")
            a.nop(Cfg.r_late)
            a.label(E)
        ld(0)
        if Cfg.r_split:
            a.nop(Cfg.r_split)
        a(f"s_branch {F}")
        a.label(L)
        a("s_mov_b64 exec, vcc")
        ld(0)
        a.label(F)
        ld(1)
        a("s_mov_b64 exec, -1")
        a(f"s_sub_u32 s{sBUD}, s{sBUD}, 1")
        a(f"s_cbranch_scc1 {a.abort}")
        for i in range(4):
            a(f"s_waitcnt vmcnt({3-i})")
            if i == 1:
                a(f"v_max_u32 v{t0}, v{PR}, v{PR+4}")
            if i == 3:
                a(f"v_max3_u32 v{t0}, v{t0}, v{PR+8}, v{PR+12}")
            c = "0" if i == 0 else vr(ACC, 4)
            a(f"v_mfma_f32_16x16x32_bf16 {vr(ACC,4)}, {vr(PR+4*i,4)}, {vr(SEL+4*(i&1),4)}, {c}")
        a(f"v_cmp_eq_u32 vcc, -1, v{t0}")
        a(f"s_cbranch_vccnz {L}")
        prof.stamp(4)
        a.nop(6)
        a(f"v_cvt_pk_bf16_f32 v{PK}, v{ACC}, v{ACC+1}")
        a(f"v_cvt_pk_bf16_f32 v{PK+1}, v{ACC+2}, v{ACC+3}")
        a(f"v_min_u32 v{PK}, -2, v{PK}")
        a(f"buffer_store_dwordx2 {vr(PK,2)}, v{vME}, {WS}, s{sMp} offen {loc}")
        if Cfg.profile:
            a("s_memrealtime s[98:99]")
        if after:
            after()
        if Cfg.profile:
            self.pending = True
        if Cfg.r_bar2:
            a("s_barrier")

    def reset(self):
        a = self.a
        sPARTr, sMEMw, sPP, sR0, sR1, sMp, sMr, sTW = self.s
        t0, t1, vPR, vME, vTW, SEL, PR, ACC, PK, vSEN = self.v
        a(f"buffer_store_dwordx2 {vr(vSEN,2)}, v{vME}, {WS}, s{sMr} offen {self.loc}")
```

```python
from gen import *
from gen_r import RDuty
from gen_mp import MemPass

SCL = 128 ** -0.5 * math.log2(math.e)

def role_t(a, mode):
    loc = "" if mode == 0 else "sc1"
    va = VAlloc()
    sQM, sKM, sQX, sKX, sPO, sHL, sA, sBq, sC, sD, sSC, sJW = 72, 73, 74, 75, 76, 77, 78, 79, 80, 81, 82, 84
    a(f"s_sub_u32 s{sJW}, s{sSLOT}, 20")
    a(f"s_and_b32 s{sHL}, s{sJW}, 3")
    a(f"s_lshl_b32 s{sJW}, s{sJW}, 2")
    a(f"s_add_u32 s{sJW}, s{sJW}, s{sWV}")
    a(f"s_lshl_b32 s{sT2}, s{sX}, 2")
    a(f"s_add_u32 s{sT1}, s{sHL}, s{sT2}")
    a(f"s_lshl_b32 s{sQM}, s{sT1}, 13")
    a(f"s_add_u32 s{sQM}, s{sQM}, {PM_OFF:#x}")
    a(f"s_add_u32 s{sKM}, s{sQM}, {32*8192}")
    a(f"s_lshl_b32 s{sQX}, s{sT1}, {XP_SH}")
    a(f"s_add_u32 s{sKX}, s{sQX}, {32<<XP_SH:#x}")
    a(f"s_mov_b32 s{sSC}, {f32bits(SCL):#x}")
    a(f"s_mov_b32 s{sSC+1}, {f32bits(SCL):#x}")
    prof = Prof(a, va)
    R = RDuty(a, va, mode, sJW, 85, prof)
    t0 = va.get(); t1 = va.get(); t2 = va.get(); vtmp = va.get()
    vL16 = va.get(); vMO = va.get(); vMX = va.get(); vO1 = va.get(); vO2 = va.get()
    vSEN = va.get(4, 4)
    KX = va.get(32, 4); Q = va.get(16, 4); D = va.get(12, 4)
    MA = R.v[6]
    M2 = va.get(48, 4); KM = M2; E = M2 + 16; PK = va.get(6, 4)
    CI = va.get(4, 4)
    vm = va.get(2); vs = va.get(2); vs2 = va.get(); vNEG = va.get(); vLIM = va.get()
    a(f"v_lshlrev_b32 v{vL16}, 4, v0")
    a(f"v_lshrrev_b32 v{t0}, 4, v0")
    a(f"v_lshlrev_b32 v{t0}, 7, v{t0}")
    a(f"v_and_b32 v{t1}, 7, v0")
    a(f"v_lshl_add_u32 v{vMO}, v{t1}, 4, v{t0}")
    a(f"v_bfe_u32 v{t0}, v0, 3, 1")
    a(f"v_lshl_add_u32 v{vMX}, v{t0}, 18, v{vMO}")
    for r in range(4):
        a(f"v_mov_b32 v{vSEN+r}, -1")
    a(f"s_lshl_b32 s{sT0}, s{sX}, 15")
    a(f"s_lshl_b32 s{sT1}, s{sJW}, 10")
    a(f"s_add_u32 s{sT0}, s{sT0}, s{sT1}")
    for ty in range(3):
        a(f"s_add_u32 s{sT1}, s{sT0}, {PM_OFF + ty*32*8192:#x}")
        a(f"buffer_store_dwordx4 {vr(vSEN,4)}, v{vL16}, {WS}, s{sT1} offen {loc}")
    for sl in range(4):
        a(f"s_add_u32 s{sT1}, s{sT0}, {PART_OFF + sl*262144:#x}")
        a(f"buffer_store_dwordx4 {vr(vSEN,4)}, v{vL16}, {WS}, s{sT1} offen sc1")
    a(f"s_lshl_b32 s{sT1}, s{sT0}, 7")
    a(f"s_add_u32 s{sT1}, s{sT1}, {XPART_OFF + 62*2048:#x}")
    for k in range(4):
        a(f"buffer_store_dwordx4 {vr(vSEN,4)}, v{vL16}, {WS}, s{sT1} offen offset:{1024*k} sc1")
    vPG = va.get(); vPV = va.get(); sPG = 30
    a(f"s_cmp_eq_u32 s{sJW}, 18")
    a(f"s_cselect_b32 s{sT1}, 0, 0x10000000")
    a(f"v_or_b32 v{vPG}, s{sT1}, v{R.vONE}")
    a(f"v_mov_b32 v{vPV}, 0")
    a(f"s_lshl_b32 s{sPG}, s{sX}, 7")
    a(f"s_add_u32 s{sPG}, s{sPG}, {PROG_OFF:#x}")
    a(f"buffer_store_dword v{vPV}, v{vPG}, {WS}, s{sPG} offen {loc}")
    a(f"s_lshr_b32 s{sT0}, s{sT0}, 3")
    a(f"s_add_u32 s{sT1}, s{sT0}, {TW_OFF:#x}")
    a(f"buffer_store_dword v{vSEN}, v{R.vONE}, {WS}, s{sT1} offen {loc}")
    XW = a.newlabel("t_xw"); JOIN = a.newlabel("t_join")
    a(f"s_cmp_lt_u32 s{sSLOT}, 24")
    a(f"s_cbranch_scc0 {XW}")
    a(f"v_and_b32 v{t0}, 15, v0")
    a(f"v_lshlrev_b32 v{t0}, 4, v{t0}")
    a(f"v_bfe_u32 v{t1}, v0, 4, 1")
    a(f"v_lshl_add_u32 v{t0}, v{t1}, 3, v{t0}")
    a(f"v_lshrrev_b32 v{t1}, 5, v0")
    a(f"v_lshl_add_u32 v{t2}, v{t1}, 8, v{t0}")
    a(f"s_lshl_b32 s{sT0}, s{sHL}, 9")
    a(f"v_add_u32 v{vO1}, s{sT0}, v{t2}")
    a(f"s_lshr_b32 s{sT0}, s{sHL}, 1")
    a(f"s_lshl_b32 s{sT0}, s{sT0}, 9")
    a(f"s_and_b32 s{sT1}, s{sHL}, 1")
    a(f"s_lshl_b32 s{sT1}, s{sT1}, 2")
    a(f"s_add_u32 s{sT0}, s{sT0}, s{sT1}")
    a(f"s_add_u32 s{sT0}, s{sT0}, 2048")
    a(f"v_add_u32 v{vO2}, s{sT0}, v{t0}")
    a(f"v_xor_b32 v{t1}, 1, v{t1}")
    a(f"v_lshl_add_u32 v{vO2}, v{t1}, 28, v{vO2}")
    a(f"v_mov_b32 v{t0}, 0xff800000")
    a(f"v_cmp_gt_u32 vcc, 32, v0")
    a("s_nop 1")
    for r in range(4):
        a(f"v_cndmask_b32 v{CI+r}, 0, v{t0}, vcc")
    a(f"s_lshl_b32 s{sPO}, s{sX}, 14")
    a(f"s_add_u32 s{sPO}, s{sPO}, {PP_OFF:#x}")
    def pp_store(r2, r1, so):
        a(f"buffer_store_dwordx2 {vr(r2,2)}, v{vO1}, {WS}, s{so} offen {loc}")
        a(f"buffer_store_dword v{r1}, v{vO2}, {WS}, s{so} offen {loc}")
        a(f"buffer_store_dword v{r1}, v{vO2}, {WS}, s{so} offen offset:256 {loc}")
    a(f"s_cmp_eq_u32 s{sWV}, 0")
    a(f"s_cbranch_scc0 {JOIN}")
    for sl in range(4):
        a(f"s_add_u32 s{sT0}, s{sPO}, {sl*4096}")
        pp_store(vSEN, vSEN, sT0)
    a(f"s_branch {JOIN}")
    a.label(XW)
    a(f"s_and_b32 s{sT2}, s{sWV}, 1")
    a(f"s_mul_i32 s{sT3}, s{sT2}, 6144")
    a(f"s_lshl_b32 s{sT0}, s{sHL}, 10")
    a(f"s_add_u32 s{sT0}, s{sT0}, s{sT3}")
    a(f"v_add_u32 v{vO1}, s{sT0}, v{vL16}")
    a(f"s_lshr_b32 s{sT0}, s{sHL}, 1")
    a(f"s_lshl_b32 s{sT0}, s{sT0}, 10")
    a(f"s_and_b32 s{sT1}, s{sHL}, 1")
    a(f"s_lshl_b32 s{sT1}, s{sT1}, 3")
    a(f"s_add_u32 s{sT0}, s{sT0}, s{sT1}")
    a(f"s_add_u32 s{sT0}, s{sT0}, s{sT3}")
    a(f"s_add_u32 s{sT0}, s{sT0}, 4096")
    a(f"v_add_u32 v{vO2}, s{sT0}, v{vL16}")
    a(f"s_lshl_b32 s{sT0}, s{sT2}, 4")
    a(f"v_and_b32 v{t0}, 15, v0")
    a(f"v_add_u32 v{t0}, s{sT0}, v{t0}")
    a(f"v_lshrrev_b32 v{t1}, 4, v0")
    a(f"v_lshlrev_b32 v{t1}, 2, v{t1}")
    a(f"v_sub_u32 v{vLIM}, v{t0}, v{t1}")
    a(f"v_mov_b32 v{vNEG}, {f32bits(-1e9 / (128 ** -0.5)):#x}")
    a(f"s_lshl_b32 s{sT2}, s{sT2}, 12")
    a(f"s_add_u32 s{sQX}, s{sQX}, s{sT2}")
    a(f"s_lshl_b32 s{sPO}, s{sX}, 16")
    a(f"s_add_u32 s{sPO}, s{sPO}, {PX_OFF:#x}")
    a(f"s_cmp_lt_u32 s{sWV}, 2")
    a(f"s_cbranch_scc0 {JOIN}")
    for sl in range(4):
        a(f"s_add_u32 s{sT0}, s{sPO}, {sl*16384}")
        a(f"buffer_store_dwordx4 {vr(vSEN,4)}, v{vO1}, {WS}, s{sT0} offen {loc}")
        a(f"buffer_store_dwordx2 {vr(vSEN,2)}, v{vO2}, {WS}, s{sT0} offen {loc}")
    a.label(JOIN)
    a("s_waitcnt vmcnt(0)")
    a("s_barrier")
    signal(a, DBG_H1, 1)
    prof.mark(2)
    a(f"s_sub_u32 s{sT4}, s{sSLOT}, 20")
    MP = MemPass(a, va, mode, sT4, prof, True)
    MP.start_weights()
    MP.setup()
    MP.load_weights()
    prof.mark(7)
    prof.mark(8)
    handshake_wait(a, mode, t0, t1, 8, True)
    R.choose()
    prof.mark(9)

    def ld_m(dst, voff, sbase, ks):
        return f"buffer_load_dwordx4 {vr(dst+4*ks,4)}, v{voff}, {WS}, s{sbase} offen offset:{512*ks} sc1"
    def chk(base):
        return [base + 4 * ks + d for ks in range(4) for d in (0, 2)]
    def prefetch(seg_add, with_q):
        a(f"s_add_u32 s{sT0}, s{sS}, {seg_add}")
        a(f"s_and_b32 s{sT0}, s{sT0}, {XP_MASK}")
        a(f"s_lshl_b32 s{sT0}, s{sT0}, 13")
        a(f"s_add_u32 s{sT1}, s{sT0}, s{sKX}")
        a(f"s_add_u32 s{sT2}, s{sT1}, 4096")
        for t in range(2):
            for ks in range(4):
                a(f"buffer_load_dwordx4 {vr(KX+16*t+4*ks,4)}, v{vL16}, {WS}, s{sT1+t} offen offset:{1024*ks} sc1")
        if with_q:
            a(f"s_add_u32 s{sT0}, s{sT0}, s{sQX}")
            for ks in range(4):
                a(f"buffer_load_dwordx4 {vr(Q+4*ks,4)}, v{vL16}, {WS}, s{sT0} offen offset:{1024*ks} sc1")
    sSH = 29
    def slots():
        a(f"s_and_b32 s{sT0}, s{sS}, 3")
        a(f"s_lshl_b32 s{sT1}, s{sT0}, 11")
        a(f"s_add_u32 s{sA}, s{sT1}, s{sQM}")
        a(f"s_add_u32 s{sBq}, s{sT1}, s{sKM}")
        a(f"s_lshl_b32 s{sC}, s{sT0}, s{sSH}")
        a(f"s_xor_b32 s{sT0}, s{sT0}, 2")
        a(f"s_lshl_b32 s{sD}, s{sT0}, s{sSH}")
        a(f"s_add_u32 s{sC}, s{sC}, s{sPO}")
        a(f"s_add_u32 s{sD}, s{sD}, s{sPO}")
    def softmax(vals, nx):
        n = len(vals)
        a(f"v_max3_f32 v{vm}, v{vals[0]}, v{vals[1]}, v{vals[2]}")
        i = 3
        while i < n:
            if i + 1 < n:
                a(f"v_max3_f32 v{vm}, v{vm}, v{vals[i]}, v{vals[i+1]}"); i += 2
            else:
                a(f"v_max_f32 v{vm}, v{vm}, v{vals[i]}"); i += 1
        if n == 6:
            a("s_nop 1")
            a(f"v_max_f32_dpp v{vm}, v{vm}, v{vm} row_ror:8 row_mask:0xf bank_mask:0xf")
        xlane_gg(a, "v_max_f32", vm, t0)
        a(f"v_mul_f32 v{vm}, s{sSC}, v{vm}")
        for i in range(0, n, 2):
            a(f"v_pk_fma_f32 {vr(E+i,2)}, {vr(vals[i],2)}, s[{sSC}:{sSC+1}], {vr(vm,2)} op_sel_hi:[1,1,0] neg_lo:[0,0,1] neg_hi:[0,0,1]")
        for i in range(n):
            a(f"v_exp_f32 v{E+i}, v{E+i}")
        a(f"v_add_f32 v{vs}, v{E}, v{E+1}")
        for i in range(2, nx):
            a(f"v_add_f32 v{vs}, v{vs}, v{E+i}")
        if nx < n:
            a(f"v_add_f32 v{vs2}, v{E+nx}, v{E+nx+1}")
            for i in range(nx + 2, n):
                a(f"v_add_f32 v{vs2}, v{vs2}, v{E+i}")
            a(f"v_fma_f32 v{vs}, v{vs2}, 0.5, v{vs}")
        if n == 6:
            a("s_nop 1")
            a(f"v_add_f32_dpp v{vs}, v{vs}, v{vs} row_ror:8 row_mask:0xf bank_mask:0xf")
        xlane_gg(a, "v_add_f32", vs, t0)
        a(f"v_rcp_f32 v{vs}, v{vs}")
        a("s_nop 0")
        for i in range(0, n, 2):
            a(f"v_pk_mul_f32 {vr(E+i,2)}, {vr(E+i,2)}, {vr(vs,2)} op_sel_hi:[1,0]")
        for i in range(n // 2):
            a(f"v_cvt_pk_bf16_f32 v{PK+i}, v{E+2*i}, abs(v{E+2*i+1})")
    sKD, sLAST = 93, 28
    a(f"s_cmp_lt_u32 s{sSLOT}, 24")
    a(f"s_cselect_b32 s{sT0}, 1, 2")
    a(f"s_cselect_b32 s{sKD}, 0, 1")
    a(f"s_cselect_b32 s{sLAST}, 63, 64")
    a(f"s_cselect_b32 s{sSH}, 12, 14")
    a(f"s_cmp_lt_u32 s{sWV}, s{sT0}")
    a(f"s_cselect_b32 s{sKD}, s{sKD}, 2")
    a(f"s_cmp_eq_u32 s{sWV}, 3")
    a(f"s_cselect_b32 s{sKD}, 3, s{sKD}")
    QM = E
    a(f"v_lshrrev_b32 v{t2}, 4, v0")
    a(f"v_lshlrev_b32 v{t2}, 9, v{t2}")
    def xpoll(sl):
        poll(a, [ld_m(KM, vMO, sBq, ks) for ks in range(4)] + [f"buffer_load_dword v{QM}, v{t2}, {WS}, s{sA} offen sc1"],
             chk(KM) + [QM], vtmp, sleep=sl)
    def xscores():
        prefetch(1, True)
        for t in range(2):
            for ks in range(4):
                if t == 0:
                    a(f"s_waitcnt vmcnt({3-ks})")
                c = "0" if ks == 0 else vr(D + 4 * t, 4)
                a(f"v_mfma_f32_16x16x32_bf16 {vr(D+4*t,4)}, {vr(KX+16*t+4*ks,4)}, {vr(Q+4*ks,4)}, {c}")
        a.nop(2)
        for t in range(2):
            for r in range(4):
                a(f"v_cmp_le_i32 vcc, {16*t+r}, v{vLIM}")
                a("s_nop 1")
                a(f"v_cndmask_b32 v{D+4*t+r}, v{vNEG}, v{D+4*t+r}, vcc")
    a(f"s_lshl_b32 s{sT0}, s{sX}, 15")
    a(f"s_lshl_b32 s{sT1}, s{sJW}, 10")
    a(f"s_add_u32 s{sT0}, s{sT0}, s{sT1}")
    for ty in range(3):
        a(f"s_add_u32 s{sT1}, s{sT0}, {PM_OFF + ty*32*8192:#x}")
        a(f"buffer_load_dword v{252+ty}, v{vL16}, {WS}, s{sT1} offen sc1")
    a(f"s_lshl_b32 s{sT1}, s{sT0}, 1")
    for off in (MEM_OFF, PX_OFF):
        a(f"s_add_u32 s{sT2}, s{sT1}, {off:#x}")
        for k in range(2):
            a(f"buffer_load_dword v255, v{vL16}, {WS}, s{sT2} offen offset:{1024*k} sc1")
    a(f"s_lshr_b32 s{sT1}, s{sT0}, 1")
    a(f"s_and_b32 s{sT1}, s{sT1}, 0xfffffc00")
    a(f"s_add_u32 s{sT2}, s{sT1}, {PP_OFF:#x}")
    a(f"buffer_load_dword v255, v{vL16}, {WS}, s{sT2} offen sc1")
    LOOP = a.newlabel("t_loop"); K1 = a.newlabel("t_k1"); K2 = a.newlabel("t_k2"); K3 = a.newlabel("t_k3"); JN = a.newlabel("t_jn"); END = a.newlabel("t_end")
    GO = a.newlabel("t_go"); PX0 = a.newlabel("t_px0")
    a(f"s_mov_b32 s{sS}, -1")
    slots()
    a(f"s_cmp_ge_u32 s{sKD}, 2")
    a(f"s_cbranch_scc1 {GO}")
    xpoll(4)
    a(f"s_cmp_eq_u32 s{sKD}, 1")
    a(f"s_cbranch_scc1 {PX0}")
    prefetch(1, False)
    a(f"s_branch {GO}")
    a.label(PX0)
    xscores()
    a.label(GO)
    a(f"s_mov_b32 s{sS}, 0")
    MP.address()
    if Cfg.rot:
        MP.first_loads()
    a.label(LOOP)
    if not Cfg.rot:
        a.nop(Cfg.rot_gap)
        MP.first_loads()
    slots()
    R.setup()
    MP.gather(MA)
    MP.compute(MA, M2, (1,))
    prof.gap(0, Cfg.g_h)
    a(f"s_cmp_lg_u32 s{sKD}, 0")
    a(f"s_cbranch_scc1 {K1}")
    for d in range(Cfg.t_depth - 1):
        for ks in range(4):
            a(ld_m(Q, vMX, sA, ks))
        a.nop(Cfg.t0_gap)
    ST = [a.newlabel("t0_st") for i in range(4)]
    RT = [a.newlabel("t0_rt") for i in range(4)]
    def check(ks):
        a(f"s_waitcnt vmcnt({4*Cfg.t_depth-1-ks})")
        a(f"v_max_u32 v{vtmp}, v{Q+4*ks}, v{Q+4*ks+2}")
        a(f"v_cmp_eq_u32 vcc, -1, v{vtmp}")
    def stage(ks):
        for t in range(3):
            src = KX + 16 * t + 4 * ks if t < 2 else Q + 4 * ks
            c = (vr(CI, 4) if t == 2 else "0") if ks == 0 else vr(D + 4 * t, 4)
            a(f"v_mfma_f32_16x16x32_bf16 {vr(D+4*t,4)}, {vr(src,4)}, {vr(Q+4*ks,4)}, {c}")
            if t == 0 and ks < 3:
                check(ks + 1)
    a(f"s_branch {RT[0]}")
    for i in (3, 2, 1, 0):
        a.label(RT[i])
        for ks in range(4):
            a(ld_m(Q, vMX, sA, ks))
        a(f"s_sub_u32 s{sBUD}, s{sBUD}, 1")
        a(f"s_cbranch_scc1 {a.abort}")
        check(i)
        if i:
            a(f"s_cbranch_vccnz {RT[i]}")
            stage(i)
            a(f"s_branch {ST[i]}")
    for ks in range(4):
        a(f"s_cbranch_vccnz {RT[ks]}")
        stage(ks)
        a.label(ST[ks])
    prof.stamp(1)
    a.nop(6)
    for t in range(3):
        for r in range(2):
            a(f"v_mov_b32_dpp v{D+4*t+r}, v{D+4*t+2+r} row_ror:8 row_mask:0xf bank_mask:0xc")
    softmax([D, D + 1, D + 4, D + 5, D + 8, D + 9], 6)
    pp_store(PK, PK + 2, sC)
    prof.gap(2, Cfg.g_pp)
    pp_store(vSEN, vSEN, sD)
    prefetch(1, False)
    a(f"s_branch {JN}")
    a.label(K1)
    a(f"s_cmp_lg_u32 s{sKD}, 1")
    a(f"s_cbranch_scc1 {K2}")
    a.nop(Cfg.tx_gap)
    xpoll(0)
    prof.stamp(1)
    for ks in range(4):
        c = "0" if ks == 0 else vr(D + 8, 4)
        a(f"v_mfma_f32_16x16x32_bf16 {vr(D+8,4)}, {vr(KM+4*ks,4)}, {vr(Q+4*ks,4)}, {c}")
    a.nop(5)
    softmax(list(range(D, D + 12)), 8)
    a(f"buffer_store_dwordx4 {vr(PK,4)}, v{vO1}, {WS}, s{sC} offen {loc}")
    a(f"buffer_store_dwordx2 {vr(PK+4,2)}, v{vO2}, {WS}, s{sC} offen {loc}")
    prof.gap(2, Cfg.g_px)
    a(f"buffer_store_dwordx4 {vr(vSEN,4)}, v{vO1}, {WS}, s{sD} offen {loc}")
    a(f"buffer_store_dwordx2 {vr(vSEN,2)}, v{vO2}, {WS}, s{sD} offen {loc}")
    xscores()
    a(f"s_branch {JN}")
    a.label(K2)
    a(f"v_mov_b32 v{vPV}, s{sS}")
    a(f"buffer_store_dword v{vPV}, v{vPG}, {WS}, s{sPG} offen {loc}")
    a(f"s_cmp_ge_i32 s{sS}, 63")
    a(f"s_cbranch_scc1 {END}")
    a(f"s_sleep {Cfg.r_idle}")
    MP.finish()
    MP.address(1)
    R.reset()
    a(f"s_cmp_eq_u32 s{sKD}, 2")
    a(f"s_cbranch_scc1 {K3}")
    R.watch()
    a(f"s_branch {K3}")
    a.label(JN)
    a(f"s_cmp_ge_i32 s{sS}, 63")
    a(f"s_cbranch_scc1 {END}")
    MP.finish()
    MP.address(1)
    R.reset()
    a.label(K3)
    a("s_barrier")
    R.step(MP.first_loads if Cfg.rot else None)
    a(f"s_add_u32 s{sS}, s{sS}, 1")
    a(f"s_cmp_lt_i32 s{sS}, s{sLAST}")
    a(f"s_cbranch_scc1 {LOOP}")
    if Cfg.wb_early:
        a(f"s_cmp_eq_u32 s{sJW}, 1")
        a(f"s_cbranch_scc0 {END}")
        a("buffer_wbl2 sc1")
        a("s_waitcnt vmcnt(0)")
    a.label(END)
    prof.dump()
    a("s_endpgm")
```

```python
import sys, os, struct, math

KNAME = "gated_mix__memory_aug_recurrent_mem_tr__spectral_gfnet__prompt_kernel"
MB = 1 << 20

XP_OFF    = 0
XP_SH, XP_MASK = 15, 3
XPART_OFF = 48 * MB
PROG_OFF  = 80 * MB
RT_OFF    = 84 * MB
HT_OFF    = 88 * MB
Z_OFF     = 92 * MB
GATE_OFF  = 96 * MB
PM_OFF    = 98 * MB
PP_OFF    = 99 * MB
PX_OFF    = 100 * MB
PART_OFF  = 102 * MB
MEM_OFF   = 97 * MB
TW_OFF    = 101 * MB
PROF_OFF  = 104 * MB
WS_HALF   = 128 * MB

LDS_BYTES = 163840

def f32bits(x):
    return struct.unpack("<I", struct.pack("<f", x))[0]

class Asm:
    def __init__(self):
        self.lines = []
        self.uid = 0
    def __call__(self, s):
        for ln in s.split("\n"):
            ln = ln.strip()
            if ln:
                self.lines.append(" " + ln)
    def label(self, n):
        self.lines.append(n + ":")
    def newlabel(self, p):
        self.uid += 1
        return f"L_{p}_{self.uid}"
    def nop(self, n):
        while n > 0:
            k = min(n, 16)
            self(f"s_nop {k-1}")
            n -= k
    def text(self):
        return "\n".join(self.lines) + "\n"

def vr(b, n=1):
    return f"v{b}" if n == 1 else f"v[{b}:{b+n-1}]"
def ar(b, n=1):
    return f"a{b}" if n == 1 else f"a[{b}:{b+n-1}]"
def sr(b, n=1):
    return f"s{b}" if n == 1 else f"s[{b}:{b+n-1}]"

S_WS, S_X, S_W, S_DBG, S_OUT, S_WR, S_WI, S_AUX = 4, 8, 12, 16, 20, 24, 28, 32
P_X, P_MEM0, P_WQ, P_WK, P_WV, P_WO, P_WR, P_WI, P_GATE, P_OUT, P_DBG, P_WS = range(36, 60, 2)
sX, sSLOT, sWV, sBUD, sS = 60, 61, 62, 63, 64
sMODE = 101
sT0, sT1, sT2, sT3, sT4, sT5 = 65, 66, 67, 68, 69, 70
WS, XS, WW, DBG = sr(S_WS, 4), sr(S_X, 4), sr(S_W, 4), sr(S_DBG, 4)

DBG_H1 = 4
DBG_CL = 24
DBG_OV = 20
DBG_FB = 8

WFL = ['', 'nt', 'sc1', 'sc0 sc1 nt']
class Cfg:
    wfl = 1
    hfl = 1
    xfl = 0
    ffl = 0
    f_wait = 6
    o_wait = 4
    qk_split = True
    p_pre1 = 2
    exp_half = 0
    exp_f = 0
    f_ns = 4
    f_sl2 = 3
    xs_nt = False
    xl_nt = False
    out_fl = 0
    wb_early = False
    v_late = False
    rot = False
    rot_gap = 24
    g_pm = 0
    g_h = 20
    g_pp = 60
    g_px = 30
    st_pace = 4
    p_pre = 2
    tw_early = False
    r_late = 0
    profile = False
    force_fallback = False
    no_f = False
    realtime = False
    lite = False
    r_at = 14
    r2_at = 26
    r_sp = 2
    xpf_sleep = 6
    pp_prime = 3
    no_xpf = False
    no_wpf = True
    no_hpf = False
    hpf_from = 0
    dbgtime = False
    r_split = 30
    st_at = 10
    px_at = 20
    r_delay = 2
    r_gap = 2
    t0_idle = 0
    tx_idle = 0
    tx_gap = 20
    p_idle = 0
    o_idle = 0
    r_idle = 14
    t0_gap = 28
    r_bar2 = False
    x_every = 3
    x_from = 14
    self_pf = False
    w_depth = 2
    vm_depth = 2
    pp_depth = 2
    fsm_depth = 2
    t_depth = 2
    t3_sleep = 24
    f_sleep = 20
    pp_lds = True
    pipe_mem = False
    pipe_pp = False
    pipe_part = False
    budget = 1000000

class VAlloc:
    def __init__(self, start=1):
        self.n = start
    def get(self, cnt=1, align=1):
        if cnt > 1 and align == 1:
            align = 2
        self.n = (self.n + align - 1) // align * align
        b = self.n
        self.n += cnt
        assert self.n <= 252, "out of VGPRs"
        return b

def srd(a, s, ptr, nbytes):
    a(f"s_mov_b32 s{s}, s{ptr}")
    a(f"s_mov_b32 s{s+1}, s{ptr+1}")
    a(f"s_mov_b32 s{s+2}, {nbytes:#x}")
    a(f"s_mov_b32 s{s+3}, 0x00020000")

def maxtree(a, regs, tmp):
    regs = list(regs)
    if len(regs) == 1:
        a(f"v_mov_b32 v{tmp}, v{regs[0]}")
        return
    if len(regs) == 2:
        a(f"v_max_u32 v{tmp}, v{regs[0]}, v{regs[1]}")
        return
    a(f"v_max3_u32 v{tmp}, v{regs[0]}, v{regs[1]}, v{regs[2]}")
    i = 3
    while i < len(regs):
        if i + 1 < len(regs):
            a(f"v_max3_u32 v{tmp}, v{tmp}, v{regs[i]}, v{regs[i+1]}")
            i += 2
        else:
            a(f"v_max_u32 v{tmp}, v{tmp}, v{regs[i]}")
            i += 1

def poll(a, loads, regs, tmp, sleep=0):
    L = a.newlabel("poll")
    F = a.newlabel("pfirst")
    a(f"s_branch {F}")
    a.label(L)
    if sleep:
        a(f"s_sleep {sleep}")
    a(f"s_sub_u32 s{sBUD}, s{sBUD}, 1")
    a(f"s_cbranch_scc1 {a.abort}")
    a.label(F)
    for l in loads:
        a(l)
    a("s_waitcnt vmcnt(0)")
    maxtree(a, regs, tmp)
    a(f"v_cmp_eq_u32 vcc, -1, v{tmp}")
    a(f"s_cbranch_vccnz {L}")

def poll2(a, loads, regs, tmp, gap=0, depth=2):
    L = a.newlabel("poll")
    for d in range(depth - 1):
        for l in loads:
            a(l)
        a.nop(gap)
    a.label(L)
    for l in loads:
        a(l)
    a(f"s_sub_u32 s{sBUD}, s{sBUD}, 1")
    a(f"s_cbranch_scc1 {a.abort}")
    a(f"s_waitcnt vmcnt({len(loads) * (depth - 1)})")
    if len(regs) > 1:
        maxtree(a, regs, tmp)
        a(f"v_cmp_eq_u32 vcc, -1, v{tmp}")
    else:
        a(f"v_cmp_eq_u32 vcc, -1, v{regs[0]}")
    a(f"s_cbranch_vccnz {L}")

def signal(a, byte_off, val):
    L = a.newlabel("nosig")
    a(f"s_cmp_eq_u32 s{sWV}, 0")
    a(f"s_cbranch_scc0 {L}")
    a(f"s_add_u32 s{sT0}, s{sMODE}, {byte_off}")
    a(f"s_mov_b32 s{sT1}, {val:#x}")
    a(f"s_atomic_add s{sT1}, s[{P_DBG}:{P_DBG+1}], s{sT0}")
    a("s_waitcnt lgkmcnt(0)")
    a.label(L)

def dbg_time(a, word, inv=False):
    if not Cfg.dbgtime:
        return
    a("s_memrealtime s[98:99]")
    a("s_waitcnt lgkmcnt(0)")
    if inv:
        a("s_not_b32 s98, s98")
    a(f"s_atomic_umax s98, s[{P_DBG}:{P_DBG+1}], {4*word}")
    a("s_waitcnt lgkmcnt(0)")

def wait_counter(a, byte_off, target, vt0, vt1, sleep, split16=False):
    L = a.newlabel("wc")
    D = a.newlabel("wcok")
    a(f"v_mov_b32 v{vt0}, {byte_off}")
    a.label(L)
    a(f"buffer_load_dword v{vt1}, v{vt0}, {DBG}, s{sMODE} offen sc1")
    a("s_waitcnt vmcnt(0)")
    a(f"v_readfirstlane_b32 s{sT0}, v{vt1}")
    a("s_nop 3")
    if split16:
        a(f"s_lshr_b32 s{sT1}, s{sT0}, 16")
        a(f"s_and_b32 s{sT2}, s{sT0}, 0xffff")
        a(f"s_add_u32 s{sT2}, s{sT2}, s{sT1}")
        a(f"s_cmp_ge_u32 s{sT2}, {target}")
    else:
        a(f"s_cmp_ge_u32 s{sT0}, {target}")
    a(f"s_cbranch_scc1 {D}")
    a(f"s_sleep {sleep}")
    a(f"s_sub_u32 s{sBUD}, s{sBUD}, 1")
    a(f"s_cbranch_scc0 {L}")
    a("s_endpgm")
    a.label(D)

def handshake_wait(a, mode, vt0, vt1, sleep, want_class=False):
    L = a.newlabel("hs"); F = a.newlabel("hs1"); C = a.newlabel("hs2")
    a(f"v_lshlrev_b32 v{vt0}, 2, v0")
    a(f"s_lshr_b32 s{sT1}, s{sMODE}, 2")
    a(f"s_add_u32 s{sT1}, s{sT1}, {DBG_H1//4}")
    a(f"s_branch {F}")
    a.label(L)
    a(f"s_sleep {sleep}")
    a(f"s_sub_u32 s{sBUD}, s{sBUD}, 1")
    a(f"s_cbranch_scc1 {a.abort}")
    a.label(F)
    a(f"buffer_load_dword v{vt1}, v{vt0}, {DBG}, 0 offen sc1")
    a("s_waitcnt vmcnt(0)")
    a(f"v_readlane_b32 s{sT0}, v{vt1}, s{sT1}")
    a(f"s_cmp_lg_u32 s{sMODE}, 0")
    a(f"s_cbranch_scc1 {C}")
    if Cfg.force_fallback:
        a("s_branch L_fallback")
    a(f"v_readlane_b32 s{sT2}, v{vt1}, {DBG_OV//4}")
    a(f"v_cmp_lt_u32 s[94:95], 32, v{vt1}")
    a(f"v_cmp_eq_u32 s[96:97], 32, v{vt1}")
    a("s_mov_b32 vcc_lo, 0x01010101")
    a("s_mov_b32 vcc_hi, 0x01010101")
    a(f"s_cmp_lg_u32 s{sT2}, 0")
    a("s_cbranch_scc1 L_fallback")
    a("s_and_b64 s[94:95], s[94:95], vcc")
    a("s_cbranch_scc1 L_fallback")
    a("s_and_b64 s[96:97], s[96:97], vcc")
    a("s_cmp_eq_u64 s[96:97], vcc")
    a(f"s_cbranch_scc0 {L}")
    a.label(C)
    a(f"s_cmp_ge_u32 s{sT0}, 64")
    a(f"s_cbranch_scc0 {L}")
    if want_class:
        a(f"s_lshl_b32 s{sT2}, s{sX}, 3")
        a(f"s_add_u32 s{sT2}, s{sT2}, {DBG_CL//4}")
        a(f"s_lshr_b32 s{sT0}, s{sMODE}, 7")
        a(f"s_add_u32 s{sT2}, s{sT2}, s{sT0}")
        a(f"v_readlane_b32 s{sT0}, v{vt1}, s{sT2}")
        a("s_nop 3")
        a(f"s_cmp_eq_u32 s{sT0}, 0")
        a(f"s_cbranch_scc1 {L}")

def helper_prefetch(a, sIDX, t0, t1):
    if Cfg.no_hpf:
        return
    a(f"s_lshr_b32 s{sT0}, s{sIDX}, 2")
    a(f"s_cmp_eq_u32 s{sT0}, 0")
    a(f"s_cselect_b64 s[94:95], s[{P_WQ}:{P_WQ+1}], s[{P_WK}:{P_WK+1}]")
    a(f"s_cmp_eq_u32 s{sT0}, 2")
    a(f"s_cselect_b64 s[94:95], s[{P_WV}:{P_WV+1}], s[94:95]")
    a(f"s_and_b32 s{sT0}, s{sIDX}, 3")
    a(f"s_lshl_b32 s{sT0}, s{sT0}, 2")
    a(f"s_add_u32 s{sT0}, s{sT0}, s{sWV}")
    a(f"s_lshl_b32 s{sT0}, s{sT0}, 16")
    a(f"s_lshl_b32 s{sT1}, s{sX}, 10")
    a(f"s_add_u32 s{sT0}, s{sT0}, s{sT1}")
    a(f"v_lshrrev_b32 v{t0}, 3, v0")
    a(f"v_lshlrev_b32 v{t0}, 13, v{t0}")
    a(f"v_and_b32 v{t1}, 7, v0")
    a(f"v_lshl_add_u32 v{t0}, v{t1}, 7, v{t0}")
    a(f"v_add_u32 v{t0}, s{sT0}, v{t0}")
    for k in range(Cfg.hpf_from, 8):
        a(f"v_add_u32 v{t1}, {k*MB:#x}, v{t0}")
        a(f"global_load_dword v{252+(k&3)}, v{t1}, s[94:95] {WFL[Cfg.hfl]}")

class Prof:
    def __init__(self, a, va):
        self.a = a
        if Cfg.profile:
            self.vo = va.get()
            self.vd = va.get(8)
            a(f"s_lshl_b32 s{sT0}, s{sX}, 5")
            a(f"s_add_u32 s{sT0}, s{sT0}, s{sSLOT}")
            a(f"s_lshl_b32 s{sT0}, s{sT0}, 2")
            a(f"s_add_u32 s{sT0}, s{sT0}, s{sWV}")
            a(f"s_lshl_b32 s{sT0}, s{sT0}, 11")
            a(f"s_add_u32 s{sT0}, s{sT0}, {PROF_OFF:#x}")
            a(f"v_lshlrev_b32 v{self.vo}, 2, v0")
            a(f"v_add_u32 v{self.vo}, s{sT0}, v{self.vo}")
            for k in range(8):
                a(f"v_mov_b32 v{self.vd+k}, 0")
            a(f"v_writelane_b32 v{self.vd+7}, s3, 0")
            self.mark(1)
    def stamp(self, k, cyc=False, keep_m0=False, lite=False):
        if not Cfg.profile or (Cfg.lite and not lite):
            return
        a = self.a
        if keep_m0:
            a("s_mov_b32 s100, m0")
            a("s_cselect_b32 s97, 1, 0")
            self.stamp(k, cyc)
            a("s_mov_b32 m0, s100")
            a("s_cmp_eq_u32 s97, 1")
            return
        a("s_memrealtime s[98:99]" if (Cfg.realtime and not cyc) else "s_memtime s[98:99]")
        a(f"s_and_b32 m0, s{sS}, 63")
        a("s_waitcnt lgkmcnt(0)")
        a(f"v_writelane_b32 v{self.vd+k}, s98, m0")
    def gap(self, k, n):
        a = self.a
        if Cfg.profile:
            a("s_memrealtime s[98:99]" if Cfg.realtime else "s_memtime s[98:99]")
            a.nop(max(n - 4, 0))
            a(f"s_and_b32 m0, s{sS}, 63")
            a("s_waitcnt lgkmcnt(0)")
            a(f"v_writelane_b32 v{self.vd+k}, s98, m0")
        else:
            a.nop(n)
    def mark(self, lane):
        if not (Cfg.profile and Cfg.lite):
            return
        a = self.a
        a("s_memrealtime s[98:99]")
        a("s_waitcnt lgkmcnt(0)")
        a(f"v_writelane_b32 v{self.vd+7}, s98, {lane}")
    def dump(self):
        if not Cfg.profile:
            return
        a = self.a
        for k in range(8):
            a(f"buffer_store_dword v{self.vd+k}, v{self.vo}, {WS}, 0 offen offset:{256*k}")

def weight_dma(a, vW, chunk, buf, stride, sB):
    for i in range(16):
        a(f"s_add_u32 m0, s{sB+1}, {buf*65536 + i*1024}")
        a(f"s_add_u32 s{sT0}, s{sB}, {(chunk*256 + 4*i)*stride}")
        a(f"buffer_load_dwordx4 v{vW}, {WW}, s{sT0} offen {WFL[Cfg.wfl]} lds")

def weight_tr(a, vTR, group, tiles=(0, 1)):
    for ks in range(8):
        for t in tiles:
            for q in range(2):
                d = group * 64 + (ks >> 1) * 16 + t * 8 + (ks & 1) * 4 + 2 * q
                a(f"ds_read_b64_tr_b16 {ar(d,2)}, v{vTR[q]} offset:{ks*8192 + 8*t}")
    a("s_waitcnt lgkmcnt(0)")

def weight_addr_setup(a, va, stride, sB, swap):
    vW = va.get(); vTR = va.get(4); t0 = va.get(); t1 = va.get()
    a(f"v_lshrrev_b32 v{t0}, 4, v0")
    a(f"v_lshlrev_b32 v{t1}, 2, v{t0}")
    a(f"v_and_b32 v{vW}, 15, v0")
    a(f"v_xor_b32 v{vW}, v{vW}, v{t1}")
    a(f"v_lshlrev_b32 v{vW}, 4, v{vW}")
    a(f"v_mul_u32_u24 v{t0}, {stride}, v{t0}")
    a(f"v_add_u32 v{vW}, v{vW}, v{t0}")
    if swap:
        a(f"v_bfe_u32 v{t0}, v0, 3, 1")
        a(f"v_bfe_u32 v{t1}, v0, 2, 1")
        a(f"v_lshl_add_u32 v{t0}, v{t0}, 2, v{t1}")
    else:
        a(f"v_bfe_u32 v{t0}, v0, 2, 2")
    if swap:
        a(f"v_bfe_u32 v{t1}, v0, 1, 1")
        a(f"v_and_b32 v{vTR}, 1, v0")
        a(f"v_lshl_add_u32 v{t1}, v{vTR}, 1, v{t1}")
    else:
        a(f"v_and_b32 v{t1}, 3, v0")
    a(f"s_lshl_b32 s{sT0}, s{sWV}, 2")
    a(f"v_add_u32 v{t1}, s{sT0}, v{t1}")
    a(f"v_and_b32 v{vTR}, 3, v{t0}")
    a(f"v_lshlrev_b32 v{vTR}, 2, v{vTR}")
    a(f"v_xor_b32 v{t1}, v{t1}, v{vTR}")
    a(f"v_lshlrev_b32 v{t1}, 4, v{t1}")
    a(f"v_lshrrev_b32 v{vTR}, 4, v0")
    a(f"v_lshlrev_b32 v{vTR}, 3, v{vTR}")
    a(f"v_add_u32 v{vTR}, v{vTR}, v{t0}")
    a(f"v_lshlrev_b32 v{vTR}, 8, v{vTR}")
    a(f"v_add_u32 v{vTR}, v{vTR}, v{t1}")
    if swap:
        a(f"v_xor_b32 v{vTR+1}, 128, v{vTR}")
        a(f"v_add_u32 v{vTR+1}, 512, v{vTR+1}")
    else:
        a(f"v_add_u32 v{vTR+1}, 1024, v{vTR}")
    a(f"v_add_u32 v{vTR+2}, 0x10000, v{vTR}")
    a(f"v_add_u32 v{vTR+3}, 0x10000, v{vTR+1}")
    a(f"s_mul_i32 s{sB}, s{sWV}, {64*stride}")
    a(f"s_lshl_b32 s{sB+1}, s{sWV}, 14")
    return vW, ((vTR, vTR + 1), (vTR + 2, vTR + 3)), t0, t1

def idx_setup(a, vIDX, t0):
    a(f"v_and_b32 v{t0}, 8, v0")
    a(f"v_cmp_ne_u32 vcc, 0, v{t0}")
    a(f"v_mov_b32 v{vIDX}, 0x44444444")
    a(f"v_mov_b32 v{t0}, 0xeeeeeeee")
    a("s_nop 1")
    a(f"v_cndmask_b32 v{vIDX}, v{vIDX}, v{t0}, vcc")

def halfsum(a, acc0, acc1, out):
    for r in range(4):
        a(f"v_permlane32_swap_b32 v{acc0+r}, v{acc1+r}")
    for r in range(4):
        a(f"v_add_f32 v{acc0+r}, v{acc0+r}, v{acc1+r}")
    a(f"v_cvt_pk_bf16_f32 v{out}, v{acc0}, v{acc0+1}")
    a(f"v_cvt_pk_bf16_f32 v{out+1}, v{acc0+2}, v{acc0+3}")

def xlane_gg(a, op, v, t):
    for sw in ("v_permlane16_swap_b32", "v_permlane32_swap_b32"):
        a(f"v_mov_b32 v{t}, v{v}")
        a("s_nop 1")
        a(f"{sw} v{v}, v{t}")
        a(f"{op} v{v}, v{v}, v{t}")

def dispatch(a, mode):
    from gen_f import role_f
    from gen_proj import role_proj
    from gen_t import role_t
    from gen_or import role_or
    LP, LO, LT, LF = (f"L_role_{n}_{mode}" for n in "potf")
    LF = "L_role_f"
    a(f"s_mov_b32 s{sMODE}, {128*mode}")
    a(f"s_cmp_lt_u32 s{sSLOT}, 12")
    a(f"s_cbranch_scc1 {LP}")
    a(f"s_cmp_lt_u32 s{sSLOT}, 20")
    a(f"s_cbranch_scc1 {LO}")
    a(f"s_cmp_lt_u32 s{sSLOT}, 28")
    a(f"s_cbranch_scc1 {LT}")
    a(f"s_branch {LF}")
    for lab, fn in ((LP, role_proj), (LO, role_or), (LT, role_t), (LF, role_f)):
        if fn is role_f and mode == 0:
            continue
        a.abort = lab + "_abort"
        a.label(a.abort)
        a("s_endpgm")
        a.lines.append(".p2align 6")
        a.label(lab)
        fn(a, mode)

def build():
    a = Asm()
    a("s_cmp_ge_u32 s2, 256")
    a("s_cbranch_scc0 L_start")
    a("s_endpgm")
    a.label("L_start")
    for i, off in enumerate((0, 16, 32, 64, 80, 96)):
        a(f"s_load_dwordx4 s[{36+4*i}:{39+4*i}], s[0:1], {off}")
    if Cfg.profile:
        a("s_memrealtime s[98:99]")
        a("s_waitcnt lgkmcnt(0)")
        a("s_mov_b32 s3, s98")
    a(f"s_getreg_b32 s{sX}, hwreg(HW_REG_XCC_ID)")
    a(f"s_and_b32 s{sX}, s{sX}, 15")
    a("v_lshrrev_b32 v1, 6, v0")
    a("v_and_b32 v0, 63, v0")
    a(f"v_readfirstlane_b32 s{sWV}, v1")
    a(f"s_mov_b32 s{sBUD}, {Cfg.budget}")
    a(f"s_mov_b32 s{sS}, -2")
    a(f"s_mov_b32 s{sMODE}, 0")
    a("s_waitcnt lgkmcnt(0)")
    srd(a, S_WS, P_WS, WS_HALF)
    srd(a, S_X, P_X, 4 * MB)
    srd(a, S_DBG, P_DBG, 256)
    a(f"s_and_b32 s{sT2}, s{sX}, 7")
    a("v_mov_b32 v3, 0")
    a(f"s_cmp_eq_u32 s{sWV}, 0")
    a("s_cbranch_scc0 L_notk0")
    a(f"s_lshl_b32 s{sT0}, s{sT2}, 5")
    a(f"s_lshr_b32 s{sSLOT}, s{sX}, 3")
    a(f"s_xor_b32 s{sSLOT}, s{sSLOT}, 1")
    a(f"s_atomic_add s{sSLOT}, s[{P_DBG}:{P_DBG+1}], s{sT0} glc")
    a.label("L_notk0")
    if not Cfg.no_wpf:
        a("s_lshr_b32 s72, s2, 3")
        a("s_lshl_b32 s72, s72, 2")
        a(f"s_add_u32 s72, s72, s{sWV}")
        a("v_lshrrev_b32 v4, 3, v0")
        a("v_lshlrev_b32 v4, 13, v4")
        a("v_and_b32 v5, 7, v0")
        a("v_lshl_add_u32 v4, v5, 7, v4")
        a("s_lshl_b32 s73, s72, 16")
        a(f"s_lshl_b32 s74, s{sT2}, 10")
        a("s_add_u32 s73, s73, s74")
        a("v_add_u32 v4, s73, v4")
        a("s_lshl_b32 s73, s72, 13")
        a(f"s_lshl_b32 s74, s{sT2}, 20")
        a("s_add_u32 s73, s73, s74")
        a("v_lshlrev_b32 v5, 7, v0")
        a("v_add_u32 v5, s73, v5")
        for k, ptr in enumerate((P_WQ, P_WK, P_WV)):
            a(f"global_load_dword v{252+k}, v4, s[{ptr}:{ptr+1}]")
        a(f"global_load_dword v255, v5, s[{P_WO}:{P_WO+1}]")
    a(f"s_cmp_eq_u32 s{sWV}, 0")
    a("s_cbranch_scc0 L_noticket")
    a("s_waitcnt lgkmcnt(0)")
    a(f"v_mov_b32 v2, s{sSLOT}")
    a("ds_write_b32 v3, v2")
    a("s_waitcnt lgkmcnt(0)")
    a.label("L_noticket")
    a("s_barrier")
    a("ds_read_b32 v2, v3")
    a("s_waitcnt lgkmcnt(0)")
    a(f"v_readfirstlane_b32 s{sSLOT}, v2")
    a("s_barrier")
    a(f"s_cmp_ge_u32 s{sX}, 8")
    a("s_cbranch_scc1 L_overflow")
    a(f"s_cmp_ge_u32 s{sSLOT}, 32")
    a("s_cbranch_scc1 L_overflow")
    a("s_branch L_mode0")
    a.label("L_overflow")
    signal(a, DBG_OV, 1)
    a.label("L_fallback")
    a("s_mov_b64 exec, -1")
    a("s_waitcnt vmcnt(0) lgkmcnt(0)")
    a("s_barrier")
    a(f"s_lshr_b32 s{sX}, s2, 5")
    a(f"s_and_b32 s{sSLOT}, s2, 31")
    a(f"s_add_u32 s{S_WS}, s{P_WS}, {WS_HALF:#x}")
    a(f"s_addc_u32 s{S_WS+1}, s{P_WS+1}, 0")
    a(f"s_mov_b32 s{sS}, -2")
    dispatch(a, 1)
    a.lines.append(".p2align 6")
    a.label("L_mode0")
    dispatch(a, 0)
    return a.text()

HEADER = open(os.path.join(os.path.dirname(os.path.abspath(__file__)), "header.txt")).read()

def full_text():
    body = build()
    return (HEADER + f"; @launch grid=(256,1,1) block=(256,1,1) lds={LDS_BYTES}\n"
            + '.amdgcn_target "amdgcn-amd-amdhsa--gfx950"\n.text\n'
            + f".globl {KNAME}\n.p2align 8\n.type {KNAME},@function\n{KNAME}:\n"
            + body
            + '.section .rodata,"a"\n.p2align 6\n'
            + f".amdhsa_kernel {KNAME}\n"
            + "  .amdhsa_next_free_vgpr 512\n  .amdhsa_next_free_sgpr 102\n  .amdhsa_accum_offset 256\n"
            + "  .amdhsa_group_segment_fixed_size 0\n  .amdhsa_kernarg_size 112\n  .amdhsa_user_sgpr_count 2\n"
            + "  .amdhsa_user_sgpr_kernarg_segment_ptr 1\n  .amdhsa_system_sgpr_workgroup_id_x 1\n"
            + "  .amdhsa_float_denorm_mode_32 3\n"
            + ".end_amdhsa_kernel\n")

if __name__ == "__main__":
    import gen as G
    out = sys.argv[1]
    for o in sys.argv[2:]:
        if "=" in o:
            k, v = o.split("="); setattr(G.Cfg, k, int(v))
        else:
            setattr(G.Cfg, o, True)
    open(out, "w").write(G.full_text())
```

```python
from gen import *

def role_or(a, mode):
    loc = "" if mode == 0 else "sc1"
    va = VAlloc()
    sB, sJ, sVM, sVX, sPP, sPX, sPARTw, sPARTr, sTW, sXPW, sFL = 72, 74, 75, 76, 77, 78, 79, 80, 81, 82, 83
    sA, sBb, sC, sD, sE, sF, sG = 85, 86, 87, 88, 89, 90, 91
    sR0, sR1, sMp, sMr = 84, 71, sT4, sT5
    sM0 = 92
    sNP = 83
    PXL = 32768
    VML = 49152
    PPL_ = 57344
    a(f"s_sub_u32 s{sJ}, s{sSLOT}, 12")
    a(f"s_lshl_b32 s{sT2}, s{sX}, 20")
    a(f"s_lshl_b32 s{sT1}, s{sJ}, 8")
    a(f"s_add_u32 s{sT2}, s{sT2}, s{sT1}")
    a(f"s_add_u32 s{S_W}, s{P_WO}, s{sT2}")
    a(f"s_addc_u32 s{S_W+1}, s{P_WO+1}, 0")
    a(f"s_sub_u32 s{S_W+2}, {8*MB:#x}, s{sT2}")
    a(f"s_mov_b32 s{S_W+3}, 0x00020000")
    a(f"s_lshl_b32 s{sVM}, s{sX}, 2")
    a(f"s_add_u32 s{sVM}, s{sVM}, s{sWV}")
    a(f"s_lshl_b32 s{sVM}, s{sVM}, 13")
    a(f"s_add_u32 s{sVM}, s{sVM}, {PM_OFF + 64*8192:#x}")
    a(f"s_lshl_b32 s{sT0}, s{sX}, 2")
    a(f"s_lshr_b32 s{sT1}, s{sWV}, 1")
    a(f"s_add_u32 s{sT0}, s{sT0}, s{sT1}")
    a(f"s_lshl_b32 s{sVX}, s{sT0}, {XP_SH}")
    a(f"s_and_b32 s{sT1}, s{sWV}, 1")
    a(f"s_lshl_b32 s{sT1}, s{sT1}, 12")
    a(f"s_add_u32 s{sVX}, s{sVX}, s{sT1}")
    a(f"s_add_u32 s{sVX}, s{sVX}, {64<<XP_SH:#x}")
    a(f"s_lshl_b32 s{sPP}, s{sX}, 14")
    a(f"s_add_u32 s{sPP}, s{sPP}, {PP_OFF:#x}")
    a(f"s_min_u32 s{sT1}, s{sWV}, 2")
    a(f"s_lshl_b32 s{sT1}, s{sT1}, 10")
    a(f"s_add_u32 s{sPP}, s{sPP}, s{sT1}")
    a(f"s_lshl_b32 s{sTW}, s{sX}, 12")
    a(f"s_lshl_b32 s{sT1}, s{sJ}, 7")
    a(f"s_add_u32 s{sTW}, s{sTW}, s{sT1}")
    a(f"s_add_u32 s{sTW}, s{sTW}, {TW_OFF:#x}")
    a(f"s_lshl_b32 s{sPX}, s{sX}, 16")
    a(f"s_mul_i32 s{sT1}, s{sWV}, 3072")
    a(f"s_add_u32 s{sPX}, s{sPX}, s{sT1}")
    a(f"s_add_u32 s{sPX}, s{sPX}, {PX_OFF:#x}")
    a(f"s_lshl_b32 s{sT0}, s{sJ}, 2")
    a(f"s_add_u32 s{sT0}, s{sT0}, s{sWV}")
    a(f"s_and_b32 s{sT1}, s{sT0}, 15")
    a(f"s_lshl_b32 s{sT1}, s{sT1}, 9")
    a(f"s_lshr_b32 s{sT2}, s{sT0}, 4")
    a(f"s_lshl_b32 s{sT2}, s{sT2}, 14")
    a(f"s_add_u32 s{sT1}, s{sT1}, s{sT2}")
    a(f"s_add_u32 s{sPARTr}, s{sT1}, {PART_OFF:#x}")
    a(f"s_lshl_b32 s{sT2}, s{sX}, 15")
    a(f"s_add_u32 s{sPARTw}, s{sPARTr}, s{sT2}")
    a(f"s_lshl_b32 s{sT1}, s{sT0}, 17")
    a(f"s_add_u32 s{sXPW}, s{sT1}, {XPART_OFF:#x}")
    a(f"s_lshl_b32 s{sT2}, s{sX}, 22")
    a(f"s_add_u32 s{sXPW}, s{sXPW}, s{sT2}")
    prof = Prof(a, va)
    vW, vTR, t0, t1 = weight_addr_setup(a, va, 2048, sB, True)
    vXP = va.get(); vXQ = va.get(); sXA = 84
    a(f"v_lshrrev_b32 v{t0}, 4, v0")
    a(f"v_min_u32 v{t0}, 1, v{t0}")
    a(f"v_lshlrev_b32 v{t0}, 28, v{t0}")
    a(f"v_lshl_add_u32 v{t0}, v0, 7, v{t0}")
    a(f"s_lshl_b32 s{sT0}, s{sJ}, 2")
    a(f"s_add_u32 s{sT0}, s{sT0}, s{sWV}")
    a(f"s_lshl_b32 s{sT0}, s{sT0}, 11")
    a(f"v_add_u32 v{vXP}, s{sT0}, v{t0}")
    for k in range(3):
        a(f"s_mov_b32 s{sXA}, {k << 16}")
        a(f"buffer_load_dword v{vXQ}, v{vXP}, {XS}, s{sXA} offen")
    for i in range(Cfg.o_wait):
        a("s_sleep 32")
    prof.mark(2)
    weight_dma(a, vW, 0, 0, 2048, sB)
    weight_dma(a, vW, 1, 1, 2048, sB)
    t2 = va.get(); vtmp = va.get()
    vL16 = va.get(); vPW = va.get(); vPF = va.get(); vMW = va.get(); vFL = va.get(); vZ = va.get()
    vSEN = va.get(4, 4)
    a(f"v_lshlrev_b32 v{vL16}, 4, v0")
    a(f"v_lshrrev_b32 v{t0}, 5, v0")
    a(f"v_and_b32 v{t1}, 15, v0")
    a(f"v_lshl_add_u32 v{t0}, v{t0}, 4, v{t1}")
    a(f"v_lshlrev_b32 v{t0}, 4, v{t0}")
    a(f"v_bfe_u32 v{t1}, v0, 4, 1")
    a(f"v_lshl_add_u32 v{vPW}, v{t1}, 13, v{t0}")
    a(f"s_lshl_b32 s{sT0}, s{sWV}, 10")
    a(f"s_add_u32 s{sT0}, s{sT0}, {PPL_}")
    a(f"v_add_u32 v{vPF}, s{sT0}, v{vL16}")
    a(f"s_lshl_b32 s{sT0}, s{sWV}, 11")
    a(f"s_add_u32 s{sT0}, s{sT0}, {VML}")
    a(f"v_add_u32 v{vMW}, s{sT0}, v{vL16}")
    for r in range(4):
        a(f"v_mov_b32 v{vSEN+r}, -1")
    a(f"v_mov_b32 v{vZ}, 0")
    a(f"v_min_u32 v{t0}, 1, v0")
    a(f"v_lshlrev_b32 v{vFL}, 28, v{t0}")
    vTWo = va.get()
    a(f"s_cmp_eq_u32 s{sWV}, 3")
    a(f"s_cselect_b32 s{sT0}, 0, 0x10000000")
    a(f"v_or_b32 v{vTWo}, s{sT0}, v{vFL}")
    PK = va.get(4, 4)
    vXS = va.get()
    a(f"v_bfe_u32 v{t0}, v0, 2, 2")
    a(f"v_lshlrev_b32 v{vXS}, 8, v{t0}")
    a(f"v_bfe_u32 v{t0}, v0, 4, 1")
    a(f"v_lshl_add_u32 v{vXS}, v{t0}, 7, v{vXS}")
    a(f"v_lshrrev_b32 v{t0}, 5, v0")
    a(f"v_lshl_add_u32 v{vXS}, v{t0}, 6, v{vXS}")
    a(f"v_and_b32 v{t0}, 3, v0")
    a(f"v_lshl_add_u32 v{vXS}, v{t0}, 4, v{vXS}")
    vIDX = va.get()
    idx_setup(a, vIDX, t0)

    PXR = va.get(48, 4)
    VM = PXR
    UA = va.get(32, 4)
    UX = va.get(32, 8); UM = va.get(16, 8)
    FR = PXR
    VO = va.get(8, 4); PPR = FR; XO = va.get(8, 4)
    ACC = UA
    WT = PXR
    assert UA == PXR + 48
    a(f"v_and_b32 v{t0}, 2, v0")
    a(f"v_cmp_eq_u32 s[92:93], 0, v{t0}")
    a(f"v_cmp_ne_u32 s[94:95], 0, v{t0}")
    for c in range(2):
        a(f"s_waitcnt vmcnt({16 if c == 0 else 0})")
        a("s_barrier")
        for ks in range(8):
            for t in range(2):
                for q in range(2):
                    d = (ks >> 1) * 16 + t * 8 + (ks & 1) * 4 + 2 * q
                    a(f"ds_read_b64_tr_b16 {vr(WT+d,2)}, v{vTR[c][q]} offset:{ks*8192 + 8*t}")
        a("s_waitcnt lgkmcnt(0)")
        for t in range(2):
            a(f"s_mov_b64 vcc, s[{92+2*t}:{93+2*t}]")
            for kb in range(4):
                for r in range(8):
                    A = WT + kb * 16 + r; B = A + 8
                    if t == 0:
                        a(f"v_cndmask_b32_dpp v{vtmp}, v{B}, v{A}, vcc quad_perm:[0,1,0,1] row_mask:0xf bank_mask:0xf")
                    else:
                        a(f"v_cndmask_b32_dpp v{vtmp}, v{A}, v{B}, vcc quad_perm:[2,3,2,3] row_mask:0xf bank_mask:0xf")
                    a(f"v_accvgpr_write_b32 a{c*64 + kb*16 + 8*t + r}, v{vtmp}")
                    a("s_nop 0")
    a("s_barrier")
    prof.mark(8)
    handshake_wait(a, mode, t0, t1, 8)
    prof.mark(9)

    def vm_loads():
        return [f"buffer_load_dwordx4 {vr(VO+4*b,4)}, v{vL16}, {WS}, s{sA} offen offset:{1024*b} sc1" for b in range(2)]
    def vm_slots():
        a(f"s_and_b32 s{sT0}, s{sS}, 3")
        a(f"s_lshl_b32 s{sT0}, s{sT0}, 11")
        a(f"s_add_u32 s{sA}, s{sT0}, s{sVM}")
    def vx_setup():
        a(f"s_add_u32 s{sT0}, s{sS}, 1")
        a(f"s_and_b32 s{sT0}, s{sT0}, {XP_MASK}")
        a(f"s_lshl_b32 s{sT0}, s{sT0}, 13")
        a(f"s_add_u32 s{sE}, s{sT0}, s{sVX}")
        a(f"s_add_u32 s{sF}, s{sE}, {2<<XP_SH:#x}")
    def vx_dma(pair):
        a(f"s_lshl_b32 m0, s{sWV}, 12")
        if pair:
            a("s_add_u32 m0, m0, 16384")
        a("s_nop 0")
        for i in range(4):
            a(f"buffer_load_dwordx4 v{vL16}, {WS}, s{sE+pair} offen offset:{1024*i} sc1 lds")
    def px_dma():
        a(f"s_mul_i32 m0, s{sWV}, 3072")
        a(f"s_add_u32 m0, m0, {PXL}")
        a("s_nop 0")
        for i in range(3):
            a(f"buffer_load_dwordx4 v{vL16}, {WS}, s{sG} offen offset:{1024*i} sc1 lds")
    def ux_all(dst, extra={}, mid=None):
        frs = [(hl, ks, rt) for hl in range(4) for ks in range(4) for rt in range(2)]
        DEPTH = 5; NR = 8
        def rd(f):
            hl, ks, rt = frs[f]
            a(f"ds_read_b128 {vr(FR+4*(f%NR),4)}, v{vL16} offset:{hl*8192 + rt*4096 + ks*1024}")
        def cvts(hl):
            base = UA + 16 * (hl & 1)
            out = []
            for t in range(2):
                for rt in range(2):
                    acc = base + 8 * rt + 4 * t
                    d = dst + 16 * t + 4 * hl + 2 * rt
                    out.append(f"v_cvt_pk_bf16_f32 v{d}, v{acc}, v{acc+1}")
                    out.append(f"v_cvt_pk_bf16_f32 v{d+1}, v{acc+2}, v{acc+3}")
            return out
        for f in range(DEPTH):
            rd(f)
        pend = []
        for f in range(32):
            hl, ks, rt = frs[f]
            if mid and f + DEPTH == 16:
                mid(f)
            a(f"s_waitcnt lgkmcnt({min(DEPTH-1, 31-f)})")
            if hl > 0 and f % 8 == 3:
                pend = cvts(hl - 1)
            for t in range(2):
                acc = UA + 16 * (hl & 1) + 8 * rt + 4 * t
                c = "0" if ks == 0 else vr(acc, 4)
                a(f"v_mfma_f32_16x16x32_bf16 {vr(acc,4)}, {vr(FR+4*(f%NR),4)}, {ar((2*hl+(ks>>1))*16+8*t+4*(ks&1),4)}, {c}")
                if t == 0 and f + DEPTH < 32:
                    rd(f + DEPTH)
                if t == 1:
                    for l in extra.get(f, []):
                        a(l)
                if pend:
                    a(pend.pop(0))
        return cvts(3)

    a(f"s_mov_b32 s{sS}, -1")
    vm_slots()
    poll(a, vm_loads(), range(VO, VO + 8, 2), vtmp, sleep=4)
    a("s_barrier")
    prof.mark(10)
    vx_setup()
    vx_dma(0)
    vx_dma(1)
    a("s_waitcnt vmcnt(0)")
    a("s_barrier")
    last = ux_all(UX)
    a.nop(8)
    for l in last:
        a(l)
    a(f"s_mov_b32 s{sS}, 0")
    dbg_time(a, 12)
    dbg_time(a, 7, cyc=True)
    prof.mark(11)
    PQ = va.get(4, 4)
    PA = va.get(8, 4)
    LOOP = a.newlabel("or_loop")
    a.label(LOOP)
    for r in range(32):
        a(f"v_mov_b32 v{UA+r}, 0")
    for r in range(8):
        a(f"v_mov_b32 v{PA+r}, 0")
    vm_slots()
    vx_setup()
    a(f"s_and_b32 s{sT0}, s{sS}, 3")
    a(f"s_lshl_b32 s{sBb}, s{sT0}, 12")
    a(f"s_add_u32 s{sBb}, s{sBb}, s{sPP}")
    a(f"s_lshl_b32 s{sG}, s{sT0}, 14")
    a(f"s_add_u32 s{sG}, s{sG}, s{sPX}")
    a(f"s_lshl_b32 s{sC}, s{sT0}, 18")
    a(f"s_xor_b32 s{sD}, s{sC}, {2<<18:#x}")
    a(f"s_add_u32 s{sC}, s{sC}, s{sPARTw}")
    a(f"s_add_u32 s{sD}, s{sD}, s{sPARTw}")
    a(f"s_lshl_b32 s{sT4}, s{sT0}, 10")
    a(f"s_xor_b32 s{sT5}, s{sT4}, 2048")
    a(f"s_add_u32 s{sT4}, s{sT4}, s{sTW}")
    a(f"s_add_u32 s{sT5}, s{sT5}, s{sTW}")
    a(f"s_cmp_lt_u32 s{sS}, 63")
    a(f"s_cselect_b32 s{sNP}, 3, 0")
    if Cfg.o_idle:
        a(f"s_sleep {Cfg.o_idle}")
    prof.stamp(0, lite=True)
    a("s_waitcnt vmcnt(0)")
    poll2(a, vm_loads(), list(range(VO, VO + 8, 2)), vtmp, gap=56 // Cfg.vm_depth, depth=Cfg.vm_depth)
    prof.stamp(1)
    for b in range(2):
        a(f"ds_write_b128 v{vMW}, {vr(VO+4*b,4)} offset:{1024*b}")
    a(f"s_lshl_b32 m0, s{sWV}, 12")
    a("s_waitcnt lgkmcnt(0)")
    a("s_barrier")
    for k in range(8):
        a(f"ds_read_b128 {vr(VM+4*k,4)}, v{vL16} offset:{VML + 1024*k}")
    PP1 = f"buffer_load_dwordx4 {vr(PQ,4)}, v{vL16}, {WS}, s{sBb} offen sc1"
    def um_cvt(hl):
        out = []
        for t in range(2):
            acc = UA + 8 * hl + 4 * t
            out.append(f"v_cvt_pk_bf16_f32 v{UM+8*t+2*hl}, v{acc}, v{acc+1}")
            out.append(f"v_cvt_pk_bf16_f32 v{UM+8*t+2*hl+1}, v{acc+2}, v{acc+3}")
        return out
    def um_head(hl, fill, wait=True):
        for b in range(2):
            if wait:
                a(f"s_waitcnt lgkmcnt({7-2*hl-b})")
            for t in range(2):
                a(f"v_smfmac_f32_16x16x64_bf16 {vr(UA+8*hl+4*t,4)}, {vr(VM+8*hl+4*b,4)}, {ar((2*hl+b)*16+8*t,8)}, v{vIDX}")
                for l in fill[2 * b + t]:
                    a(l)
    VD = lambda i: f"buffer_load_dwordx4 v{vL16}, {WS}, s{sE} offen offset:{1024*i} sc1 lds"
    um_head(0, [[], [VD(0)], [], [VD(1)]])
    um_head(1, [[], [VD(2)], [], [VD(3)]])
    c0 = um_cvt(0)
    um_head(2, [[c0[0]], [c0[1]], [c0[2]], [c0[3]]])
    c1 = um_cvt(1)
    um_head(3, [[c1[0]], [PP1, c1[1]], [c1[2]], [c1[3]]])
    for l in um_cvt(2):
        a(l)
    a(f"s_mul_i32 m0, s{sWV}, 3072")
    a(f"s_add_u32 m0, m0, {PXL}")
    a("s_nop 1")
    for l in um_cvt(3):
        a(l)
    NL = a.newlabel("or_notlast"); PXW = a.newlabel("or_pxwait")
    prof.stamp(2, keep_m0=True)
    PXD = [f"buffer_load_dwordx4 v{vL16}, {WS}, s{sG} offen offset:{1024*i} sc1 lds" for i in range(3)]
    PL = a.newlabel("or_pp"); PD = a.newlabel("or_ppd")
    a(f"s_cmp_lt_u32 s{sWV}, s{sNP}")
    a(f"s_cbranch_scc1 {PL}")
    a("s_waitcnt vmcnt(0)")
    a(f"s_cmp_lt_u32 s{sS}, 63")
    a(f"s_cbranch_scc1 {PD}")
    poll(a, [f"buffer_load_dwordx4 {vr(PXR+4*i,4)}, v{vL16}, {WS}, s{sG} offen offset:{1024*i} sc1" for i in range(3)],
         list(range(PXR, PXR + 12, 2)), vtmp)
    a(f"v_add_u32 v{vtmp}, m0, v{vL16}")
    for i in range(3):
        a(f"ds_write_b128 v{vtmp}, {vr(PXR+4*i,4)} offset:{1024*i}")
    a("s_waitcnt lgkmcnt(0)")
    a(f"s_branch {PXW}")
    a.label(PL)
    a(PP1)
    a(f"s_sub_u32 s{sBUD}, s{sBUD}, 1")
    a(f"s_cbranch_scc1 {a.abort}")
    a("s_waitcnt vmcnt(1)")
    a(f"v_max3_u32 v{vtmp}, v{PQ}, v{PQ+1}, v{PQ+2}")
    a(f"v_max_u32 v{vtmp}, v{vtmp}, v{PQ+3}")
    a(f"ds_write_b128 v{vPF}, {vr(PQ,4)}")
    a(f"v_cmp_eq_u32 vcc, -1, v{vtmp}")
    a(f"s_cbranch_vccnz {PL}")
    prof.stamp(6, keep_m0=True)
    a.label(PD)
    a("s_waitcnt lgkmcnt(0)")
    a("s_barrier")
    for k in range(3):
        a(f"ds_read_b128 {vr(PPR+4*k,4)}, v{vL16} offset:{PPL_ + 1024*k}")
    TWS = f"buffer_store_dword v{vZ}, v{vTWo}, {WS}, s{sT4} offen {loc}"
    for k in range(3):
        a(f"s_waitcnt lgkmcnt({2-k})")
        for t in range(2):
            b = UX + 16 * t + 8 * k if k < 2 else UM + 8 * t
            a(f"v_smfmac_f32_16x16x64_bf16 {vr(PA+4*t,4)}, {vr(PPR+4*k,4)}, {vr(b,8)}, v{vIDX}")
            if t == 0:
                a(PXD[k])
    a(TWS)
    a.nop(7)
    for r in range(4):
        a(f"v_permlane32_swap_b32 v{PA+r}, v{PA+4+r}")
    for r in range(0, 4, 2):
        a(f"v_pk_add_f32 {vr(PA+r,2)}, {vr(PA+r,2)}, {vr(PA+4+r,2)}")
    a(f"v_cvt_pk_bf16_f32 v{PK}, v{PA}, v{PA+1}")
    a(f"v_cvt_pk_bf16_f32 v{PK+1}, v{PA+2}, v{PA+3}")
    a(f"v_cvt_pk_bf16_f32 v{PK+3}, v{PA+2}, v{PA+3}")
    a(f"v_min_u32 v{PK+2}, -2, v{PK}")
    a(f"v_min_u32 v{PK}, -2, v{PK}")
    a(f"v_permlane16_swap_b32 v{PK+1}, v{PK+3}")
    a("s_nop 0")
    a(f"v_permlane16_swap_b32 v{PK}, v{PK+2}")
    a(f"buffer_store_dwordx4 {vr(PK,4)}, v{vPW}, {WS}, s{sC} offen sc1")
    prof.stamp(4, lite=True)
    a("s_waitcnt vmcnt(1)")
    a.label(PXW)
    RETRY = a.newlabel("or_pxretry"); PXOK = a.newlabel("or_pxok")
    a("s_barrier")
    vx_dma(1)
    a.label(RETRY)
    order = [(ks, rt) for ks in range(6) for rt in range(2)]
    for ks, rt in order:
        k = 6 * rt + ks
        a(f"ds_read_b128 {vr(PXR+4*k,4)}, v{vL16} offset:{PXL + 1024*k}")
    a(f"v_mov_b32 v{vtmp}, 0")
    for n, (ks, rt) in enumerate(order):
        k = 6 * rt + ks
        a(f"s_waitcnt lgkmcnt({11-n})")
        for t in range(2):
            u = UX + 16 * t + 4 * ks if ks < 4 else UM + 8 * t + 4 * (ks - 4)
            acc = ACC + 8 * rt + 4 * t
            c = "0" if ks == 0 else vr(acc, 4)
            a(f"v_mfma_f32_16x16x32_bf16 {vr(acc,4)}, {vr(u,4)}, {vr(PXR+4*k,4)}, {c}")
        a(f"v_max3_u32 v{vtmp}, v{vtmp}, v{PXR+4*k}, v{PXR+4*k+2}")
    a(f"v_cmp_eq_u32 vcc, -1, v{vtmp}")
    a(f"s_cbranch_vccz {PXOK}")
    a("s_barrier")
    px_dma()
    a("s_waitcnt vmcnt(0)")
    a("s_barrier")
    a(f"s_sub_u32 s{sBUD}, s{sBUD}, 1")
    a(f"s_cbranch_scc0 {RETRY}")
    a("s_endpgm")
    a.label(PXOK)
    a(f"s_lshl_b32 s{sT1}, s{sS}, 11")
    a(f"s_add_u32 s{sT1}, s{sT1}, s{sXPW}")
    a.nop(4)
    for rt in range(2):
        for t in range(2):
            acc = ACC + 8 * rt + 4 * t
            a(f"v_cvt_pk_bf16_f32 v{XO+4*rt+t}, v{acc}, v{acc+1}")
            a(f"v_cvt_pk_bf16_f32 v{XO+4*rt+2+t}, v{acc+2}, v{acc+3}")
    XST = [f"buffer_store_dwordx4 {vr(XO+4*rt,4)}, v{vXS}, {WS}, s{sT1} offen offset:{1024*rt} sc1 {'nt' if Cfg.xs_nt else ''}" for rt in range(2)]
    for r in range(0, 8, 2):
        a(f"v_min_u32 v{XO+r}, -2, v{XO+r}")
    prof.stamp(5)
    TAIL = a.newlabel("or_tail")
    a(f"s_cmp_eq_u32 s{sS}, 63")
    a(f"s_cbranch_scc1 {TAIL}")
    late = XST + [f"buffer_store_dwordx4 {vr(vSEN,4)}, v{vPW}, {WS}, s{sD} offen sc1",
                  f"buffer_store_dword v{vSEN}, v{vTWo}, {WS}, s{sT5} offen {loc}"]

    ex = {Cfg.st_at + 2 * i: [l] for i, l in enumerate(late)}
    def mid(f):
        a(f"s_waitcnt vmcnt({sum(1 for k in ex if k < f)})")
        a("s_barrier")
    last = ux_all(UX, ex, mid)
    a.nop(8)
    for l in last:
        a(l)
    prof.stamp(7)
    a(f"s_add_u32 s{sS}, s{sS}, 1")
    a(f"s_branch {LOOP}")
    a.label(TAIL)
    prof.mark(19)
    for l in XST:
        a(l)
    prof.stamp(7)
    dbg_time(a, 13)
    dbg_time(a, 15, cyc=True)
    prof.mark(20)
    prof.dump()
    a("s_endpgm")
```

```python
import sys, os, struct, math

KNAME = "gated_mix__memory_aug_recurrent_mem_tr__spectral_gfnet__prompt_kernel"
MB = 1 << 20

XP_OFF    = 0
XP_SH, XP_MASK = 15, 3
XPART_OFF = 48 * MB
PROG_OFF  = 80 * MB
RT_OFF    = 84 * MB
HT_OFF    = 88 * MB
Z_OFF     = 92 * MB
GATE_OFF  = 96 * MB
PM_OFF    = 98 * MB
PP_OFF    = 99 * MB
PX_OFF    = 100 * MB
PART_OFF  = 102 * MB
MEM_OFF   = 97 * MB
TW_OFF    = 101 * MB
PROF_OFF  = 104 * MB
WS_HALF   = 128 * MB

LDS_BYTES = 163840

def f32bits(x):
    return struct.unpack("<I", struct.pack("<f", x))[0]

class Asm:
    def __init__(self):
        self.lines = []
        self.uid = 0
    def __call__(self, s):
        for ln in s.split("\n"):
            ln = ln.strip()
            if ln:
                self.lines.append(" " + ln)
    def label(self, n):
        self.lines.append(n + ":")
    def newlabel(self, p):
        self.uid += 1
        return f"L_{p}_{self.uid}"
    def nop(self, n):
        while n > 0:
            k = min(n, 16)
            self(f"s_nop {k-1}")
            n -= k
    def text(self):
        return "\n".join(self.lines) + "\n"

def vr(b, n=1):
    return f"v{b}" if n == 1 else f"v[{b}:{b+n-1}]"
def ar(b, n=1):
    return f"a{b}" if n == 1 else f"a[{b}:{b+n-1}]"
def sr(b, n=1):
    return f"s{b}" if n == 1 else f"s[{b}:{b+n-1}]"

S_WS, S_X, S_W, S_DBG, S_OUT, S_WR, S_WI, S_AUX = 4, 8, 12, 16, 20, 24, 28, 32
P_X, P_MEM0, P_WQ, P_WK, P_WV, P_WO, P_WR, P_WI, P_GATE, P_OUT, P_DBG, P_WS = range(36, 60, 2)
sX, sSLOT, sWV, sBUD, sS = 60, 61, 62, 63, 64
sMODE = 101
sT0, sT1, sT2, sT3, sT4, sT5 = 65, 66, 67, 68, 69, 70
WS, XS, WW, DBG = sr(S_WS, 4), sr(S_X, 4), sr(S_W, 4), sr(S_DBG, 4)

DBG_H1 = 4
DBG_CL = 24
DBG_OV = 20
DBG_FB = 8

WFL = ['', 'nt', 'sc1', 'sc0 sc1 nt']
class Cfg:
    wfl = 1
    hfl = 1
    xfl = 0
    ffl = 0
    f_wait = 6
    o_wait = 4
    qk_split = True
    p_pre1 = 2
    exp_half = 0
    exp_f = 0
    f_ns = 4
    f_sl2 = 3
    xs_nt = False
    xl_nt = False
    out_fl = 2
    wb_early = True
    v_late = False
    rot = False
    rot_gap = 24
    g_pm = 0
    g_h = 20
    g_pp = 60
    g_px = 30
    st_pace = 4
    p_pre = 2
    tw_early = False
    r_late = 0
    profile = False
    force_fallback = False
    no_f = False
    realtime = False
    lite = False
    r_at = 14
    r2_at = 26
    r_sp = 2
    xpf_sleep = 6
    pp_prime = 3
    no_xpf = False
    no_wpf = True
    no_hpf = False
    hpf_from = 0
    dbgtime = False
    leak = 0
    r_split = 30
    st_at = 10
    px_at = 20
    r_delay = 2
    r_gap = 2
    t0_idle = 0
    tx_idle = 0
    tx_gap = 20
    p_idle = 0
    o_idle = 0
    r_idle = 14
    t0_gap = 28
    r_bar2 = False
    x_every = 3
    x_from = 14
    self_pf = False
    w_depth = 2
    vm_depth = 2
    pp_depth = 2
    fsm_depth = 2
    t_depth = 2
    t3_sleep = 24
    f_sleep = 20
    pp_lds = True
    pipe_mem = False
    pipe_pp = False
    pipe_part = False
    budget = 1000000

class VAlloc:
    def __init__(self, start=1):
        self.n = start
    def get(self, cnt=1, align=1):
        if cnt > 1 and align == 1:
            align = 2
        self.n = (self.n + align - 1) // align * align
        b = self.n
        self.n += cnt
        assert self.n <= 252, "out of VGPRs"
        return b

def srd(a, s, ptr, nbytes):
    a(f"s_mov_b32 s{s}, s{ptr}")
    a(f"s_mov_b32 s{s+1}, s{ptr+1}")
    a(f"s_mov_b32 s{s+2}, {nbytes:#x}")
    a(f"s_mov_b32 s{s+3}, 0x00020000")

def maxtree(a, regs, tmp):
    regs = list(regs)
    if len(regs) == 1:
        a(f"v_mov_b32 v{tmp}, v{regs[0]}")
        return
    if len(regs) == 2:
        a(f"v_max_u32 v{tmp}, v{regs[0]}, v{regs[1]}")
        return
    a(f"v_max3_u32 v{tmp}, v{regs[0]}, v{regs[1]}, v{regs[2]}")
    i = 3
    while i < len(regs):
        if i + 1 < len(regs):
            a(f"v_max3_u32 v{tmp}, v{tmp}, v{regs[i]}, v{regs[i+1]}")
            i += 2
        else:
            a(f"v_max_u32 v{tmp}, v{tmp}, v{regs[i]}")
            i += 1

def poll(a, loads, regs, tmp, sleep=0):
    L = a.newlabel("poll")
    F = a.newlabel("pfirst")
    a(f"s_branch {F}")
    a.label(L)
    if sleep:
        a(f"s_sleep {sleep}")
    a(f"s_sub_u32 s{sBUD}, s{sBUD}, 1")
    a(f"s_cbranch_scc1 {a.abort}")
    a.label(F)
    for l in loads:
        a(l)
    a("s_waitcnt vmcnt(0)")
    maxtree(a, regs, tmp)
    a(f"v_cmp_eq_u32 vcc, -1, v{tmp}")
    a(f"s_cbranch_vccnz {L}")

def poll2(a, loads, regs, tmp, gap=0, depth=2):
    L = a.newlabel("poll")
    for d in range(depth - 1):
        for l in loads:
            a(l)
        a.nop(gap)
    a.label(L)
    for l in loads:
        a(l)
    a(f"s_sub_u32 s{sBUD}, s{sBUD}, 1")
    a(f"s_cbranch_scc1 {a.abort}")
    a(f"s_waitcnt vmcnt({len(loads) * (depth - 1)})")
    if len(regs) > 1:
        maxtree(a, regs, tmp)
        a(f"v_cmp_eq_u32 vcc, -1, v{tmp}")
    else:
        a(f"v_cmp_eq_u32 vcc, -1, v{regs[0]}")
    a(f"s_cbranch_vccnz {L}")

def signal(a, byte_off, val):
    L = a.newlabel("nosig")
    a(f"s_cmp_eq_u32 s{sWV}, 0")
    a(f"s_cbranch_scc0 {L}")
    a(f"s_add_u32 s{sT0}, s{sMODE}, {byte_off}")
    a(f"s_mov_b32 s{sT1}, {val:#x}")
    a(f"s_atomic_add s{sT1}, s[{P_DBG}:{P_DBG+1}], s{sT0}")
    a("s_waitcnt lgkmcnt(0)")
    a.label(L)

def dbg_time(a, word, inv=False, cyc=False):
    if not Cfg.dbgtime:
        return
    L = a.newlabel("dbgt")
    a(f"s_or_b32 s98, s{sWV}, s{sX}")
    a(f"s_cbranch_scc1 {L}")
    a("s_memtime s[98:99]" if cyc else "s_memrealtime s[98:99]")
    a("s_waitcnt lgkmcnt(0)")
    if inv:
        a("s_not_b32 s98, s98")
    a(f"s_atomic_umax s98, s[{P_DBG}:{P_DBG+1}], {4*word}")
    a("s_waitcnt lgkmcnt(0)")
    a.label(L)

def wait_counter(a, byte_off, target, vt0, vt1, sleep, split16=False):
    L = a.newlabel("wc")
    D = a.newlabel("wcok")
    a(f"v_mov_b32 v{vt0}, {byte_off}")
    a.label(L)
    a(f"buffer_load_dword v{vt1}, v{vt0}, {DBG}, s{sMODE} offen sc1")
    a("s_waitcnt vmcnt(0)")
    a(f"v_readfirstlane_b32 s{sT0}, v{vt1}")
    a("s_nop 3")
    if split16:
        a(f"s_lshr_b32 s{sT1}, s{sT0}, 16")
        a(f"s_and_b32 s{sT2}, s{sT0}, 0xffff")
        a(f"s_add_u32 s{sT2}, s{sT2}, s{sT1}")
        a(f"s_cmp_ge_u32 s{sT2}, {target}")
    else:
        a(f"s_cmp_ge_u32 s{sT0}, {target}")
    a(f"s_cbranch_scc1 {D}")
    a(f"s_sleep {sleep}")
    a(f"s_sub_u32 s{sBUD}, s{sBUD}, 1")
    a(f"s_cbranch_scc0 {L}")
    a("s_endpgm")
    a.label(D)

def handshake_wait(a, mode, vt0, vt1, sleep, want_class=False):
    L = a.newlabel("hs"); F = a.newlabel("hs1"); C = a.newlabel("hs2")
    a(f"v_lshlrev_b32 v{vt0}, 2, v0")
    a(f"s_lshr_b32 s{sT1}, s{sMODE}, 2")
    a(f"s_add_u32 s{sT1}, s{sT1}, {DBG_H1//4}")
    a(f"s_branch {F}")
    a.label(L)
    a(f"s_sleep {sleep}")
    a(f"s_sub_u32 s{sBUD}, s{sBUD}, 1")
    a(f"s_cbranch_scc1 {a.abort}")
    a.label(F)
    a(f"buffer_load_dword v{vt1}, v{vt0}, {DBG}, 0 offen sc1")
    a("s_waitcnt vmcnt(0)")
    a(f"v_readlane_b32 s{sT0}, v{vt1}, s{sT1}")
    a(f"s_cmp_lg_u32 s{sMODE}, 0")
    a(f"s_cbranch_scc1 {C}")
    if Cfg.force_fallback:
        a("s_branch L_fallback")
    a(f"v_readlane_b32 s{sT2}, v{vt1}, {DBG_OV//4}")
    a(f"v_cmp_lt_u32 s[94:95], 32, v{vt1}")
    a(f"v_cmp_eq_u32 s[96:97], 32, v{vt1}")
    a("s_mov_b32 vcc_lo, 0x01010101")
    a("s_mov_b32 vcc_hi, 0x01010101")
    a(f"s_cmp_lg_u32 s{sT2}, 0")
    a("s_cbranch_scc1 L_fallback")
    a("s_and_b64 s[94:95], s[94:95], vcc")
    a("s_cbranch_scc1 L_fallback")
    a("s_and_b64 s[96:97], s[96:97], vcc")
    a("s_cmp_eq_u64 s[96:97], vcc")
    a(f"s_cbranch_scc0 {L}")
    a.label(C)
    a(f"s_cmp_ge_u32 s{sT0}, 64")
    a(f"s_cbranch_scc0 {L}")
    if want_class:
        a(f"s_lshl_b32 s{sT2}, s{sX}, 3")
        a(f"s_add_u32 s{sT2}, s{sT2}, {DBG_CL//4}")
        a(f"s_lshr_b32 s{sT0}, s{sMODE}, 7")
        a(f"s_add_u32 s{sT2}, s{sT2}, s{sT0}")
        a(f"v_readlane_b32 s{sT0}, v{vt1}, s{sT2}")
        a("s_nop 3")
        a(f"s_cmp_eq_u32 s{sT0}, 0")
        a(f"s_cbranch_scc1 {L}")

def helper_prefetch(a, sIDX, t0, t1):
    if Cfg.no_hpf:
        return
    a(f"s_lshr_b32 s{sT0}, s{sIDX}, 2")
    a(f"s_cmp_eq_u32 s{sT0}, 0")
    a(f"s_cselect_b64 s[94:95], s[{P_WQ}:{P_WQ+1}], s[{P_WK}:{P_WK+1}]")
    a(f"s_cmp_eq_u32 s{sT0}, 2")
    a(f"s_cselect_b64 s[94:95], s[{P_WV}:{P_WV+1}], s[94:95]")
    a(f"s_and_b32 s{sT0}, s{sIDX}, 3")
    a(f"s_lshl_b32 s{sT0}, s{sT0}, 2")
    a(f"s_add_u32 s{sT0}, s{sT0}, s{sWV}")
    a(f"s_lshl_b32 s{sT0}, s{sT0}, 16")
    a(f"s_lshl_b32 s{sT1}, s{sX}, 10")
    a(f"s_add_u32 s{sT0}, s{sT0}, s{sT1}")
    a(f"v_lshrrev_b32 v{t0}, 3, v0")
    a(f"v_lshlrev_b32 v{t0}, 13, v{t0}")
    a(f"v_and_b32 v{t1}, 7, v0")
    a(f"v_lshl_add_u32 v{t0}, v{t1}, 7, v{t0}")
    a(f"v_add_u32 v{t0}, s{sT0}, v{t0}")
    for k in range(Cfg.hpf_from, 8):
        a(f"v_add_u32 v{t1}, {k*MB:#x}, v{t0}")
        a(f"global_load_dword v{252+(k&3)}, v{t1}, s[94:95] {WFL[Cfg.hfl]}")

class Prof:
    def __init__(self, a, va):
        self.a = a
        if Cfg.profile:
            self.vo = va.get()
            self.vd = va.get(8)
            a(f"s_lshl_b32 s{sT0}, s{sX}, 5")
            a(f"s_add_u32 s{sT0}, s{sT0}, s{sSLOT}")
            a(f"s_lshl_b32 s{sT0}, s{sT0}, 2")
            a(f"s_add_u32 s{sT0}, s{sT0}, s{sWV}")
            a(f"s_lshl_b32 s{sT0}, s{sT0}, 11")
            a(f"s_add_u32 s{sT0}, s{sT0}, {PROF_OFF:#x}")
            a(f"v_lshlrev_b32 v{self.vo}, 2, v0")
            a(f"v_add_u32 v{self.vo}, s{sT0}, v{self.vo}")
            for k in range(8):
                a(f"v_mov_b32 v{self.vd+k}, 0")
            a(f"v_writelane_b32 v{self.vd+7}, s3, 0")
            self.mark(1)
    def stamp(self, k, cyc=False, keep_m0=False, lite=False):
        if not Cfg.profile or (Cfg.lite and not lite):
            return
        a = self.a
        if keep_m0:
            a("s_mov_b32 s100, m0")
            a("s_cselect_b32 s97, 1, 0")
            self.stamp(k, cyc)
            a("s_mov_b32 m0, s100")
            a("s_cmp_eq_u32 s97, 1")
            return
        a("s_memrealtime s[98:99]" if (Cfg.realtime and not cyc) else "s_memtime s[98:99]")
        a(f"s_and_b32 m0, s{sS}, 63")
        a("s_waitcnt lgkmcnt(0)")
        a(f"v_writelane_b32 v{self.vd+k}, s98, m0")
    def gap(self, k, n):
        a = self.a
        if Cfg.profile:
            a("s_memrealtime s[98:99]" if Cfg.realtime else "s_memtime s[98:99]")
            a.nop(max(n - 4, 0))
            a(f"s_and_b32 m0, s{sS}, 63")
            a("s_waitcnt lgkmcnt(0)")
            a(f"v_writelane_b32 v{self.vd+k}, s98, m0")
        else:
            a.nop(n)
    def mark(self, lane):
        if not (Cfg.profile and Cfg.lite):
            return
        a = self.a
        a("s_memrealtime s[98:99]")
        a("s_waitcnt lgkmcnt(0)")
        a(f"v_writelane_b32 v{self.vd+7}, s98, {lane}")
    def dump(self):
        if not Cfg.profile:
            return
        a = self.a
        for k in range(8):
            a(f"buffer_store_dword v{self.vd+k}, v{self.vo}, {WS}, 0 offen offset:{256*k}")

def weight_dma(a, vW, chunk, buf, stride, sB):
    for i in range(16):
        a(f"s_add_u32 m0, s{sB+1}, {buf*65536 + i*1024}")
        a(f"s_add_u32 s{sT0}, s{sB}, {(chunk*256 + 4*i)*stride}")
        a(f"buffer_load_dwordx4 v{vW}, {WW}, s{sT0} offen {WFL[Cfg.wfl]} lds")

def weight_tr(a, vTR, group, tiles=(0, 1)):
    for ks in range(8):
        for t in tiles:
            for q in range(2):
                d = group * 64 + (ks >> 1) * 16 + t * 8 + (ks & 1) * 4 + 2 * q
                a(f"ds_read_b64_tr_b16 {ar(d,2)}, v{vTR[q]} offset:{ks*8192 + 8*t}")
    a("s_waitcnt lgkmcnt(0)")

def weight_addr_setup(a, va, stride, sB, swap):
    vW = va.get(); vTR = va.get(4); t0 = va.get(); t1 = va.get()
    a(f"v_lshrrev_b32 v{t0}, 4, v0")
    a(f"v_lshlrev_b32 v{t1}, 2, v{t0}")
    a(f"v_and_b32 v{vW}, 15, v0")
    a(f"v_xor_b32 v{vW}, v{vW}, v{t1}")
    a(f"v_lshlrev_b32 v{vW}, 4, v{vW}")
    a(f"v_mul_u32_u24 v{t0}, {stride}, v{t0}")
    a(f"v_add_u32 v{vW}, v{vW}, v{t0}")
    if swap:
        a(f"v_bfe_u32 v{t0}, v0, 3, 1")
        a(f"v_bfe_u32 v{t1}, v0, 2, 1")
        a(f"v_lshl_add_u32 v{t0}, v{t0}, 2, v{t1}")
    else:
        a(f"v_bfe_u32 v{t0}, v0, 2, 2")
    if swap:
        a(f"v_bfe_u32 v{t1}, v0, 1, 1")
        a(f"v_and_b32 v{vTR}, 1, v0")
        a(f"v_lshl_add_u32 v{t1}, v{vTR}, 1, v{t1}")
    else:
        a(f"v_and_b32 v{t1}, 3, v0")
    a(f"s_lshl_b32 s{sT0}, s{sWV}, 2")
    a(f"v_add_u32 v{t1}, s{sT0}, v{t1}")
    a(f"v_and_b32 v{vTR}, 3, v{t0}")
    a(f"v_lshlrev_b32 v{vTR}, 2, v{vTR}")
    a(f"v_xor_b32 v{t1}, v{t1}, v{vTR}")
    a(f"v_lshlrev_b32 v{t1}, 4, v{t1}")
    a(f"v_lshrrev_b32 v{vTR}, 4, v0")
    a(f"v_lshlrev_b32 v{vTR}, 3, v{vTR}")
    a(f"v_add_u32 v{vTR}, v{vTR}, v{t0}")
    a(f"v_lshlrev_b32 v{vTR}, 8, v{vTR}")
    a(f"v_add_u32 v{vTR}, v{vTR}, v{t1}")
    if swap:
        a(f"v_xor_b32 v{vTR+1}, 128, v{vTR}")
        a(f"v_add_u32 v{vTR+1}, 512, v{vTR+1}")
    else:
        a(f"v_add_u32 v{vTR+1}, 1024, v{vTR}")
    a(f"v_add_u32 v{vTR+2}, 0x10000, v{vTR}")
    a(f"v_add_u32 v{vTR+3}, 0x10000, v{vTR+1}")
    a(f"s_mul_i32 s{sB}, s{sWV}, {64*stride}")
    a(f"s_lshl_b32 s{sB+1}, s{sWV}, 14")
    return vW, ((vTR, vTR + 1), (vTR + 2, vTR + 3)), t0, t1

def idx_setup(a, vIDX, t0):
    a(f"v_and_b32 v{t0}, 8, v0")
    a(f"v_cmp_ne_u32 vcc, 0, v{t0}")
    a(f"v_mov_b32 v{vIDX}, 0x44444444")
    a(f"v_mov_b32 v{t0}, 0xeeeeeeee")
    a("s_nop 1")
    a(f"v_cndmask_b32 v{vIDX}, v{vIDX}, v{t0}, vcc")

def halfsum(a, acc0, acc1, out):
    for r in range(4):
        a(f"v_permlane32_swap_b32 v{acc0+r}, v{acc1+r}")
    for r in range(4):
        a(f"v_add_f32 v{acc0+r}, v{acc0+r}, v{acc1+r}")
    a(f"v_cvt_pk_bf16_f32 v{out}, v{acc0}, v{acc0+1}")
    a(f"v_cvt_pk_bf16_f32 v{out+1}, v{acc0+2}, v{acc0+3}")

def xlane_gg(a, op, v, t):
    for sw in ("v_permlane16_swap_b32", "v_permlane32_swap_b32"):
        a(f"v_mov_b32 v{t}, v{v}")
        a("s_nop 1")
        a(f"{sw} v{v}, v{t}")
        a(f"{op} v{v}, v{v}, v{t}")

def dispatch(a, mode):
    from gen_f import role_f
    from gen_proj import role_proj
    from gen_t import role_t
    from gen_or import role_or
    LP, LO, LT, LF = (f"L_role_{n}_{mode}" for n in "potf")
    LF = "L_role_f"
    a(f"s_mov_b32 s{sMODE}, {128*mode}")
    a(f"s_cmp_lt_u32 s{sSLOT}, 12")
    a(f"s_cbranch_scc1 {LP}")
    a(f"s_cmp_lt_u32 s{sSLOT}, 20")
    a(f"s_cbranch_scc1 {LO}")
    a(f"s_cmp_lt_u32 s{sSLOT}, 28")
    a(f"s_cbranch_scc1 {LT}")
    a(f"s_branch {LF}")
    for lab, fn in ((LP, role_proj), (LO, role_or), (LT, role_t), (LF, role_f)):
        if fn is role_f and mode == 0:
            continue
        a.abort = lab + "_abort"
        a.label(a.abort)
        a("s_endpgm")
        a.lines.append(".p2align 6")
        a.label(lab)
        fn(a, mode)

def build():
    a = Asm()
    a("s_cmp_ge_u32 s2, 256")
    a("s_cbranch_scc0 L_start")
    a("s_endpgm")
    a.label("L_start")
    for i, off in enumerate((0, 16, 32, 64, 80, 96)):
        a(f"s_load_dwordx4 s[{36+4*i}:{39+4*i}], s[0:1], {off}")
    if Cfg.profile or Cfg.leak:
        a("s_memrealtime s[98:99]")
        a("s_waitcnt lgkmcnt(0)")
        a("s_mov_b32 s3, s98")
    a(f"s_getreg_b32 s{sX}, hwreg(HW_REG_XCC_ID)")
    a(f"s_and_b32 s{sX}, s{sX}, 15")
    a("v_lshrrev_b32 v1, 6, v0")
    a("v_and_b32 v0, 63, v0")
    a(f"v_readfirstlane_b32 s{sWV}, v1")
    a(f"s_mov_b32 s{sBUD}, {Cfg.budget}")
    a(f"s_mov_b32 s{sS}, -2")
    a(f"s_mov_b32 s{sMODE}, 0")
    a("s_waitcnt lgkmcnt(0)")
    srd(a, S_WS, P_WS, WS_HALF)
    srd(a, S_X, P_X, 4 * MB)
    srd(a, S_DBG, P_DBG, 256)
    a(f"s_and_b32 s{sT2}, s{sX}, 7")
    a("v_mov_b32 v3, 0")
    a(f"s_cmp_eq_u32 s{sWV}, 0")
    a("s_cbranch_scc0 L_notk0")
    a(f"s_lshl_b32 s{sT0}, s{sT2}, 5")
    a(f"s_lshr_b32 s{sSLOT}, s{sX}, 3")
    a(f"s_xor_b32 s{sSLOT}, s{sSLOT}, 1")
    a(f"s_atomic_add s{sSLOT}, s[{P_DBG}:{P_DBG+1}], s{sT0} glc")
    a.label("L_notk0")
    if not Cfg.no_wpf:
        a("s_lshr_b32 s72, s2, 3")
        a("s_lshl_b32 s72, s72, 2")
        a(f"s_add_u32 s72, s72, s{sWV}")
        a("v_lshrrev_b32 v4, 3, v0")
        a("v_lshlrev_b32 v4, 13, v4")
        a("v_and_b32 v5, 7, v0")
        a("v_lshl_add_u32 v4, v5, 7, v4")
        a("s_lshl_b32 s73, s72, 16")
        a(f"s_lshl_b32 s74, s{sT2}, 10")
        a("s_add_u32 s73, s73, s74")
        a("v_add_u32 v4, s73, v4")
        a("s_lshl_b32 s73, s72, 13")
        a(f"s_lshl_b32 s74, s{sT2}, 20")
        a("s_add_u32 s73, s73, s74")
        a("v_lshlrev_b32 v5, 7, v0")
        a("v_add_u32 v5, s73, v5")
        for k, ptr in enumerate((P_WQ, P_WK, P_WV)):
            a(f"global_load_dword v{252+k}, v4, s[{ptr}:{ptr+1}]")
        a(f"global_load_dword v255, v5, s[{P_WO}:{P_WO+1}]")
    a(f"s_cmp_eq_u32 s{sWV}, 0")
    a("s_cbranch_scc0 L_noticket")
    a("s_waitcnt lgkmcnt(0)")
    a(f"v_mov_b32 v2, s{sSLOT}")
    a("ds_write_b32 v3, v2")
    a("s_waitcnt lgkmcnt(0)")
    a.label("L_noticket")
    a("s_barrier")
    a("ds_read_b32 v2, v3")
    a("s_waitcnt lgkmcnt(0)")
    a(f"v_readfirstlane_b32 s{sSLOT}, v2")
    a("s_barrier")
    a(f"s_cmp_ge_u32 s{sX}, 8")
    a("s_cbranch_scc1 L_overflow")
    a(f"s_cmp_ge_u32 s{sSLOT}, 32")
    a("s_cbranch_scc1 L_overflow")
    a("s_branch L_mode0")
    a.label("L_overflow")
    signal(a, DBG_OV, 1)
    a.label("L_fallback")
    a("s_mov_b64 exec, -1")
    a("s_waitcnt vmcnt(0) lgkmcnt(0)")
    a("s_barrier")
    a(f"s_lshr_b32 s{sX}, s2, 5")
    a(f"s_and_b32 s{sSLOT}, s2, 31")
    a(f"s_add_u32 s{S_WS}, s{P_WS}, {WS_HALF:#x}")
    a(f"s_addc_u32 s{S_WS+1}, s{P_WS+1}, 0")
    a(f"s_mov_b32 s{sS}, -2")
    dispatch(a, 1)
    a.lines.append(".p2align 6")
    a.label("L_mode0")
    dispatch(a, 0)
    return a.text()

HEADER = open(os.path.join(os.path.dirname(os.path.abspath(__file__)), "header.txt")).read()

def full_text():
    body = build()
    return (HEADER + f"; @launch grid=(256,1,1) block=(256,1,1) lds={LDS_BYTES}\n"
            + '.amdgcn_target "amdgcn-amd-amdhsa--gfx950"\n.text\n'
            + f".globl {KNAME}\n.p2align 8\n.type {KNAME},@function\n{KNAME}:\n"
            + body
            + '.section .rodata,"a"\n.p2align 6\n'
            + f".amdhsa_kernel {KNAME}\n"
            + "  .amdhsa_next_free_vgpr 512\n  .amdhsa_next_free_sgpr 102\n  .amdhsa_accum_offset 256\n"
            + "  .amdhsa_group_segment_fixed_size 0\n  .amdhsa_kernarg_size 112\n  .amdhsa_user_sgpr_count 2\n"
            + "  .amdhsa_user_sgpr_kernarg_segment_ptr 1\n  .amdhsa_system_sgpr_workgroup_id_x 1\n"
            + "  .amdhsa_float_denorm_mode_32 3\n"
            + ".end_amdhsa_kernel\n")

if __name__ == "__main__":
    import gen as G
    out = sys.argv[1]
    for o in sys.argv[2:]:
        if "=" in o:
            k, v = o.split("="); setattr(G.Cfg, k, int(v))
        else:
            setattr(G.Cfg, o, True)
    open(out, "w").write(G.full_text())
```

```python
from gen import *

def role_or(a, mode):
    loc = "" if mode == 0 else "sc1"
    va = VAlloc()
    sB, sJ, sVM, sVX, sPP, sPX, sPARTw, sPARTr, sTW, sXPW, sFL = 72, 74, 75, 76, 77, 78, 79, 80, 81, 82, 83
    sA, sBb, sC, sD, sE, sF, sG = 85, 86, 87, 88, 89, 90, 91
    sR0, sR1, sMp, sMr = 84, 71, sT4, sT5
    sM0 = 92
    sNP = 83
    PXL = 32768
    VML = 49152
    PPL_ = 57344
    a(f"s_sub_u32 s{sJ}, s{sSLOT}, 12")
    a(f"s_lshl_b32 s{sT2}, s{sX}, 20")
    a(f"s_lshl_b32 s{sT1}, s{sJ}, 8")
    a(f"s_add_u32 s{sT2}, s{sT2}, s{sT1}")
    a(f"s_add_u32 s{S_W}, s{P_WO}, s{sT2}")
    a(f"s_addc_u32 s{S_W+1}, s{P_WO+1}, 0")
    a(f"s_sub_u32 s{S_W+2}, {8*MB:#x}, s{sT2}")
    a(f"s_mov_b32 s{S_W+3}, 0x00020000")
    a(f"s_lshl_b32 s{sVM}, s{sX}, 2")
    a(f"s_add_u32 s{sVM}, s{sVM}, s{sWV}")
    a(f"s_lshl_b32 s{sVM}, s{sVM}, 13")
    a(f"s_add_u32 s{sVM}, s{sVM}, {PM_OFF + 64*8192:#x}")
    a(f"s_lshl_b32 s{sT0}, s{sX}, 2")
    a(f"s_lshr_b32 s{sT1}, s{sWV}, 1")
    a(f"s_add_u32 s{sT0}, s{sT0}, s{sT1}")
    a(f"s_lshl_b32 s{sVX}, s{sT0}, {XP_SH}")
    a(f"s_and_b32 s{sT1}, s{sWV}, 1")
    a(f"s_lshl_b32 s{sT1}, s{sT1}, 12")
    a(f"s_add_u32 s{sVX}, s{sVX}, s{sT1}")
    a(f"s_add_u32 s{sVX}, s{sVX}, {64<<XP_SH:#x}")
    a(f"s_lshl_b32 s{sPP}, s{sX}, 14")
    a(f"s_add_u32 s{sPP}, s{sPP}, {PP_OFF:#x}")
    a(f"s_min_u32 s{sT1}, s{sWV}, 2")
    a(f"s_lshl_b32 s{sT1}, s{sT1}, 10")
    a(f"s_add_u32 s{sPP}, s{sPP}, s{sT1}")
    a(f"s_lshl_b32 s{sTW}, s{sX}, 12")
    a(f"s_lshl_b32 s{sT1}, s{sJ}, 7")
    a(f"s_add_u32 s{sTW}, s{sTW}, s{sT1}")
    a(f"s_add_u32 s{sTW}, s{sTW}, {TW_OFF:#x}")
    a(f"s_lshl_b32 s{sPX}, s{sX}, 16")
    a(f"s_mul_i32 s{sT1}, s{sWV}, 3072")
    a(f"s_add_u32 s{sPX}, s{sPX}, s{sT1}")
    a(f"s_add_u32 s{sPX}, s{sPX}, {PX_OFF:#x}")
    a(f"s_lshl_b32 s{sT0}, s{sJ}, 2")
    a(f"s_add_u32 s{sT0}, s{sT0}, s{sWV}")
    a(f"s_and_b32 s{sT1}, s{sT0}, 15")
    a(f"s_lshl_b32 s{sT1}, s{sT1}, 9")
    a(f"s_lshr_b32 s{sT2}, s{sT0}, 4")
    a(f"s_lshl_b32 s{sT2}, s{sT2}, 14")
    a(f"s_add_u32 s{sT1}, s{sT1}, s{sT2}")
    a(f"s_add_u32 s{sPARTr}, s{sT1}, {PART_OFF:#x}")
    a(f"s_lshl_b32 s{sT2}, s{sX}, 15")
    a(f"s_add_u32 s{sPARTw}, s{sPARTr}, s{sT2}")
    a(f"s_lshl_b32 s{sT1}, s{sT0}, 17")
    a(f"s_add_u32 s{sXPW}, s{sT1}, {XPART_OFF:#x}")
    a(f"s_lshl_b32 s{sT2}, s{sX}, 22")
    a(f"s_add_u32 s{sXPW}, s{sXPW}, s{sT2}")
    prof = Prof(a, va)
    vW, vTR, t0, t1 = weight_addr_setup(a, va, 2048, sB, True)
    vXP = va.get(); vXQ = va.get(); sXA = 84
    a(f"v_lshrrev_b32 v{t0}, 4, v0")
    a(f"v_min_u32 v{t0}, 1, v{t0}")
    a(f"v_lshlrev_b32 v{t0}, 28, v{t0}")
    a(f"v_lshl_add_u32 v{t0}, v0, 7, v{t0}")
    a(f"s_lshl_b32 s{sT0}, s{sJ}, 2")
    a(f"s_add_u32 s{sT0}, s{sT0}, s{sWV}")
    a(f"s_lshl_b32 s{sT0}, s{sT0}, 11")
    a(f"v_add_u32 v{vXP}, s{sT0}, v{t0}")
    for k in range(3):
        a(f"s_mov_b32 s{sXA}, {k << 16}")
        a(f"buffer_load_dword v{vXQ}, v{vXP}, {XS}, s{sXA} offen")
    for i in range(Cfg.o_wait):
        a("s_sleep 32")
    prof.mark(2)
    weight_dma(a, vW, 0, 0, 2048, sB)
    weight_dma(a, vW, 1, 1, 2048, sB)
    t2 = va.get(); vtmp = va.get()
    vL16 = va.get(); vPW = va.get(); vPF = va.get(); vMW = va.get(); vFL = va.get(); vZ = va.get()
    vSEN = va.get(4, 4)
    a(f"v_lshlrev_b32 v{vL16}, 4, v0")
    a(f"v_lshrrev_b32 v{t0}, 5, v0")
    a(f"v_and_b32 v{t1}, 15, v0")
    a(f"v_lshl_add_u32 v{t0}, v{t0}, 4, v{t1}")
    a(f"v_lshlrev_b32 v{t0}, 4, v{t0}")
    a(f"v_bfe_u32 v{t1}, v0, 4, 1")
    a(f"v_lshl_add_u32 v{vPW}, v{t1}, 13, v{t0}")
    a(f"s_lshl_b32 s{sT0}, s{sWV}, 10")
    a(f"s_add_u32 s{sT0}, s{sT0}, {PPL_}")
    a(f"v_add_u32 v{vPF}, s{sT0}, v{vL16}")
    a(f"s_lshl_b32 s{sT0}, s{sWV}, 11")
    a(f"s_add_u32 s{sT0}, s{sT0}, {VML}")
    a(f"v_add_u32 v{vMW}, s{sT0}, v{vL16}")
    for r in range(4):
        a(f"v_mov_b32 v{vSEN+r}, -1")
    a(f"v_mov_b32 v{vZ}, 0")
    a(f"v_min_u32 v{t0}, 1, v0")
    a(f"v_lshlrev_b32 v{vFL}, 28, v{t0}")
    vTWo = va.get()
    a(f"s_cmp_eq_u32 s{sWV}, 3")
    a(f"s_cselect_b32 s{sT0}, 0, 0x10000000")
    a(f"v_or_b32 v{vTWo}, s{sT0}, v{vFL}")
    PK = va.get(4, 4)
    vXS = va.get()
    a(f"v_bfe_u32 v{t0}, v0, 2, 2")
    a(f"v_lshlrev_b32 v{vXS}, 8, v{t0}")
    a(f"v_bfe_u32 v{t0}, v0, 4, 1")
    a(f"v_lshl_add_u32 v{vXS}, v{t0}, 7, v{vXS}")
    a(f"v_lshrrev_b32 v{t0}, 5, v0")
    a(f"v_lshl_add_u32 v{vXS}, v{t0}, 6, v{vXS}")
    a(f"v_and_b32 v{t0}, 3, v0")
    a(f"v_lshl_add_u32 v{vXS}, v{t0}, 4, v{vXS}")
    vIDX = va.get()
    idx_setup(a, vIDX, t0)

    PXR = va.get(48, 4)
    VM = PXR
    UA = va.get(32, 4)
    UX = va.get(32, 8); UM = va.get(16, 8)
    FR = PXR
    VO = va.get(8, 4); PPR = FR; XO = va.get(8, 4)
    ACC = UA
    WT = PXR
    assert UA == PXR + 48
    a(f"v_and_b32 v{t0}, 2, v0")
    a(f"v_cmp_eq_u32 s[92:93], 0, v{t0}")
    a(f"v_cmp_ne_u32 s[94:95], 0, v{t0}")
    for c in range(2):
        a(f"s_waitcnt vmcnt({16 if c == 0 else 0})")
        a("s_barrier")
        for ks in range(8):
            for t in range(2):
                for q in range(2):
                    d = (ks >> 1) * 16 + t * 8 + (ks & 1) * 4 + 2 * q
                    a(f"ds_read_b64_tr_b16 {vr(WT+d,2)}, v{vTR[c][q]} offset:{ks*8192 + 8*t}")
        a("s_waitcnt lgkmcnt(0)")
        for t in range(2):
            a(f"s_mov_b64 vcc, s[{92+2*t}:{93+2*t}]")
            for kb in range(4):
                for r in range(8):
                    A = WT + kb * 16 + r; B = A + 8
                    if t == 0:
                        a(f"v_cndmask_b32_dpp v{vtmp}, v{B}, v{A}, vcc quad_perm:[0,1,0,1] row_mask:0xf bank_mask:0xf")
                    else:
                        a(f"v_cndmask_b32_dpp v{vtmp}, v{A}, v{B}, vcc quad_perm:[2,3,2,3] row_mask:0xf bank_mask:0xf")
                    a(f"v_accvgpr_write_b32 a{c*64 + kb*16 + 8*t + r}, v{vtmp}")
                    a("s_nop 0")
    a("s_barrier")
    prof.mark(8)
    handshake_wait(a, mode, t0, t1, 8)
    prof.mark(9)

    def vm_loads():
        return [f"buffer_load_dwordx4 {vr(VO+4*b,4)}, v{vL16}, {WS}, s{sA} offen offset:{1024*b} sc1" for b in range(2)]
    def vm_slots():
        a(f"s_and_b32 s{sT0}, s{sS}, 3")
        a(f"s_lshl_b32 s{sT0}, s{sT0}, 11")
        a(f"s_add_u32 s{sA}, s{sT0}, s{sVM}")
    def vx_setup():
        a(f"s_add_u32 s{sT0}, s{sS}, 1")
        a(f"s_and_b32 s{sT0}, s{sT0}, {XP_MASK}")
        a(f"s_lshl_b32 s{sT0}, s{sT0}, 13")
        a(f"s_add_u32 s{sE}, s{sT0}, s{sVX}")
        a(f"s_add_u32 s{sF}, s{sE}, {2<<XP_SH:#x}")
    def vx_dma(pair):
        a(f"s_lshl_b32 m0, s{sWV}, 12")
        if pair:
            a("s_add_u32 m0, m0, 16384")
        a("s_nop 0")
        for i in range(4):
            a(f"buffer_load_dwordx4 v{vL16}, {WS}, s{sE+pair} offen offset:{1024*i} sc1 lds")
    def px_dma():
        a(f"s_mul_i32 m0, s{sWV}, 3072")
        a(f"s_add_u32 m0, m0, {PXL}")
        a("s_nop 0")
        for i in range(3):
            a(f"buffer_load_dwordx4 v{vL16}, {WS}, s{sG} offen offset:{1024*i} sc1 lds")
    def ux_all(dst, extra={}, mid=None):
        frs = [(hl, ks, rt) for hl in range(4) for ks in range(4) for rt in range(2)]
        DEPTH = 5; NR = 8
        def rd(f):
            hl, ks, rt = frs[f]
            a(f"ds_read_b128 {vr(FR+4*(f%NR),4)}, v{vL16} offset:{hl*8192 + rt*4096 + ks*1024}")
        def cvts(hl):
            base = UA + 16 * (hl & 1)
            out = []
            for t in range(2):
                for rt in range(2):
                    acc = base + 8 * rt + 4 * t
                    d = dst + 16 * t + 4 * hl + 2 * rt
                    out.append(f"v_cvt_pk_bf16_f32 v{d}, v{acc}, v{acc+1}")
                    out.append(f"v_cvt_pk_bf16_f32 v{d+1}, v{acc+2}, v{acc+3}")
            return out
        for f in range(DEPTH):
            rd(f)
        pend = []
        for f in range(32):
            hl, ks, rt = frs[f]
            if mid and f + DEPTH == 16:
                mid(f)
            a(f"s_waitcnt lgkmcnt({min(DEPTH-1, 31-f)})")
            if hl > 0 and f % 8 == 3:
                pend = cvts(hl - 1)
            for t in range(2):
                acc = UA + 16 * (hl & 1) + 8 * rt + 4 * t
                c = "0" if ks == 0 else vr(acc, 4)
                a(f"v_mfma_f32_16x16x32_bf16 {vr(acc,4)}, {vr(FR+4*(f%NR),4)}, {ar((2*hl+(ks>>1))*16+8*t+4*(ks&1),4)}, {c}")
                if t == 0 and f + DEPTH < 32:
                    rd(f + DEPTH)
                if t == 1:
                    for l in extra.get(f, []):
                        a(l)
                if pend:
                    a(pend.pop(0))
        return cvts(3)

    a(f"s_mov_b32 s{sS}, -1")
    vm_slots()
    poll(a, vm_loads(), range(VO, VO + 8, 2), vtmp, sleep=4)
    a("s_barrier")
    prof.mark(10)
    vx_setup()
    vx_dma(0)
    vx_dma(1)
    a("s_waitcnt vmcnt(0)")
    a("s_barrier")
    last = ux_all(UX)
    a.nop(8)
    for l in last:
        a(l)
    a(f"s_mov_b32 s{sS}, 0")
    if Cfg.leak == 2:
        a("s_memrealtime s[98:99]")
        a("s_waitcnt lgkmcnt(0)")
        a("s_sub_u32 s100, s98, s3")
        a("s_mul_i32 s100, s100, 5")
    dbg_time(a, 12)
    dbg_time(a, 7, cyc=True)
    prof.mark(11)
    PQ = va.get(4, 4)
    PA = va.get(8, 4)
    LOOP = a.newlabel("or_loop")
    a.label(LOOP)
    for r in range(32):
        a(f"v_mov_b32 v{UA+r}, 0")
    for r in range(8):
        a(f"v_mov_b32 v{PA+r}, 0")
    vm_slots()
    vx_setup()
    a(f"s_and_b32 s{sT0}, s{sS}, 3")
    a(f"s_lshl_b32 s{sBb}, s{sT0}, 12")
    a(f"s_add_u32 s{sBb}, s{sBb}, s{sPP}")
    a(f"s_lshl_b32 s{sG}, s{sT0}, 14")
    a(f"s_add_u32 s{sG}, s{sG}, s{sPX}")
    a(f"s_lshl_b32 s{sC}, s{sT0}, 18")
    a(f"s_xor_b32 s{sD}, s{sC}, {2<<18:#x}")
    a(f"s_add_u32 s{sC}, s{sC}, s{sPARTw}")
    a(f"s_add_u32 s{sD}, s{sD}, s{sPARTw}")
    a(f"s_lshl_b32 s{sT4}, s{sT0}, 10")
    a(f"s_xor_b32 s{sT5}, s{sT4}, 2048")
    a(f"s_add_u32 s{sT4}, s{sT4}, s{sTW}")
    a(f"s_add_u32 s{sT5}, s{sT5}, s{sTW}")
    a(f"s_cmp_lt_u32 s{sS}, 63")
    a(f"s_cselect_b32 s{sNP}, 3, 0")
    if Cfg.o_idle:
        a(f"s_sleep {Cfg.o_idle}")
    prof.stamp(0, lite=True)
    a("s_waitcnt vmcnt(0)")
    poll2(a, vm_loads(), list(range(VO, VO + 8, 2)), vtmp, gap=56 // Cfg.vm_depth, depth=Cfg.vm_depth)
    prof.stamp(1)
    for b in range(2):
        a(f"ds_write_b128 v{vMW}, {vr(VO+4*b,4)} offset:{1024*b}")
    a(f"s_lshl_b32 m0, s{sWV}, 12")
    a("s_waitcnt lgkmcnt(0)")
    a("s_barrier")
    for k in range(8):
        a(f"ds_read_b128 {vr(VM+4*k,4)}, v{vL16} offset:{VML + 1024*k}")
    PP1 = f"buffer_load_dwordx4 {vr(PQ,4)}, v{vL16}, {WS}, s{sBb} offen sc1"
    def um_cvt(hl):
        out = []
        for t in range(2):
            acc = UA + 8 * hl + 4 * t
            out.append(f"v_cvt_pk_bf16_f32 v{UM+8*t+2*hl}, v{acc}, v{acc+1}")
            out.append(f"v_cvt_pk_bf16_f32 v{UM+8*t+2*hl+1}, v{acc+2}, v{acc+3}")
        return out
    def um_head(hl, fill, wait=True):
        for b in range(2):
            if wait:
                a(f"s_waitcnt lgkmcnt({7-2*hl-b})")
            for t in range(2):
                a(f"v_smfmac_f32_16x16x64_bf16 {vr(UA+8*hl+4*t,4)}, {vr(VM+8*hl+4*b,4)}, {ar((2*hl+b)*16+8*t,8)}, v{vIDX}")
                for l in fill[2 * b + t]:
                    a(l)
    VD = lambda i: f"buffer_load_dwordx4 v{vL16}, {WS}, s{sE} offen offset:{1024*i} sc1 lds"
    um_head(0, [[], [VD(0)], [], [VD(1)]])
    um_head(1, [[], [VD(2)], [], [VD(3)]])
    c0 = um_cvt(0)
    um_head(2, [[c0[0]], [c0[1]], [c0[2]], [c0[3]]])
    c1 = um_cvt(1)
    um_head(3, [[c1[0]], [PP1, c1[1]], [c1[2]], [c1[3]]])
    for l in um_cvt(2):
        a(l)
    a(f"s_mul_i32 m0, s{sWV}, 3072")
    a(f"s_add_u32 m0, m0, {PXL}")
    a("s_nop 1")
    for l in um_cvt(3):
        a(l)
    NL = a.newlabel("or_notlast"); PXW = a.newlabel("or_pxwait")
    prof.stamp(2, keep_m0=True)
    PXD = [f"buffer_load_dwordx4 v{vL16}, {WS}, s{sG} offen offset:{1024*i} sc1 lds" for i in range(3)]
    PL = a.newlabel("or_pp"); PD = a.newlabel("or_ppd")
    a(f"s_cmp_lt_u32 s{sWV}, s{sNP}")
    a(f"s_cbranch_scc1 {PL}")
    a("s_waitcnt vmcnt(0)")
    a(f"s_cmp_lt_u32 s{sS}, 63")
    a(f"s_cbranch_scc1 {PD}")
    poll(a, [f"buffer_load_dwordx4 {vr(PXR+4*i,4)}, v{vL16}, {WS}, s{sG} offen offset:{1024*i} sc1" for i in range(3)],
         list(range(PXR, PXR + 12, 2)), vtmp)
    a(f"v_add_u32 v{vtmp}, m0, v{vL16}")
    for i in range(3):
        a(f"ds_write_b128 v{vtmp}, {vr(PXR+4*i,4)} offset:{1024*i}")
    a("s_waitcnt lgkmcnt(0)")
    a(f"s_branch {PXW}")
    a.label(PL)
    a(PP1)
    a(f"s_sub_u32 s{sBUD}, s{sBUD}, 1")
    a(f"s_cbranch_scc1 {a.abort}")
    a("s_waitcnt vmcnt(1)")
    a(f"v_max3_u32 v{vtmp}, v{PQ}, v{PQ+1}, v{PQ+2}")
    a(f"v_max_u32 v{vtmp}, v{vtmp}, v{PQ+3}")
    a(f"ds_write_b128 v{vPF}, {vr(PQ,4)}")
    a(f"v_cmp_eq_u32 vcc, -1, v{vtmp}")
    a(f"s_cbranch_vccnz {PL}")
    prof.stamp(6, keep_m0=True)
    a.label(PD)
    a("s_waitcnt lgkmcnt(0)")
    a("s_barrier")
    for k in range(3):
        a(f"ds_read_b128 {vr(PPR+4*k,4)}, v{vL16} offset:{PPL_ + 1024*k}")
    TWS = f"buffer_store_dword v{vZ}, v{vTWo}, {WS}, s{sT4} offen {loc}"
    for k in range(3):
        a(f"s_waitcnt lgkmcnt({2-k})")
        for t in range(2):
            b = UX + 16 * t + 8 * k if k < 2 else UM + 8 * t
            a(f"v_smfmac_f32_16x16x64_bf16 {vr(PA+4*t,4)}, {vr(PPR+4*k,4)}, {vr(b,8)}, v{vIDX}")
            if t == 0:
                a(PXD[k])
    a(TWS)
    a.nop(7)
    for r in range(4):
        a(f"v_permlane32_swap_b32 v{PA+r}, v{PA+4+r}")
    for r in range(0, 4, 2):
        a(f"v_pk_add_f32 {vr(PA+r,2)}, {vr(PA+r,2)}, {vr(PA+4+r,2)}")
    a(f"v_cvt_pk_bf16_f32 v{PK}, v{PA}, v{PA+1}")
    a(f"v_cvt_pk_bf16_f32 v{PK+1}, v{PA+2}, v{PA+3}")
    a(f"v_cvt_pk_bf16_f32 v{PK+3}, v{PA+2}, v{PA+3}")
    a(f"v_min_u32 v{PK+2}, -2, v{PK}")
    a(f"v_min_u32 v{PK}, -2, v{PK}")
    a(f"v_permlane16_swap_b32 v{PK+1}, v{PK+3}")
    a("s_nop 0")
    a(f"v_permlane16_swap_b32 v{PK}, v{PK+2}")
    a(f"buffer_store_dwordx4 {vr(PK,4)}, v{vPW}, {WS}, s{sC} offen sc1")
    prof.stamp(4, lite=True)
    a("s_waitcnt vmcnt(1)")
    a.label(PXW)
    RETRY = a.newlabel("or_pxretry"); PXOK = a.newlabel("or_pxok")
    a("s_barrier")
    vx_dma(1)
    a.label(RETRY)
    order = [(ks, rt) for ks in range(6) for rt in range(2)]
    for ks, rt in order:
        k = 6 * rt + ks
        a(f"ds_read_b128 {vr(PXR+4*k,4)}, v{vL16} offset:{PXL + 1024*k}")
    a(f"v_mov_b32 v{vtmp}, 0")
    for n, (ks, rt) in enumerate(order):
        k = 6 * rt + ks
        a(f"s_waitcnt lgkmcnt({11-n})")
        for t in range(2):
            u = UX + 16 * t + 4 * ks if ks < 4 else UM + 8 * t + 4 * (ks - 4)
            acc = ACC + 8 * rt + 4 * t
            c = "0" if ks == 0 else vr(acc, 4)
            a(f"v_mfma_f32_16x16x32_bf16 {vr(acc,4)}, {vr(u,4)}, {vr(PXR+4*k,4)}, {c}")
        a(f"v_max3_u32 v{vtmp}, v{vtmp}, v{PXR+4*k}, v{PXR+4*k+2}")
    a(f"v_cmp_eq_u32 vcc, -1, v{vtmp}")
    a(f"s_cbranch_vccz {PXOK}")
    a("s_barrier")
    px_dma()
    a("s_waitcnt vmcnt(0)")
    a("s_barrier")
    a(f"s_sub_u32 s{sBUD}, s{sBUD}, 1")
    a(f"s_cbranch_scc0 {RETRY}")
    a("s_endpgm")
    a.label(PXOK)
    a(f"s_lshl_b32 s{sT1}, s{sS}, 11")
    a(f"s_add_u32 s{sT1}, s{sT1}, s{sXPW}")
    a.nop(4)
    for rt in range(2):
        for t in range(2):
            acc = ACC + 8 * rt + 4 * t
            a(f"v_cvt_pk_bf16_f32 v{XO+4*rt+t}, v{acc}, v{acc+1}")
            a(f"v_cvt_pk_bf16_f32 v{XO+4*rt+2+t}, v{acc+2}, v{acc+3}")
    XST = [f"buffer_store_dwordx4 {vr(XO+4*rt,4)}, v{vXS}, {WS}, s{sT1} offen offset:{1024*rt} sc1 {'nt' if Cfg.xs_nt else ''}" for rt in range(2)]
    for r in range(0, 8, 2):
        a(f"v_min_u32 v{XO+r}, -2, v{XO+r}")
    prof.stamp(5)
    TAIL = a.newlabel("or_tail")
    a(f"s_cmp_eq_u32 s{sS}, 63")
    a(f"s_cbranch_scc1 {TAIL}")
    late = XST + [f"buffer_store_dwordx4 {vr(vSEN,4)}, v{vPW}, {WS}, s{sD} offen sc1",
                  f"buffer_store_dword v{vSEN}, v{vTWo}, {WS}, s{sT5} offen {loc}"]

    ex = {Cfg.st_at + 2 * i: [l] for i, l in enumerate(late)}
    def mid(f):
        a(f"s_waitcnt vmcnt({sum(1 for k in ex if k < f)})")
        a("s_barrier")
    last = ux_all(UX, ex, mid)
    a.nop(8)
    for l in last:
        a(l)
    prof.stamp(7)
    a(f"s_add_u32 s{sS}, s{sS}, 1")
    a(f"s_branch {LOOP}")
    a.label(TAIL)
    prof.mark(19)
    for l in XST:
        a(l)
    prof.stamp(7)
    if Cfg.leak:
        a("s_memrealtime s[98:99]")
        a("s_waitcnt lgkmcnt(0)")
        if Cfg.leak == 1:
            a("s_sub_u32 s100, s98, s3")
        a("s_mov_b32 s3, s98")
        LL = a.newlabel("leak")
        a.label(LL)
        a("s_memrealtime s[98:99]")
        a("s_waitcnt lgkmcnt(0)")
        a("s_sub_u32 s98, s98, s3")
        a("s_cmp_lt_u32 s98, s100")
        a(f"s_cbranch_scc1 {LL}")
    dbg_time(a, 13)
    dbg_time(a, 15, cyc=True)
    prof.mark(20)
    prof.dump()
    a("s_endpgm")
```

```python
from gen import *
from gen_mp import MemPass

def role_proj(a, mode):
    loc = "" if mode == 0 else "sc1"
    va = VAlloc()
    sXP, sXM = 76, 80
    prof = Prof(a, va)
    MP = MemPass(a, va, mode, sSLOT, prof, False)
    prof.mark(2)
    MP.start_weights()
    MP.setup()
    t0, t1, t2, vL16, sTY = MP.t0, MP.t1, MP.t2, MP.vL16, MP.sTY
    a(f"s_lshl_b32 s{sXP}, s{MP.sTH}, {XP_SH}")
    a(f"s_lshl_b32 s{sT3}, s{sWV}, 10")
    a(f"s_add_u32 s{sXP}, s{sXP}, s{sT3}")
    vXD = va.get()
    a(f"v_lshrrev_b32 v{t0}, 3, v0")
    a(f"v_lshrrev_b32 v{t1}, 4, v0")
    a(f"s_and_b32 s{sT3}, s{sWV}, 1")
    a(f"s_lshl_b32 s{sT3}, s{sT3}, 2")
    a(f"v_add_u32 v{t1}, s{sT3}, v{t1}")
    a(f"v_and_b32 v{t2}, 7, v0")
    a(f"v_xor_b32 v{t1}, v{t1}, v{t2}")
    a(f"v_lshlrev_b32 v{t1}, 4, v{t1}")
    a(f"s_lshl_b32 s{sT3}, s{sWV}, 3")
    a(f"v_add_u32 v{t0}, s{sT3}, v{t0}")
    a(f"v_lshl_add_u32 v{vXD}, v{t0}, 11, v{t1}")
    vXR = va.get(8)
    a(f"v_bfe_u32 v{t0}, v0, 3, 1")
    a(f"v_lshlrev_b32 v{t0}, 10, v{t0}")
    a(f"v_and_b32 v{t1}, 7, v0")
    a(f"v_lshl_add_u32 v{t0}, v{t1}, 7, v{t0}")
    a(f"v_bfe_u32 v{t1}, v0, 1, 3")
    a(f"v_lshrrev_b32 v{t2}, 4, v0")
    a(f"v_xor_b32 v{t1}, v{t1}, v{t2}")
    a(f"v_lshl_add_u32 v{t0}, v{t1}, 4, v{t0}")
    for G in range(4):
        a(f"s_add_u32 s{sT3}, s{sWV}, {G}")
        a(f"s_and_b32 s{sT3}, s{sT3}, 3")
        a(f"s_lshl_b32 s{sT4}, s{sT3}, 14")
        a(f"v_add_u32 v{vXR+2*G}, s{sT4}, v{t0}")
        a(f"v_xor_b32 v{vXR+2*G+1}, 64, v{vXR+2*G}")
    vXP = va.get(); vXQ = va.get(); sXA = 82
    a(f"v_lshrrev_b32 v{t0}, 4, v0")
    a(f"s_lshr_b32 s{sT0}, s{sSLOT}, 3")
    a(f"v_or_b32 v{t0}, s{sT0}, v{t0}")
    a(f"v_min_u32 v{t0}, 1, v{t0}")
    a(f"v_lshlrev_b32 v{t0}, 28, v{t0}")
    a(f"v_lshl_add_u32 v{t0}, v0, 7, v{t0}")
    a(f"s_lshl_b32 s{sT0}, s{sSLOT}, 2")
    a(f"s_add_u32 s{sT0}, s{sT0}, s{sWV}")
    a(f"s_lshl_b32 s{sT0}, s{sT0}, 11")
    a(f"v_add_u32 v{vXP}, s{sT0}, v{t0}")
    def x0():
        a(f"s_lshl_b32 s{sXM}, s{sWV}, 10")
        a(f"s_mov_b32 s{sXM+1}, 0")
        for kb in range(16):
            a(f"s_add_u32 m0, s{sXM}, {kb*(4096-128)}")
            a("s_nop 0")
            a(f"buffer_load_dwordx4 v{vXD}, {XS}, s{sXM+1} offen offset:{kb*128} lds")
    MP.load_weights(x0)
    prof.mark(7)
    M2 = va.get(48, 4)
    ACC = va.get(16, 4); FR = va.get(32, 4); OUTR = va.get(8, 4)
    a(f"s_mov_b32 s{sS}, -2")
    a(f"s_add_u32 s{MP.sSL}, s{MP.sPM}, {2*2048}")
    LOOP = a.newlabel("proj_loop"); CRIT = a.newlabel("proj_crit"); XPASS = a.newlabel("proj_x"); END = a.newlabel("proj_end")
    a.label(LOOP)
    a(f"s_cmp_ge_i32 s{sS}, 0")
    a(f"s_cbranch_scc1 {CRIT}")
    a("s_waitcnt vmcnt(0)")
    a("s_barrier")
    a(f"s_cmp_eq_i32 s{sS}, -2")
    a(f"s_cbranch_scc1 {XPASS}")
    prof.mark(8)
    handshake_wait(a, mode, t0, t1, 8)
    prof.mark(9)
    a(f"s_add_u32 s{sT0}, s{MP.sPM}, {3*2048}")
    a(f"buffer_store_dwordx2 {vr(MP.PK,2)}, v{MP.vPMa}, {WS}, s{sT0} offen {loc}")
    a(f"s_branch {XPASS}")
    HALF = a.newlabel("proj_half"); PUB = a.newlabel("proj_pub")
    a.label(HALF)
    MP.gather(ACC)
    prof.stamp(1)
    MP.compute(ACC, M2, (0,))
    prof.gap(2, Cfg.g_pm)
    a(f"s_branch {PUB}")
    a.label(CRIT)
    prof.stamp(4, True, lite=True)
    prof.stamp(0, lite=True)
    MP.address()
    MP.first_loads()
    a(f"s_cmp_eq_u32 s{sTY}, 2")
    a(f"s_cbranch_scc0 {HALF}")
    MP.gather(ACC)
    prof.stamp(1)
    MP.compute(ACC, M2, (0, 1))
    prof.gap(2, Cfg.g_pm)
    a.label(PUB)
    MP.finish(False)
    a(f"s_cmp_ge_i32 s{sS}, 62")
    a(f"s_cbranch_scc1 {END}")
    a.label(XPASS)
    a(f"s_add_u32 s{sT0}, s{sS}, 3")
    a(f"s_min_u32 s{sT1}, s{sT0}, 63")
    a(f"s_lshl_b32 s{sXM+1}, s{sT1}, 16")
    a(f"s_and_b32 s{sT0}, s{sT0}, 1")
    a(f"s_lshl_b32 s{sT0}, s{sT0}, 16")
    a(f"s_lshl_b32 s{sXM}, s{sWV}, 10")
    a(f"s_add_u32 s{sXM}, s{sXM}, s{sT0}")
    if Cfg.x_rot:
        a(f"s_lshl_b32 s{sT0}, s{sSLOT}, 2")
        a(f"s_add_u32 s{sT0}, s{sT0}, s{sWV}")
        a(f"s_mul_i32 s{sT0}, s{sT0}, {Cfg.x_rot}")
        a(f"s_and_b32 s{sT0}, s{sT0}, 15")
        a(f"s_lshl_b32 s{sT1}, s{sT0}, 12")
        a(f"s_add_u32 s{sXM}, s{sXM}, s{sT1}")
        a(f"s_lshl_b32 s{sT1}, s{sT0}, 7")
        a(f"s_add_u32 s{sXM+1}, s{sXM+1}, s{sT1}")
    a(f"s_add_u32 s{sXA}, s{sS}, 5")
    a(f"s_min_u32 s{sXA}, s{sXA}, 63")
    a(f"s_lshl_b32 s{sXA}, s{sXA}, 16")
    DEPTH = 6
    DE = Cfg.x_every
    frs = [(ks, rt) for ks in range(32) for rt in range(2)]
    def rd(f):
        ks, rt = frs[f]
        G = ks >> 3
        a(f"ds_read_b128 {vr(FR+4*(f%8),4)}, v{vXR+2*G+(ks&1)} offset:{((ks>>1)&3)*4096 + rt*2048}")
    for f in range(DEPTH):
        rd(f)
    for f in range(64):
        ks, rt = frs[f]
        g = f - Cfg.x_from
        dm = (g >= 0 and g % DE == 1 and g // DE < 16)
        a(f"s_waitcnt lgkmcnt({min(DEPTH-1, 63-f)})")
        if dm:
            a(f"s_xor_b32 m0, s{sXM}, {(g//DE)*4096}")
        if g >= 0 and g % DE == 0 and g // DE < 16:
            a(f"s_xor_b32 s{sT2}, s{sXM+1}, {(g//DE)*128}")
        for t in range(2):
            acc = ACC + 8 * rt + 4 * t
            c = "0" if ks == 0 else vr(acc, 4)
            a(f"v_mfma_f32_16x16x32_bf16 {vr(acc,4)}, {ar((ks>>1)*16+8*t+4*(ks&1),4)}, {vr(FR+4*(f%8),4)}, {c}")
            if t == 0 and f + DEPTH < 64:
                rd(f + DEPTH)
            if t == 1 and f == Cfg.xpf_at and not Cfg.no_xpf:
                a(f"buffer_load_dword v{vXQ}, v{vXP}, {XS}, s{sXA} offen")
            if t == 1 and f == Cfg.rs_at:
                MP.reset()
            if t == 1 and dm:
                a(f"buffer_load_dwordx4 v{vXD}, {XS}, s{sT2} offen lds")
    for k in range(8):
        a(f"v_xor_b32 v{vXR+k}, 0x10000, v{vXR+k}")
    a(f"s_add_u32 s{sT0}, s{sS}, 2")
    a(f"s_and_b32 s{sT0}, s{sT0}, {XP_MASK}")
    a(f"s_lshl_b32 s{sT0}, s{sT0}, 13")
    a(f"s_add_u32 s{sT0}, s{sT0}, s{sXP}")
    a(f"s_add_u32 s{sT1}, s{sT0}, 4096")
    for rt in range(2):
        for t in range(2):
            acc = ACC + 8 * rt + 4 * t
            a(f"v_cvt_pk_bf16_f32 v{OUTR+4*rt+2*t}, v{acc}, v{acc+1}")
            a(f"v_cvt_pk_bf16_f32 v{OUTR+4*rt+2*t+1}, v{acc+2}, v{acc+3}")
    NS = a.newlabel("proj_noswap")
    a(f"s_cmp_eq_u32 s{sTY}, 2")
    a(f"s_cbranch_scc0 {NS}")
    a(f"v_swap_b32 v{OUTR+1}, v{OUTR+2}")
    a(f"v_swap_b32 v{OUTR+5}, v{OUTR+6}")
    a.label(NS)
    for rt in range(2):
        a(f"buffer_store_dwordx4 {vr(OUTR+4*rt,4)}, v{vL16}, {WS}, s{sT0+rt} offen {loc}")
    prof.stamp(5, True)
    prof.stamp(3)
    a.label(END)
    a("s_waitcnt vmcnt(0)")
    a(f"s_add_u32 s{sS}, s{sS}, 1")
    a(f"s_cmp_lt_i32 s{sS}, 64")
    a(f"s_cbranch_scc1 {LOOP}")
    prof.mark(20)
    prof.dump()
    a("s_endpgm")
```

```python
import sys, os, struct, math

KNAME = "gated_mix__memory_aug_recurrent_mem_tr__spectral_gfnet__prompt_kernel"
MB = 1 << 20

XP_OFF    = 0
XP_SH, XP_MASK = 15, 3
XPART_OFF = 48 * MB
PROG_OFF  = 80 * MB
RT_OFF    = 84 * MB
HT_OFF    = 88 * MB
Z_OFF     = 92 * MB
GATE_OFF  = 96 * MB
PM_OFF    = 98 * MB
PP_OFF    = 99 * MB
PX_OFF    = 100 * MB
PART_OFF  = 102 * MB
MEM_OFF   = 97 * MB
TW_OFF    = 101 * MB
PROF_OFF  = 104 * MB
WS_HALF   = 128 * MB

LDS_BYTES = 163840

def f32bits(x):
    return struct.unpack("<I", struct.pack("<f", x))[0]

class Asm:
    def __init__(self):
        self.lines = []
        self.uid = 0
    def __call__(self, s):
        for ln in s.split("\n"):
            ln = ln.strip()
            if ln:
                self.lines.append(" " + ln)
    def label(self, n):
        self.lines.append(n + ":")
    def newlabel(self, p):
        self.uid += 1
        return f"L_{p}_{self.uid}"
    def nop(self, n):
        while n > 0:
            k = min(n, 16)
            self(f"s_nop {k-1}")
            n -= k
    def text(self):
        return "\n".join(self.lines) + "\n"

def vr(b, n=1):
    return f"v{b}" if n == 1 else f"v[{b}:{b+n-1}]"
def ar(b, n=1):
    return f"a{b}" if n == 1 else f"a[{b}:{b+n-1}]"
def sr(b, n=1):
    return f"s{b}" if n == 1 else f"s[{b}:{b+n-1}]"

S_WS, S_X, S_W, S_DBG, S_OUT, S_WR, S_WI, S_AUX = 4, 8, 12, 16, 20, 24, 28, 32
P_X, P_MEM0, P_WQ, P_WK, P_WV, P_WO, P_WR, P_WI, P_GATE, P_OUT, P_DBG, P_WS = range(36, 60, 2)
sX, sSLOT, sWV, sBUD, sS = 60, 61, 62, 63, 64
sMODE = 101
sT0, sT1, sT2, sT3, sT4, sT5 = 65, 66, 67, 68, 69, 70
WS, XS, WW, DBG = sr(S_WS, 4), sr(S_X, 4), sr(S_W, 4), sr(S_DBG, 4)

DBG_H1 = 4
DBG_CL = 24
DBG_OV = 20
DBG_FB = 8

WFL = ['', 'nt', 'sc1', 'sc0 sc1 nt']
class Cfg:
    wfl = 1
    hfl = 1
    xfl = 0
    ffl = 0
    f_wait = 6
    o_wait = 4
    qk_split = True
    p_pre1 = 2
    exp_half = 0
    exp_f = 0
    f_ns = 4
    f_sl2 = 3
    xs_nt = False
    xl_nt = False
    out_fl = 2
    wb_early = True
    v_late = False
    rot = False
    rot_gap = 24
    g_pm = 0
    g_h = 20
    g_pp = 60
    g_px = 30
    st_pace = 4
    p_pre = 2
    tw_early = False
    r_late = 0
    profile = False
    force_fallback = False
    no_f = False
    realtime = False
    lite = False
    r_at = 14
    r2_at = 26
    r_sp = 2
    xpf_sleep = 6
    pp_prime = 3
    no_xpf = False
    code_pf = True
    xpf_at = 2
    x_rot = 0
    rs_at = 8
    no_hpf = False
    hpf_from = 0
    dbgtime = False
    leak = 0
    r_split = 30
    st_at = 10
    px_at = 20
    r_delay = 2
    r_gap = 2
    t0_idle = 0
    tx_idle = 0
    tx_gap = 20
    p_idle = 0
    o_idle = 0
    r_idle = 14
    t0_gap = 28
    r_bar2 = False
    x_every = 3
    x_from = 14
    self_pf = False
    w_depth = 2
    vm_depth = 2
    pp_depth = 2
    fsm_depth = 2
    t_depth = 2
    t3_sleep = 24
    f_sleep = 20
    pp_lds = True
    pipe_mem = False
    pipe_pp = False
    pipe_part = False
    budget = 1000000

class VAlloc:
    def __init__(self, start=1):
        self.n = start
    def get(self, cnt=1, align=1):
        if cnt > 1 and align == 1:
            align = 2
        self.n = (self.n + align - 1) // align * align
        b = self.n
        self.n += cnt
        assert self.n <= 252, "out of VGPRs"
        return b

def srd(a, s, ptr, nbytes):
    a(f"s_mov_b32 s{s}, s{ptr}")
    a(f"s_mov_b32 s{s+1}, s{ptr+1}")
    a(f"s_mov_b32 s{s+2}, {nbytes:#x}")
    a(f"s_mov_b32 s{s+3}, 0x00020000")

def maxtree(a, regs, tmp):
    regs = list(regs)
    if len(regs) == 1:
        a(f"v_mov_b32 v{tmp}, v{regs[0]}")
        return
    if len(regs) == 2:
        a(f"v_max_u32 v{tmp}, v{regs[0]}, v{regs[1]}")
        return
    a(f"v_max3_u32 v{tmp}, v{regs[0]}, v{regs[1]}, v{regs[2]}")
    i = 3
    while i < len(regs):
        if i + 1 < len(regs):
            a(f"v_max3_u32 v{tmp}, v{tmp}, v{regs[i]}, v{regs[i+1]}")
            i += 2
        else:
            a(f"v_max_u32 v{tmp}, v{tmp}, v{regs[i]}")
            i += 1

def poll(a, loads, regs, tmp, sleep=0):
    L = a.newlabel("poll")
    F = a.newlabel("pfirst")
    a(f"s_branch {F}")
    a.label(L)
    if sleep:
        a(f"s_sleep {sleep}")
    a(f"s_sub_u32 s{sBUD}, s{sBUD}, 1")
    a(f"s_cbranch_scc1 {a.abort}")
    a.label(F)
    for l in loads:
        a(l)
    a("s_waitcnt vmcnt(0)")
    maxtree(a, regs, tmp)
    a(f"v_cmp_eq_u32 vcc, -1, v{tmp}")
    a(f"s_cbranch_vccnz {L}")

def poll2(a, loads, regs, tmp, gap=0, depth=2):
    L = a.newlabel("poll")
    for d in range(depth - 1):
        for l in loads:
            a(l)
        a.nop(gap)
    a.label(L)
    for l in loads:
        a(l)
    a(f"s_sub_u32 s{sBUD}, s{sBUD}, 1")
    a(f"s_cbranch_scc1 {a.abort}")
    a(f"s_waitcnt vmcnt({len(loads) * (depth - 1)})")
    if len(regs) > 1:
        maxtree(a, regs, tmp)
        a(f"v_cmp_eq_u32 vcc, -1, v{tmp}")
    else:
        a(f"v_cmp_eq_u32 vcc, -1, v{regs[0]}")
    a(f"s_cbranch_vccnz {L}")

def signal(a, byte_off, val):
    L = a.newlabel("nosig")
    a(f"s_cmp_eq_u32 s{sWV}, 0")
    a(f"s_cbranch_scc0 {L}")
    a(f"s_add_u32 s{sT0}, s{sMODE}, {byte_off}")
    a(f"s_mov_b32 s{sT1}, {val:#x}")
    a(f"s_atomic_add s{sT1}, s[{P_DBG}:{P_DBG+1}], s{sT0}")
    a("s_waitcnt lgkmcnt(0)")
    a.label(L)

def dbg_time(a, word, inv=False, cyc=False):
    if not Cfg.dbgtime:
        return
    L = a.newlabel("dbgt")
    a(f"s_or_b32 s98, s{sWV}, s{sX}")
    a(f"s_cbranch_scc1 {L}")
    a("s_memtime s[98:99]" if cyc else "s_memrealtime s[98:99]")
    a("s_waitcnt lgkmcnt(0)")
    if inv:
        a("s_not_b32 s98, s98")
    a(f"s_atomic_umax s98, s[{P_DBG}:{P_DBG+1}], {4*word}")
    a("s_waitcnt lgkmcnt(0)")
    a.label(L)

def wait_counter(a, byte_off, target, vt0, vt1, sleep, split16=False):
    L = a.newlabel("wc")
    D = a.newlabel("wcok")
    a(f"v_mov_b32 v{vt0}, {byte_off}")
    a.label(L)
    a(f"buffer_load_dword v{vt1}, v{vt0}, {DBG}, s{sMODE} offen sc1")
    a("s_waitcnt vmcnt(0)")
    a(f"v_readfirstlane_b32 s{sT0}, v{vt1}")
    a("s_nop 3")
    if split16:
        a(f"s_lshr_b32 s{sT1}, s{sT0}, 16")
        a(f"s_and_b32 s{sT2}, s{sT0}, 0xffff")
        a(f"s_add_u32 s{sT2}, s{sT2}, s{sT1}")
        a(f"s_cmp_ge_u32 s{sT2}, {target}")
    else:
        a(f"s_cmp_ge_u32 s{sT0}, {target}")
    a(f"s_cbranch_scc1 {D}")
    a(f"s_sleep {sleep}")
    a(f"s_sub_u32 s{sBUD}, s{sBUD}, 1")
    a(f"s_cbranch_scc0 {L}")
    a("s_endpgm")
    a.label(D)

def handshake_wait(a, mode, vt0, vt1, sleep, want_class=False):
    L = a.newlabel("hs"); F = a.newlabel("hs1"); C = a.newlabel("hs2")
    a(f"v_lshlrev_b32 v{vt0}, 2, v0")
    a(f"s_lshr_b32 s{sT1}, s{sMODE}, 2")
    a(f"s_add_u32 s{sT1}, s{sT1}, {DBG_H1//4}")
    a(f"s_branch {F}")
    a.label(L)
    a(f"s_sleep {sleep}")
    a(f"s_sub_u32 s{sBUD}, s{sBUD}, 1")
    a(f"s_cbranch_scc1 {a.abort}")
    a.label(F)
    a(f"buffer_load_dword v{vt1}, v{vt0}, {DBG}, 0 offen sc1")
    a("s_waitcnt vmcnt(0)")
    a(f"v_readlane_b32 s{sT0}, v{vt1}, s{sT1}")
    a(f"s_cmp_lg_u32 s{sMODE}, 0")
    a(f"s_cbranch_scc1 {C}")
    if Cfg.force_fallback:
        a("s_branch L_fallback")
    a(f"v_readlane_b32 s{sT2}, v{vt1}, {DBG_OV//4}")
    a(f"v_cmp_lt_u32 s[94:95], 32, v{vt1}")
    a(f"v_cmp_eq_u32 s[96:97], 32, v{vt1}")
    a("s_mov_b32 vcc_lo, 0x01010101")
    a("s_mov_b32 vcc_hi, 0x01010101")
    a(f"s_cmp_lg_u32 s{sT2}, 0")
    a("s_cbranch_scc1 L_fallback")
    a("s_and_b64 s[94:95], s[94:95], vcc")
    a("s_cbranch_scc1 L_fallback")
    a("s_and_b64 s[96:97], s[96:97], vcc")
    a("s_cmp_eq_u64 s[96:97], vcc")
    a(f"s_cbranch_scc0 {L}")
    a.label(C)
    a(f"s_cmp_ge_u32 s{sT0}, 64")
    a(f"s_cbranch_scc0 {L}")
    if want_class:
        a(f"s_lshl_b32 s{sT2}, s{sX}, 3")
        a(f"s_add_u32 s{sT2}, s{sT2}, {DBG_CL//4}")
        a(f"s_lshr_b32 s{sT0}, s{sMODE}, 7")
        a(f"s_add_u32 s{sT2}, s{sT2}, s{sT0}")
        a(f"v_readlane_b32 s{sT0}, v{vt1}, s{sT2}")
        a("s_nop 3")
        a(f"s_cmp_eq_u32 s{sT0}, 0")
        a(f"s_cbranch_scc1 {L}")

def helper_prefetch(a, sIDX, t0, t1):
    if Cfg.no_hpf:
        return
    a(f"s_lshr_b32 s{sT0}, s{sIDX}, 2")
    a(f"s_cmp_eq_u32 s{sT0}, 0")
    a(f"s_cselect_b64 s[94:95], s[{P_WQ}:{P_WQ+1}], s[{P_WK}:{P_WK+1}]")
    a(f"s_cmp_eq_u32 s{sT0}, 2")
    a(f"s_cselect_b64 s[94:95], s[{P_WV}:{P_WV+1}], s[94:95]")
    a(f"s_and_b32 s{sT0}, s{sIDX}, 3")
    a(f"s_lshl_b32 s{sT0}, s{sT0}, 2")
    a(f"s_add_u32 s{sT0}, s{sT0}, s{sWV}")
    a(f"s_lshl_b32 s{sT0}, s{sT0}, 16")
    a(f"s_lshl_b32 s{sT1}, s{sX}, 10")
    a(f"s_add_u32 s{sT0}, s{sT0}, s{sT1}")
    a(f"v_lshrrev_b32 v{t0}, 3, v0")
    a(f"v_lshlrev_b32 v{t0}, 13, v{t0}")
    a(f"v_and_b32 v{t1}, 7, v0")
    a(f"v_lshl_add_u32 v{t0}, v{t1}, 7, v{t0}")
    a(f"v_add_u32 v{t0}, s{sT0}, v{t0}")
    for k in range(Cfg.hpf_from, 8):
        a(f"v_add_u32 v{t1}, {k*MB:#x}, v{t0}")
        a(f"global_load_dword v{252+(k&3)}, v{t1}, s[94:95] {WFL[Cfg.hfl]}")

class Prof:
    def __init__(self, a, va):
        self.a = a
        if Cfg.profile:
            self.vo = va.get()
            self.vd = va.get(8)
            a(f"s_lshl_b32 s{sT0}, s{sX}, 5")
            a(f"s_add_u32 s{sT0}, s{sT0}, s{sSLOT}")
            a(f"s_lshl_b32 s{sT0}, s{sT0}, 2")
            a(f"s_add_u32 s{sT0}, s{sT0}, s{sWV}")
            a(f"s_lshl_b32 s{sT0}, s{sT0}, 11")
            a(f"s_add_u32 s{sT0}, s{sT0}, {PROF_OFF:#x}")
            a(f"v_lshlrev_b32 v{self.vo}, 2, v0")
            a(f"v_add_u32 v{self.vo}, s{sT0}, v{self.vo}")
            for k in range(8):
                a(f"v_mov_b32 v{self.vd+k}, 0")
            a(f"v_writelane_b32 v{self.vd+7}, s3, 0")
            self.mark(1)
    def stamp(self, k, cyc=False, keep_m0=False, lite=False):
        if not Cfg.profile or (Cfg.lite and not lite):
            return
        a = self.a
        if keep_m0:
            a("s_mov_b32 s100, m0")
            a("s_cselect_b32 s97, 1, 0")
            self.stamp(k, cyc)
            a("s_mov_b32 m0, s100")
            a("s_cmp_eq_u32 s97, 1")
            return
        a("s_memrealtime s[98:99]" if (Cfg.realtime and not cyc) else "s_memtime s[98:99]")
        a(f"s_and_b32 m0, s{sS}, 63")
        a("s_waitcnt lgkmcnt(0)")
        a(f"v_writelane_b32 v{self.vd+k}, s98, m0")
    def gap(self, k, n):
        a = self.a
        if Cfg.profile:
            a("s_memrealtime s[98:99]" if Cfg.realtime else "s_memtime s[98:99]")
            a.nop(max(n - 4, 0))
            a(f"s_and_b32 m0, s{sS}, 63")
            a("s_waitcnt lgkmcnt(0)")
            a(f"v_writelane_b32 v{self.vd+k}, s98, m0")
        else:
            a.nop(n)
    def mark(self, lane):
        if not (Cfg.profile and Cfg.lite):
            return
        a = self.a
        a("s_memrealtime s[98:99]")
        a("s_waitcnt lgkmcnt(0)")
        a(f"v_writelane_b32 v{self.vd+7}, s98, {lane}")
    def dump(self):
        if not Cfg.profile:
            return
        a = self.a
        for k in range(8):
            a(f"buffer_store_dword v{self.vd+k}, v{self.vo}, {WS}, 0 offen offset:{256*k}")

def weight_dma(a, vW, chunk, buf, stride, sB):
    for i in range(16):
        a(f"s_add_u32 m0, s{sB+1}, {buf*65536 + i*1024}")
        a(f"s_add_u32 s{sT0}, s{sB}, {(chunk*256 + 4*i)*stride}")
        a(f"buffer_load_dwordx4 v{vW}, {WW}, s{sT0} offen {WFL[Cfg.wfl]} lds")

def weight_tr(a, vTR, group, tiles=(0, 1)):
    for ks in range(8):
        for t in tiles:
            for q in range(2):
                d = group * 64 + (ks >> 1) * 16 + t * 8 + (ks & 1) * 4 + 2 * q
                a(f"ds_read_b64_tr_b16 {ar(d,2)}, v{vTR[q]} offset:{ks*8192 + 8*t}")
    a("s_waitcnt lgkmcnt(0)")

def weight_addr_setup(a, va, stride, sB, swap):
    vW = va.get(); vTR = va.get(4); t0 = va.get(); t1 = va.get()
    a(f"v_lshrrev_b32 v{t0}, 4, v0")
    a(f"v_lshlrev_b32 v{t1}, 2, v{t0}")
    a(f"v_and_b32 v{vW}, 15, v0")
    a(f"v_xor_b32 v{vW}, v{vW}, v{t1}")
    a(f"v_lshlrev_b32 v{vW}, 4, v{vW}")
    a(f"v_mul_u32_u24 v{t0}, {stride}, v{t0}")
    a(f"v_add_u32 v{vW}, v{vW}, v{t0}")
    if swap:
        a(f"v_bfe_u32 v{t0}, v0, 3, 1")
        a(f"v_bfe_u32 v{t1}, v0, 2, 1")
        a(f"v_lshl_add_u32 v{t0}, v{t0}, 2, v{t1}")
    else:
        a(f"v_bfe_u32 v{t0}, v0, 2, 2")
    if swap:
        a(f"v_bfe_u32 v{t1}, v0, 1, 1")
        a(f"v_and_b32 v{vTR}, 1, v0")
        a(f"v_lshl_add_u32 v{t1}, v{vTR}, 1, v{t1}")
    else:
        a(f"v_and_b32 v{t1}, 3, v0")
    a(f"s_lshl_b32 s{sT0}, s{sWV}, 2")
    a(f"v_add_u32 v{t1}, s{sT0}, v{t1}")
    a(f"v_and_b32 v{vTR}, 3, v{t0}")
    a(f"v_lshlrev_b32 v{vTR}, 2, v{vTR}")
    a(f"v_xor_b32 v{t1}, v{t1}, v{vTR}")
    a(f"v_lshlrev_b32 v{t1}, 4, v{t1}")
    a(f"v_lshrrev_b32 v{vTR}, 4, v0")
    a(f"v_lshlrev_b32 v{vTR}, 3, v{vTR}")
    a(f"v_add_u32 v{vTR}, v{vTR}, v{t0}")
    a(f"v_lshlrev_b32 v{vTR}, 8, v{vTR}")
    a(f"v_add_u32 v{vTR}, v{vTR}, v{t1}")
    if swap:
        a(f"v_xor_b32 v{vTR+1}, 128, v{vTR}")
        a(f"v_add_u32 v{vTR+1}, 512, v{vTR+1}")
    else:
        a(f"v_add_u32 v{vTR+1}, 1024, v{vTR}")
    a(f"v_add_u32 v{vTR+2}, 0x10000, v{vTR}")
    a(f"v_add_u32 v{vTR+3}, 0x10000, v{vTR+1}")
    a(f"s_mul_i32 s{sB}, s{sWV}, {64*stride}")
    a(f"s_lshl_b32 s{sB+1}, s{sWV}, 14")
    return vW, ((vTR, vTR + 1), (vTR + 2, vTR + 3)), t0, t1

def idx_setup(a, vIDX, t0):
    a(f"v_and_b32 v{t0}, 8, v0")
    a(f"v_cmp_ne_u32 vcc, 0, v{t0}")
    a(f"v_mov_b32 v{vIDX}, 0x44444444")
    a(f"v_mov_b32 v{t0}, 0xeeeeeeee")
    a("s_nop 1")
    a(f"v_cndmask_b32 v{vIDX}, v{vIDX}, v{t0}, vcc")

def halfsum(a, acc0, acc1, out):
    for r in range(4):
        a(f"v_permlane32_swap_b32 v{acc0+r}, v{acc1+r}")
    for r in range(4):
        a(f"v_add_f32 v{acc0+r}, v{acc0+r}, v{acc1+r}")
    a(f"v_cvt_pk_bf16_f32 v{out}, v{acc0}, v{acc0+1}")
    a(f"v_cvt_pk_bf16_f32 v{out+1}, v{acc0+2}, v{acc0+3}")

def xlane_gg(a, op, v, t):
    for sw in ("v_permlane16_swap_b32", "v_permlane32_swap_b32"):
        a(f"v_mov_b32 v{t}, v{v}")
        a("s_nop 1")
        a(f"{sw} v{v}, v{t}")
        a(f"{op} v{v}, v{v}, v{t}")

def dispatch(a, mode):
    from gen_f import role_f
    from gen_proj import role_proj
    from gen_t import role_t
    from gen_or import role_or
    LP, LO, LT, LF = (f"L_role_{n}_{mode}" for n in "potf")
    LF = "L_role_f"
    a(f"s_mov_b32 s{sMODE}, {128*mode}")
    a(f"s_cmp_lt_u32 s{sSLOT}, 12")
    a(f"s_cbranch_scc1 {LP}")
    a(f"s_cmp_lt_u32 s{sSLOT}, 20")
    a(f"s_cbranch_scc1 {LO}")
    a(f"s_cmp_lt_u32 s{sSLOT}, 28")
    a(f"s_cbranch_scc1 {LT}")
    a(f"s_branch {LF}")
    for lab, fn in ((LF, role_f), (LP, role_proj), (LT, role_t), (LO, role_or)):
        if fn is role_f and mode == 0:
            continue
        a.abort = lab + "_abort"
        a.label(a.abort)
        a("s_endpgm")
        a.lines.append(".p2align 6")
        a.label(lab)
        fn(a, mode)

def build():
    a = Asm()
    a("s_cmp_ge_u32 s2, 256")
    a("s_cbranch_scc0 L_start")
    a("s_endpgm")
    a.label("L_start")
    for i, off in enumerate((0, 16, 32, 64, 80, 96)):
        a(f"s_load_dwordx4 s[{36+4*i}:{39+4*i}], s[0:1], {off}")
    if Cfg.code_pf:
        a("s_getpc_b64 s[72:73]")
        a("s_lshr_b32 s74, s2, 3")
        a("s_lshl_b32 s74, s74, 11")
        a("v_lshrrev_b32 v4, 4, v0")
        a("v_lshlrev_b32 v4, 7, v4")
        a("v_add_u32 v4, s74, v4")
        a("global_load_dword v255, v4, s[72:73]")
    if Cfg.profile or Cfg.leak:
        a("s_memrealtime s[98:99]")
        a("s_waitcnt lgkmcnt(0)")
        a("s_mov_b32 s3, s98")
    a(f"s_getreg_b32 s{sX}, hwreg(HW_REG_XCC_ID)")
    a(f"s_and_b32 s{sX}, s{sX}, 15")
    a("v_lshrrev_b32 v1, 6, v0")
    a("v_and_b32 v0, 63, v0")
    a(f"v_readfirstlane_b32 s{sWV}, v1")
    a(f"s_mov_b32 s{sBUD}, {Cfg.budget}")
    a(f"s_mov_b32 s{sS}, -2")
    a(f"s_mov_b32 s{sMODE}, 0")
    a("s_waitcnt lgkmcnt(0)")
    srd(a, S_WS, P_WS, WS_HALF)
    srd(a, S_X, P_X, 4 * MB)
    srd(a, S_DBG, P_DBG, 256)
    a(f"s_and_b32 s{sT2}, s{sX}, 7")
    a("v_mov_b32 v3, 0")
    a(f"s_cmp_eq_u32 s{sWV}, 0")
    a("s_cbranch_scc0 L_notk0")
    a(f"s_lshl_b32 s{sT0}, s{sT2}, 5")
    a(f"s_lshr_b32 s{sSLOT}, s{sX}, 3")
    a(f"s_xor_b32 s{sSLOT}, s{sSLOT}, 1")
    a(f"s_atomic_add s{sSLOT}, s[{P_DBG}:{P_DBG+1}], s{sT0} glc")
    a.label("L_notk0")
    a(f"s_cmp_eq_u32 s{sWV}, 0")
    a("s_cbranch_scc0 L_noticket")
    a("s_waitcnt lgkmcnt(0)")
    a(f"v_mov_b32 v2, s{sSLOT}")
    a("ds_write_b32 v3, v2")
    a("s_waitcnt lgkmcnt(0)")
    a.label("L_noticket")
    a("s_barrier")
    a("ds_read_b32 v2, v3")
    a("s_waitcnt lgkmcnt(0)")
    a(f"v_readfirstlane_b32 s{sSLOT}, v2")
    a("s_barrier")
    a(f"s_cmp_ge_u32 s{sX}, 8")
    a("s_cbranch_scc1 L_overflow")
    a(f"s_cmp_ge_u32 s{sSLOT}, 32")
    a("s_cbranch_scc1 L_overflow")
    dispatch(a, 0)
    a.label("L_overflow")
    signal(a, DBG_OV, 1)
    a.label("L_fallback")
    a("s_mov_b64 exec, -1")
    a("s_waitcnt vmcnt(0) lgkmcnt(0)")
    a("s_barrier")
    a(f"s_lshr_b32 s{sX}, s2, 5")
    a(f"s_and_b32 s{sSLOT}, s2, 31")
    a(f"s_add_u32 s{S_WS}, s{P_WS}, {WS_HALF:#x}")
    a(f"s_addc_u32 s{S_WS+1}, s{P_WS+1}, 0")
    a(f"s_mov_b32 s{sS}, -2")
    dispatch(a, 1)
    return a.text()

HEADER = open(os.path.join(os.path.dirname(os.path.abspath(__file__)), "header.txt")).read()

def full_text():
    body = build()
    return (HEADER + f"; @launch grid=(256,1,1) block=(256,1,1) lds={LDS_BYTES}\n"
            + '.amdgcn_target "amdgcn-amd-amdhsa--gfx950"\n.text\n'
            + f".globl {KNAME}\n.p2align 8\n.type {KNAME},@function\n{KNAME}:\n"
            + body
            + '.section .rodata,"a"\n.p2align 6\n'
            + f".amdhsa_kernel {KNAME}\n"
            + "  .amdhsa_next_free_vgpr 512\n  .amdhsa_next_free_sgpr 102\n  .amdhsa_accum_offset 256\n"
            + "  .amdhsa_group_segment_fixed_size 0\n  .amdhsa_kernarg_size 112\n  .amdhsa_user_sgpr_count 2\n"
            + "  .amdhsa_user_sgpr_kernarg_segment_ptr 1\n  .amdhsa_system_sgpr_workgroup_id_x 1\n"
            + "  .amdhsa_float_denorm_mode_32 3\n"
            + ".end_amdhsa_kernel\n")

if __name__ == "__main__":
    import gen as G
    out = sys.argv[1]
    for o in sys.argv[2:]:
        if "=" in o:
            k, v = o.split("="); setattr(G.Cfg, k, int(v))
        else:
            setattr(G.Cfg, o, True)
    open(out, "w").write(G.full_text())
```
